```python
import torch

def _softmax(x, axis=-1):
    return torch.softmax(x, dim=axis)
def _gelu(x):
    return torch.nn.functional.gelu(x, approximate="tanh")
def _silu(x):
    return torch.nn.functional.silu(x)
def _sigmoid(x):
    return torch.sigmoid(x)
def _layernorm(x, axis=-1, eps=1e-5):
    m = x.mean(dim=axis, keepdim=True)
    v = x.var(dim=axis, keepdim=True, unbiased=False)
    return (x - m) / torch.sqrt(v + eps)
def _scatter_add(tgt, idx, src, axis=0):
    return tgt.clone().index_add_(axis, idx, src)
def _segment_sum(src, seg, n):
    out = torch.zeros((n,) + src.shape[1:], dtype=src.dtype)
    return out.index_add_(0, seg, src)
def _pad(x, pw):
    flat = tuple(v for pair in reversed(pw) for v in pair)
    return torch.nn.functional.pad(x, flat)

kernel_name = 'concat_heads__sliding_block_cached__sliding_block_cached__decode'

def setup_inputs():

    _w = (lambda a: (lambda t: t.to(torch.bfloat16) if t.is_floating_point() else t)(torch.as_tensor(a)))
    def _A_setup():
        B, Sq, D = 8, 1, 512
        Hq, Hkv, Sk, Dh = 32, 8, 4096, 128
        assert Hq % Hkv == 0, (Hq, Hkv)
        return {
            "x": _w((lambda *s: torch.randn(*s, dtype=torch.bfloat16) * 0.8)(B, Sq, D)),
            "k_cache": _w((lambda *s: torch.randn(*s, dtype=torch.bfloat16) * 0.8)(B, Hkv, Sk, Dh)),
            "v_cache": _w((lambda *s: torch.randn(*s, dtype=torch.bfloat16) * 0.05)(B, Hkv, Sk, Dh)),
            "wq": _w((lambda *s: torch.randn(*s, dtype=torch.bfloat16) * 0.8)(D, Hq * Dh) * (D ** -0.5)),
            "wo": _w((lambda *s: torch.randn(*s, dtype=torch.bfloat16) * 0.05)(Hq * Dh, D) * ((Hq * Dh) ** -0.5)),
        }
    _A_in = _A_setup()

    def _B_setup():
        B, Sq, D = 8, 1, 512
        Hq, Hkv, Sk, Dh = 32, 8, 4096, 128
        assert Hq % Hkv == 0, (Hq, Hkv)
        return {
            "x": _w((lambda *s: torch.randn(*s, dtype=torch.bfloat16) * 0.8)(B, Sq, D)),
            "k_cache": _w((lambda *s: torch.randn(*s, dtype=torch.bfloat16) * 0.8)(B, Hkv, Sk, Dh)),
            "v_cache": _w((lambda *s: torch.randn(*s, dtype=torch.bfloat16) * 0.05)(B, Hkv, Sk, Dh)),
            "wq": _w((lambda *s: torch.randn(*s, dtype=torch.bfloat16) * 0.8)(D, Hq * Dh) * (D ** -0.5)),
            "wo": _w((lambda *s: torch.randn(*s, dtype=torch.bfloat16) * 0.05)(Hq * Dh, D) * ((Hq * Dh) ** -0.5)),
        }
    _B_in = _B_setup()

    return {
        "A_x": _A_in["x"],
        "A_k_cache": _A_in["k_cache"],
        "A_v_cache": _A_in["v_cache"],
        "A_wq": _A_in["wq"],
        "A_wo": _A_in["wo"],
        "B_x": _B_in["x"],
        "B_k_cache": _B_in["k_cache"],
        "B_v_cache": _B_in["v_cache"],
        "B_wq": _B_in["wq"],
        "B_wo": _B_in["wo"],
    }

def reference(A_x, A_k_cache, A_v_cache, A_wq, A_wo, B_x, B_k_cache, B_v_cache, B_wq, B_wo):
    def _A_ref(x, k_cache, v_cache, wq, wo):
        B, Sq, D = x.shape
        Hq, Dh = 32, 128
        Hkv, Sk = k_cache.shape[1], k_cache.shape[2]
        W = min(4096, max(256, Sk // 4))
        rep = Hq // Hkv
        q = (lambda x, *d: x.permute(*d))((x @ wq).reshape(B, Sq, Hq, Dh), 0, 2, 1, 3)
        k = (lambda x, n, axis: torch.repeat_interleave(x, n, dim=axis))(k_cache[:, :, Sk - W:, :], rep, axis=1)
        v = (lambda x, n, axis: torch.repeat_interleave(x, n, dim=axis))(v_cache[:, :, Sk - W:, :], rep, axis=1)
        scores = torch.einsum("bhqd,bhkd->bhqk", q, k) * (Dh ** -0.5)
        p = _softmax(scores, axis=-1)
        o = torch.einsum("bhqk,bhkd->bhqd", p, v)
        return (lambda x, *d: x.permute(*d))(o, 0, 2, 1, 3).reshape(B, Sq, Hq * Dh) @ wo

    def _B_ref(x, k_cache, v_cache, wq, wo):
        B, Sq, D = x.shape
        Hq, Dh = 32, 128
        Hkv, Sk = k_cache.shape[1], k_cache.shape[2]
        W = min(4096, max(256, Sk // 4))
        rep = Hq // Hkv
        q = (lambda x, *d: x.permute(*d))((x @ wq).reshape(B, Sq, Hq, Dh), 0, 2, 1, 3)
        k = (lambda x, n, axis: torch.repeat_interleave(x, n, dim=axis))(k_cache[:, :, Sk - W:, :], rep, axis=1)
        v = (lambda x, n, axis: torch.repeat_interleave(x, n, dim=axis))(v_cache[:, :, Sk - W:, :], rep, axis=1)
        scores = torch.einsum("bhqd,bhkd->bhqk", q, k) * (Dh ** -0.5)
        p = _softmax(scores, axis=-1)
        o = torch.einsum("bhqk,bhkd->bhqd", p, v)
        return (lambda x, *d: x.permute(*d))(o, 0, 2, 1, 3).reshape(B, Sq, Hq * Dh) @ wo

    a = _A_ref(A_x, A_k_cache, A_v_cache, A_wq, A_wo)
    b = _B_ref(B_x, B_k_cache, B_v_cache, B_wq, B_wo)
    return torch.concatenate([a, b], axis=-1)
```

```python
import sys

out = sys.argv[1]
P = dict(pace=8, stamps=0, pol="nt", wpol="nt", budget=1 << 22, wolate=1)
for a in sys.argv[2:]:
    k, v = a.split("=")
    P[k] = v if k in ("pol", "wpol") else int(v)
NAME = "concat_heads__sliding_block_cached__sliding_block_cached__decode"
pol = "".join(" " + x for x in P["pol"].split("+") if x != "none")
wpol = "".join(" " + x for x in P["wpol"].split("+") if x != "none")
NST = P["stamps"]
STAMPOFF = 200 << 20

WS_E = 0x0
WS_FL = 0x1000
WS_ST = 0x2000
WS_OP = 0x10000
WS_QP = 0x100000
WS_RP = 0x200000
WS_SIZE = 0x300000

L_K = 0
L_RR = 0
L_QR = 131072
L_PL = 131072
L_OR = 147456
L_QL = 155648
L_SL = 156672
L_FW = 156800
L_CF = 156928
CF_QR, CF_QST, CF_QL, CF_KL, CF_VI, CF_P, CF_SL, CF_GO = [16 * i for i in range(8)]
LDS_BYTES = 157184 + 128

L = []
def e(s): L.append("    " + s)
def lab(s): L.append(s + ":")
def cmt(s): L.append("    ; " + s)
_uid = [0]
def uid(p="L"):
    _uid[0] += 1
    return f"{p}_{_uid[0]}"

S_WG, S_WAVE, S_BR = "s2", "s3", "s4"
S_HKV, S_B, S_SPLIT, S_C, S_GRP, S_ROLE = "s26", "s27", "s28", "s29", "s30", "s31"
SRD_A, SRD_B, SRD_WS, SRD_X = "s[32:35]", "s[36:39]", "s[40:43]", "s[44:47]"
S_SELLO, S_SELHI = "s48", "s49"
S_TAG0, S_TAG1 = "s50", "s51"
S_BUD = "s52"
S_HI, S_LO = "s53", "s54"

V_LANE = "v0"
V_CF = "v1"
V_G = "v2"
V_C = "v3"
V_ONE = "v4"
V_L16 = "v5"

def stamp(idx):
    if not NST: return
    e("s_memrealtime s[64:65]")
    e("s_waitcnt lgkmcnt(0)")
    e("v_mov_b32 v250, s64")
    e("v_mov_b32 v251, s65")
    e(f"v_mov_b32 v252, {idx*8}")
    e("s_mov_b64 s[66:67], exec")
    e("s_mov_b64 exec, 1")
    e("buffer_store_dwordx2 v[250:251], v252, s[72:75], s68 offen")
    e("s_mov_b64 exec, s[66:67]")

def stamp_if_role(role, idx):
    if not NST: return
    l = uid("Lst")
    e(f"s_cmp_lg_u32 {S_ROLE}, {role}")
    e(f"s_cbranch_scc1 {l}")
    stamp(idx)
    lab(l)

def budget_check():
    e(f"s_sub_u32 {S_BUD}, {S_BUD}, 1")
    e("s_cbranch_scc1 L_end")

def lds_wait4(off, t="v[244:247]"):
    l, d = uid("Lw"), uid("Ld")
    lab(l)
    e(f"ds_read_b128 v[244:247], {V_CF} offset:{off}")
    e("s_waitcnt lgkmcnt(0)")
    e("v_and_b32 v244, v244, v245")
    e("v_and_b32 v246, v246, v247")
    e("v_and_b32 v244, v244, v246")
    e("s_nop 0")
    e("v_readfirstlane_b32 s55, v244")
    e("s_cmp_eq_u32 s55, 1")
    e(f"s_cbranch_scc1 {d}")
    budget_check()
    e("s_sleep 1")
    e(f"s_branch {l}")
    lab(d)

def lds_wait1(vaddr, off):
    l, d = uid("Lw"), uid("Ld")
    lab(l)
    e(f"ds_read_b32 v244, {vaddr} offset:{off}")
    e("s_waitcnt lgkmcnt(0)")
    e("v_readfirstlane_b32 s55, v244")
    e("s_cmp_eq_u32 s55, 1")
    e(f"s_cbranch_scc1 {d}")
    budget_check()
    e("s_sleep 1")
    e(f"s_branch {l}")
    lab(d)

def lds_set(vaddr, off):
    e(f"ds_write_b32 {vaddr}, {V_ONE} offset:{off}")

def perms_block(src, dst, plist=range(4)):
    for p in plist:
        for jj in range(4):
            a = src + 4 * (2 * p) + jj
            b = src + 4 * (2 * p + 1) + jj
            e(f"v_perm_b32 v{dst + 4*(2*jj) + p}, v{b}, v{a}, {S_SELLO}")
            e(f"v_perm_b32 v{dst + 4*(2*jj+1) + p}, v{b}, v{a}, {S_SELHI}")

hdr = f"""; fused sliding-window GQA decode attention (two branches), one persistent launch of 256 workgroups
; @launch grid=(256,1,1) block=(512,1,1) lds={LDS_BYTES}
.amdgcn_target "amdgcn-amd-amdhsa--gfx950"
.text
.globl {NAME}_kernel
.p2align 8
.type {NAME}_kernel,@function
{NAME}_kernel:"""

e("s_cmp_ge_u32 s2, 256")
e("s_cbranch_scc1 L_end")
if NST: e("s_memrealtime s[70:71]")
e("s_lshr_b32 s4, s2, 7")
e("s_mul_i32 s5, s4, 40")
e("s_add_u32 s6, s0, s5")
e("s_addc_u32 s7, s1, 0")
e("s_load_dwordx8 s[8:15], s[6:7], 0")
e("s_load_dwordx2 s[16:17], s[6:7], 32")
e("s_load_dwordx4 s[20:23], s[0:1], 80")
e("s_load_dwordx2 s[24:25], s[0:1], 96")
e("v_lshrrev_b32 v1, 6, v0")
e("v_and_b32 v0, 63, v0")
e("s_bfe_u32 s26, s2, 0x30004")
e("v_readfirstlane_b32 s3, v1")
e("s_bfe_u32 s27, s2, 0x30001")
e("s_and_b32 s28, s2, 1")
e("s_and_b32 s29, s2, 15")
e("s_lshr_b32 s30, s2, 4")
e("s_lshr_b32 s53, s29, 2")
e("s_and_b32 s54, s29, 3")
e("s_and_b32 s31, s3, 3")
e("s_mov_b32 s48, 0x05040100")
e("s_mov_b32 s49, 0x07060302")
e(f"s_mov_b32 s52, {P['budget']}")
e(f"v_mov_b32 {V_CF}, {L_CF}")
e(f"v_lshrrev_b32 {V_G}, 4, v0")
e(f"v_and_b32 {V_C}, 15, v0")
e(f"v_mov_b32 {V_ONE}, 1")
e(f"v_lshlrev_b32 {V_L16}, 4, v0")
e("s_lshl_b32 s55, s31, 2")
e(f"v_add_u32 v6, s55, {V_CF}")
e("s_waitcnt lgkmcnt(0)")
e("s_mov_b32 s40, s24"); e("s_mov_b32 s41, s25"); e(f"s_mov_b32 s42, {WS_SIZE}"); e("s_mov_b32 s43, 0x20000")
if NST:
    e(f"s_add_u32 s72, s24, {STAMPOFF}")
    e("s_addc_u32 s73, s25, 0")
    e(f"s_mov_b32 s74, {256*NST*8}")
    e("s_mov_b32 s75, 0x20000")
    e(f"s_mul_i32 s68, s2, {NST*8}")
e("s_cmp_lt_u32 s3, 4")
e("s_cbranch_scc1 L_aux")

VB = 64
FB = 192
AC = 16
PB = 48
e("s_mov_b32 s32, s10"); e("s_mov_b32 s33, s11"); e("s_mov_b32 s34, 0x4000000"); e("s_mov_b32 s35, 0x20000")
e("s_mov_b32 s36, s12"); e("s_mov_b32 s37, s13"); e("s_mov_b32 s38, 0x4000000"); e("s_mov_b32 s39, 0x20000")
e("s_lshl_b32 s56, s27, 23")
e("s_lshl_b32 s57, s26, 20")
e("s_add_u32 s56, s56, s57")
e("s_lshl_b32 s57, s28, 17")
e("s_add_u32 s56, s56, s57")
e("s_lshl_b32 s57, s31, 15")
e("s_add_u32 s56, s56, s57")
e(f"s_add_u32 s56, s56, {3072*256}")
e(f"v_lshlrev_b32 v12, 2, {V_G}")
e(f"v_lshlrev_b32 v13, 8, {V_G}")
for ii in range(4):
    e(f"v_add_u32 v14, {ii}, v12")
    e(f"v_xor_b32 v14, v14, {V_C}")
    e(f"v_lshl_add_u32 v{8+ii}, v14, 4, v13")
PACE = P["pace"]
n_issued = 0
def pre_issue():
    global n_issued
    if n_issued == min(PACE, 8) if PACE else n_issued == 8:
        e("s_barrier")
    if PACE and n_issued >= PACE:
        e(f"s_waitcnt vmcnt({PACE-1})")
    n_issued += 1
kl_done = False
for n in range(32):
    t, ii = n >> 2, n & 3
    if ii == 0:
        e(f"s_add_u32 s58, s56, {t*4096}")
        e(f"s_add_u32 s59, s57, {t*4096}")
        e("s_mov_b32 m0, s59")
    pre_issue()
    e(f"buffer_load_dwordx4 v{8+ii}, {SRD_A}, s58 offen offset:{ii*1024}{pol} lds")
for n in range(32):
    t, ii = n >> 2, n & 3
    if ii == 0:
        e(f"s_add_u32 s58, s56, {t*4096}")
    pre_issue()
    if PACE and not kl_done and (n_issued - 1) - PACE >= 31:
        lds_set("v6", CF_KL)
        kl_done = True
        stamp_if_role(0, 8)
    r = VB + 4 * n
    e(f"buffer_load_dwordx4 v[{r}:{r+3}], {V_L16}, {SRD_B}, s58 offen offset:{ii*1024}{pol}")
lds_set("v6", CF_VI)
if not kl_done:
    e("s_waitcnt vmcnt(32)")
    lds_set("v6", CF_KL)
nst_extra = 0
if NST:
    stamp_if_role(0, 9)
lds_wait1("v6", CF_P)
stamp_if_role(0, 10)
e("s_lshl_b32 s55, s31, 12")
e(f"v_add_u32 v7, s55, {V_L16}")
e(f"v_add_u32 v7, {L_PL}, v7")
for T in range(4):
    e(f"ds_read_b128 v[{PB+4*T}:{PB+4*T+3}], v7 offset:{T*1024}")
for T in range(4):
    src = VB + 32 * T
    if T < 3:
        e(f"s_waitcnt vmcnt({24 - 8*T})")
        perms_block(src, FB)
    else:
        for p in range(4):
            e(f"s_waitcnt vmcnt({6 - 2*p})")
            perms_block(src, FB, [p])
    if T == 0: e("s_waitcnt lgkmcnt(0)")
    e("s_nop 1")
    for j in range(8):
        c = "0" if T == 0 else f"v[{AC+4*j}:{AC+4*j+3}]"
        e(f"v_mfma_f32_16x16x32_bf16 v[{AC+4*j}:{AC+4*j+3}], v[{PB+4*T}:{PB+4*T+3}], v[{FB+4*j}:{FB+4*j+3}], {c}")
stamp_if_role(0, 11)
e("s_lshl_b32 s55, s31, 11")
e(f"v_add_u32 v7, s55, {V_L16}")
e(f"v_add_u32 v7, {L_OR}, v7")
e("s_mov_b64 exec, 0xffff")
e("s_nop 4")
for j in range(8):
    e(f"ds_write_b128 v7, v[{AC+4*j}:{AC+4*j+3}] offset:{j*256}")
e("s_mov_b64 exec, -1")
e("s_waitcnt lgkmcnt(0)")
e("s_barrier")
e("s_cmp_ge_u32 s31, 2")
e("s_cbranch_scc1 L_end")
e("s_lshl_b32 s55, s31, 10")
e(f"v_add_u32 v7, s55, {V_L16}")
e(f"v_add_u32 v8, {L_OR}, v7")
e(f"v_mov_b32 v9, {L_FW}")
for w in range(4):
    e(f"ds_read_b128 v[{16+4*w}:{19+4*w}], v8 offset:{w*2048}")
    e(f"ds_read_b128 v[{32+4*w}:{35+4*w}], v9 offset:{w*16}")
e("s_lshl_b32 s55, s2, 11")
e(f"s_add_u32 s55, s55, {WS_OP}")
e("s_waitcnt lgkmcnt(6)")
for h in range(4): e(f"v_mul_f32 v{48+h}, v{16+h}, v{32+h}")
for w in range(1, 4):
    e(f"s_waitcnt lgkmcnt({6-2*w})")
    for h in range(4): e(f"v_fmac_f32 v{48+h}, v{16+4*w+h}, v{32+4*w+h}")
for h in range(4): e(f"v_min_u32 v{48+h}, -2, v{48+h}")
e(f"buffer_store_dwordx4 v[48:51], v7, {SRD_WS}, s55 offen sc1")
stamp_if_role(0, 12)
e("s_branch L_end")

lab("L_aux")
e("s_setprio 3")
WQ = 64
FQ = 96
DQ = 128
XF = 16
e("s_mov_b32 s32, s14"); e("s_mov_b32 s33, s15"); e("s_mov_b32 s34, 0x400000"); e("s_mov_b32 s35, 0x20000")
e("s_mov_b32 s36, s16"); e("s_mov_b32 s37, s17"); e("s_mov_b32 s38, 0x400000"); e("s_mov_b32 s39, 0x20000")
e("s_mov_b32 s44, s8"); e("s_mov_b32 s45, s9"); e("s_mov_b32 s46, 8192"); e("s_mov_b32 s47, 0x20000")
e("s_lshl_b32 s56, s54, 7")
e("s_lshl_b32 s57, s31, 5")
e("s_add_u32 s56, s56, s57")
e("s_lshl_b32 s57, s56, 13")
e("s_lshl_b32 s58, s26, 10")
e("s_add_u32 s57, s57, s58")
e("s_lshl_b32 s58, s53, 8")
e("s_add_u32 s57, s57, s58")
e(f"v_lshlrev_b32 v8, 16, {V_G}")
e(f"v_lshl_add_u32 v8, {V_C}, 4, v8")
for i in range(8):
    e(f"s_add_u32 s58, s57, {i*8192}")
    e(f"buffer_load_dwordx4 v[{WQ+4*i}:{WQ+4*i+3}], v8, {SRD_A}, s58 offen{wpol}")
e(f"v_and_b32 v9, 7, v0")
e("v_lshlrev_b32 v9, 10, v9")
e(f"v_lshl_add_u32 v9, {V_G}, 4, v9")
e("s_lshl_b32 s58, s56, 1")
e(f"buffer_load_dwordx4 v[{XF}:{XF+3}], v9, {SRD_X}, s58 offen")
e("s_lshl_b32 s58, s4, 7")
e("v_mov_b32 v10, 0")
e(f"buffer_load_dwordx2 v[20:21], v10, {SRD_WS}, s58 offen sc1")
e("v_mov_b32 v24, -1"); e("v_mov_b32 v25, -1"); e("v_mov_b32 v26, -1"); e("v_mov_b32 v27, -1")
lz = uid("Lz")
e("s_cmp_lg_u32 s31, 0")
e(f"s_cbranch_scc1 {lz}")
e(f"v_lshl_add_u32 v11, v0, 2, {V_CF}")
e("ds_write_b32 v11, v10")
e("s_waitcnt lgkmcnt(0)")
lab(lz)
e("s_and_b32 s58, s31, 1")
e("s_lshl_b32 s59, s4, 1")
e("s_add_u32 s59, s59, s58")
e("s_lshl_b32 s60, s59, 18")
e("s_lshl_b32 s59, s54, 16")
e("s_add_u32 s60, s60, s59")
e("s_lshl_b32 s59, s26, 2")
e("s_add_u32 s59, s59, s53")
e("s_lshl_b32 s59, s59, 7")
e("s_add_u32 s60, s60, s59")
e("s_lshr_b32 s59, s31, 1")
e("s_lshl_b32 s59, s59, 6")
e("s_add_u32 s60, s60, s59")
e(f"s_add_u32 s60, s60, {WS_RP}")
e(f"v_lshlrev_b32 v12, 12, {V_C}")
e(f"v_lshl_add_u32 v12, {V_G}, 4, v12")
e(f"buffer_store_dwordx4 v[24:27], v12, {SRD_WS}, s60 offen sc1")
lc1, lc2 = uid("Lc"), uid("Lc")
e("s_cmp_ge_u32 s31, 2")
e(f"s_cbranch_scc1 {lc1}")
e("s_lshl_b32 s58, s2, 11")
e("s_lshl_b32 s59, s31, 10")
e("s_add_u32 s58, s58, s59")
e(f"s_add_u32 s58, s58, {WS_OP}")
e(f"buffer_store_dwordx4 v[24:27], {V_L16}, {SRD_WS}, s58 offen sc1")
e(f"s_branch {lc2}")
lab(lc1)
e("s_lshl_b32 s58, s2, 7")
e(f"s_add_u32 s58, s58, {WS_ST}")
e("s_mov_b64 exec, 3")
e(f"buffer_store_dwordx4 v[24:27], {V_L16}, {SRD_WS}, s58 offen sc1")
e("s_mov_b64 exec, -1")
lab(lc2)
e("s_barrier")
if NST:
    l = uid("Lst")
    e("s_cmp_lg_u32 s31, 0")
    e(f"s_cbranch_scc1 {l}")
    e("v_mov_b32 v250, s70"); e("v_mov_b32 v251, s71"); e("v_mov_b32 v252, 0")
    e("s_mov_b64 exec, 1")
    e("buffer_store_dwordx2 v[250:251], v252, s[72:75], s68 offen")
    e("s_mov_b64 exec, -1")
    lab(l)
    e("s_waitcnt vmcnt(0)")
else:
    e("s_waitcnt vmcnt(2)")
stamp_if_role(0, 1)
perms_block(WQ, FQ)
e("v_readfirstlane_b32 s50, v20")
e("v_readfirstlane_b32 s51, v21")
for j in range(8):
    e(f"v_mfma_f32_16x16x32_bf16 v[{DQ+4*j}:{DQ+4*j+3}], v[{XF}:{XF+3}], v[{FQ+4*j}:{FQ+4*j+3}], 0")
e("s_add_u32 s50, s50, 1")
e("s_addc_u32 s51, s51, 0")
e("s_lshl_b32 s55, s31, 12")
e(f"v_add_u32 v7, s55, {V_L16}")
e(f"v_add_u32 v7, {L_QR}, v7")
e("s_mov_b32 exec_hi, 0")
e("s_nop 4")
for j in range(8):
    e(f"ds_write_b128 v7, v[{DQ+4*j}:{DQ+4*j+3}] offset:{j*512}")
e("s_mov_b64 exec, -1")
e("s_waitcnt lgkmcnt(0)")
lds_set("v6", CF_QR)
e("s_and_b32 s55, s31, 1")
e("s_lshl_b32 s55, s55, 8")
e("s_lshr_b32 s58, s31, 1")
e("s_lshl_b32 s59, s58, 11")
e("s_add_u32 s55, s55, s59")
e(f"s_add_u32 s55, s55, {L_QR}")
e("v_lshlrev_b32 v7, 2, v0")
e("v_add_u32 v7, s55, v7")
e("v_and_b32 v8, 3, v0")
e("v_lshlrev_b32 v8, 13, v8")
e("v_lshrrev_b32 v9, 2, v0")
e("v_lshl_add_u32 v8, v9, 5, v8")
e("s_lshl_b32 s59, s30, 16")
e("s_and_b32 s61, s31, 1")
e("s_lshl_b32 s61, s61, 15")
e("s_add_u32 s59, s59, s61")
e("s_lshl_b32 s61, s29, 9")
e("s_add_u32 s59, s59, s61")
e("s_lshl_b32 s61, s58, 4")
e("s_add_u32 s59, s59, s61")
e(f"s_add_u32 s59, s59, {WS_QP}")
lds_wait4(CF_QR)
for a in range(4):
    e(f"ds_read2st64_b32 v[{64+4*a}:{65+4*a}], v7 offset0:{16*a} offset1:{16*a+2}")
    e(f"ds_read2st64_b32 v[{66+4*a}:{67+4*a}], v7 offset0:{16*a+4} offset1:{16*a+6}")
e("s_waitcnt lgkmcnt(0)")
for jj in range(4):
    e(f"v_add_f32 v{64+jj}, v{64+jj}, v{68+jj}")
    e(f"v_add_f32 v{72+jj}, v{72+jj}, v{76+jj}")
for jj in range(4):
    e(f"v_add_f32 v{64+jj}, v{64+jj}, v{72+jj}")
e(f"buffer_store_dwordx4 v[64:67], v8, {SRD_WS}, s59 offen sc1")
e("s_waitcnt vmcnt(0)")
lds_set("v6", CF_QST)
stamp_if_role(0, 2)
lgo, lgo2 = uid("Lgo"), uid("Lgo")
e("s_cmp_lg_u32 s31, 0")
e(f"s_cbranch_scc1 {lgo}")
lds_wait4(CF_QST)
e("s_lshl_b32 s58, s30, 7")
e(f"s_add_u32 s58, s58, {WS_FL}")
e("s_lshl_b32 s59, s29, 3")
e("v_mov_b32 v20, s50")
e("v_mov_b32 v21, s51")
e("v_mov_b32 v22, s59")
e("s_mov_b64 exec, 1")
e(f"buffer_store_dwordx2 v[20:21], v22, {SRD_WS}, s58 offen sc1")
e("s_mov_b64 exec, 0xffff")
e("v_lshlrev_b32 v22, 3, v0")
lp, ld = uid("Lp"), uid("Ld")
lab(lp)
e(f"buffer_load_dwordx2 v[24:25], v22, {SRD_WS}, s58 offen sc1")
e("s_waitcnt vmcnt(0)")
e("v_cmp_ne_u64 vcc, v[24:25], v[20:21]")
e(f"s_cbranch_vccz {ld}")
budget_check()
e("s_sleep 2")
e(f"s_branch {lp}")
lab(ld)
e("s_mov_b64 exec, -1")
lds_set(V_CF, CF_GO)
e(f"s_branch {lgo2}")
lab(lgo)
lds_wait1(V_CF, CF_GO)
lab(lgo2)
stamp_if_role(0, 3)
e("s_lshl_b32 s58, s30, 16")
e("s_lshl_b32 s59, s27, 13")
e("s_add_u32 s58, s58, s59")
e("s_lshl_b32 s59, s31, 11")
e("s_add_u32 s58, s58, s59")
e(f"s_add_u32 s58, s58, {WS_QP}")
e("v_lshlrev_b32 v7, 3, v0")
for kq in range(4):
    e(f"buffer_load_dwordx2 v[{64+2*kq}:{65+2*kq}], v7, {SRD_WS}, s58 offen offset:{kq*512} sc1")
e("s_lshl_b32 s59, s31, 8")
e(f"s_add_u32 s59, s59, {L_QL}")
e("v_lshlrev_b32 v8, 2, v0")
e("v_add_u32 v8, s59, v8")
e("s_waitcnt vmcnt(0)")
e("v_add_f32 v64, v64, v66"); e("v_add_f32 v65, v65, v67")
e("v_add_f32 v68, v68, v70"); e("v_add_f32 v69, v69, v71")
e("v_add_f32 v64, v64, v68"); e("v_add_f32 v65, v65, v69")
e("v_cvt_pk_bf16_f32 v64, v64, v65")
e("ds_write_b32 v8, v64")
e("s_waitcnt lgkmcnt(0)")
lds_set("v6", CF_QL)
e(f"v_and_b32 v8, 3, {V_C}")
e("v_lshlrev_b32 v8, 2, v8")
e(f"v_lshrrev_b32 v9, 2, {V_C}")
e("v_add_u32 v8, v8, v9")
e("v_lshlrev_b32 v8, 8, v8")
e("s_lshl_b32 s55, s31, 15")
e("v_add_u32 v8, s55, v8")
for s in range(4):
    e(f"v_add_u32 v9, {4*s}, {V_G}")
    e(f"v_xor_b32 v9, v9, {V_C}")
    e(f"v_lshl_add_u32 v{28+s}, v9, 4, v8")
e(f"v_and_b32 v9, 3, {V_C}")
e("v_lshlrev_b32 v9, 8, v9")
e(f"v_lshl_add_u32 v9, {V_G}, 4, v9")
e(f"v_add_u32 v9, {L_QL}, v9")
lds_wait4(CF_QL)
stamp_if_role(0, 4)
QF = 32
for s in range(4):
    e(f"ds_read_b128 v[{QF+4*s}:{QF+4*s+3}], v9 offset:{s*64}")
lds_wait1("v6", CF_KL)
stamp_if_role(0, 5)
KF = 64
SC = 128
def kread(t):
    b = KF + 16 * (t & 3)
    for s in range(4):
        e(f"ds_read_b128 v[{b+4*s}:{b+4*s+3}], v{28+s} offset:{t*4096}")
kread(0); kread(1)
for t in range(8):
    if t + 2 < 8:
        kread(t + 2)
        e("s_waitcnt lgkmcnt(8)")
    else:
        e(f"s_waitcnt lgkmcnt({4*(7-t)})")
    b = KF + 16 * (t & 3)
    for s in range(4):
        c = "0" if s == 0 else f"v[{SC+4*t}:{SC+4*t+3}]"
        e(f"v_mfma_f32_16x16x32_bf16 v[{SC+4*t}:{SC+4*t+3}], v[{b+4*s}:{b+4*s+3}], v[{QF+4*s}:{QF+4*s+3}], {c}")
import math
CSC = (128 ** -0.5) * math.log2(math.e)
import struct
e(f"s_mov_b32 s58, 0x{struct.unpack('<I', struct.pack('<f', CSC))[0]:08x}")
e("s_nop 7")
e(f"v_max3_f32 v10, v{SC}, v{SC+1}, v{SC+2}")
e(f"v_max3_f32 v11, v{SC+3}, v{SC+4}, v{SC+5}")
for k in range(6, 30, 4):
    e(f"v_max3_f32 v10, v10, v{SC+k}, v{SC+k+1}")
    e(f"v_max3_f32 v11, v11, v{SC+k+2}, v{SC+k+3}")
e(f"v_max3_f32 v10, v10, v{SC+30}, v{SC+31}")
e("v_max_f32 v10, v10, v11")
def xlane(op, v, t):
    e(f"v_mov_b32 {t}, {v}")
    e("s_nop 1")
    e(f"v_permlane32_swap_b32 {v}, {t}")
    e("s_nop 1")
    e(f"{op} {v}, {v}, {t}")
    e(f"v_mov_b32 {t}, {v}")
    e("s_nop 1")
    e(f"v_permlane16_swap_b32 {v}, {t}")
    e("s_nop 1")
    e(f"{op} {v}, {v}, {t}")
xlane("v_max_f32", "v10", "v11")
e("v_mul_f32 v10, s58, v10")
e("v_sub_f32 v13, 0, v10")
for k in range(32):
    e(f"v_fma_f32 v{SC+k}, v{SC+k}, s58, v13")
for k in range(32):
    e(f"v_exp_f32 v{SC+k}, v{SC+k}")
e("s_nop 0")
e(f"v_add_f32 v11, v{SC}, v{SC+1}")
e(f"v_add_f32 v14, v{SC+2}, v{SC+3}")
for k in range(4, 32, 2):
    e(f"v_add_f32 v11, v11, v{SC+k}")
    e(f"v_add_f32 v14, v14, v{SC+k+1}")
e("v_add_f32 v11, v11, v14")
for k in range(16):
    e(f"v_cvt_pk_bf16_f32 v{64+k}, v{SC+2*k}, v{SC+2*k+1}")
e("s_lshl_b32 s55, s31, 12")
e(f"v_add_u32 v7, s55, {V_L16}")
e(f"v_add_u32 v7, {L_PL}, v7")
for T in range(4):
    e(f"ds_write_b128 v7, v[{64+4*T}:{67+4*T}] offset:{T*1024}")
xlane("v_add_f32", "v11", "v14")
e("s_lshl_b32 s55, s31, 5")
e(f"s_add_u32 s55, s55, {L_SL}")
e("v_lshlrev_b32 v8, 3, v0")
e("v_add_u32 v8, s55, v8")
e("s_mov_b64 exec, 0xf")
e("ds_write_b64 v8, v[10:11]")
e("s_mov_b64 exec, -1")
e("s_waitcnt lgkmcnt(0)")
lds_set("v6", CF_P)
lds_set("v6", CF_SL)
stamp_if_role(0, 6)
ls3, ls0, lsd = uid("Ls"), uid("Ls"), uid("Ls")
e("s_cmp_eq_u32 s31, 0")
e(f"s_cbranch_scc1 {ls0}")
e("s_cmp_lg_u32 s31, 3")
e(f"s_cbranch_scc1 {lsd}")
lds_wait4(CF_SL)
e("s_mov_b64 exec, 0xffff")
e("v_lshlrev_b32 v8, 3, v0")
e(f"v_add_u32 v8, {L_SL}, v8")
e("ds_read_b64 v[10:11], v8")
e("s_waitcnt lgkmcnt(0)")
e("v_max_f32_dpp v13, v10, v10 row_ror:4 row_mask:0xf bank_mask:0xf")
e("s_nop 1")
e("v_max_f32_dpp v13, v13, v13 row_ror:8 row_mask:0xf bank_mask:0xf")
e("v_sub_f32 v14, v10, v13")
e("v_exp_f32 v14, v14")
e("s_nop 0")
e("v_mul_f32 v14, v14, v11")
e("s_nop 1")
e("v_add_f32_dpp v15, v14, v14 row_ror:4 row_mask:0xf bank_mask:0xf")
e("s_nop 1")
e("v_add_f32_dpp v15, v15, v15 row_ror:8 row_mask:0xf bank_mask:0xf")
e("v_min_u32 v20, -2, v13")
e("v_min_u32 v21, -2, v15")
e("v_and_b32 v22, 3, v0")
e("v_lshlrev_b32 v22, 3, v22")
e("s_lshl_b32 s58, s2, 7")
e(f"s_add_u32 s58, s58, {WS_ST}")
e("s_xor_b32 s59, s58, 128")
e("s_mov_b64 exec, 0xf")
e(f"buffer_store_dwordx2 v[20:21], v22, {SRD_WS}, s58 offen sc1")
e("s_mov_b64 exec, 0xffff")
lp, ld = uid("Lp"), uid("Ld")
lab(lp)
e(f"buffer_load_dwordx2 v[24:25], v22, {SRD_WS}, s59 offen sc1")
e("s_waitcnt vmcnt(0)")
e("v_max_u32 v26, v24, v25")
e("v_cmp_eq_u32 vcc, -1, v26")
e(f"s_cbranch_vccz {ld}")
budget_check()
e("s_sleep 2")
e(f"s_branch {lp}")
lab(ld)
e("v_max_f32 v26, v13, v24")
e("v_sub_f32 v27, v13, v26")
e("v_sub_f32 v20, v24, v26")
e("v_sub_f32 v21, v10, v26")
e("v_exp_f32 v27, v27")
e("v_exp_f32 v20, v20")
e("v_exp_f32 v21, v21")
e("s_nop 0")
e("v_mul_f32 v27, v27, v15")
e("v_fmac_f32 v27, v20, v25")
e("v_rcp_f32 v27, v27")
e("s_nop 0")
e("v_mul_f32 v21, v21, v27")
e("v_lshlrev_b32 v8, 2, v0")
e(f"v_add_u32 v8, {L_FW}, v8")
e("ds_write_b32 v8, v21")
e("s_mov_b64 exec, -1")
e("s_waitcnt lgkmcnt(0)")
stamp(7)
e(f"s_branch {lsd}")
lab(ls0)
e("s_lshl_b32 s58, s4, 10")
e(f"s_add_u32 s58, s58, {WS_FL}")
e("v_mov_b32 v20, s50")
e("v_mov_b32 v21, s51")
lp, ld = uid("Lp"), uid("Ld")
lab(lp)
e(f"buffer_load_dwordx4 v[24:27], {V_L16}, {SRD_WS}, s58 offen sc1")
e("s_waitcnt vmcnt(0)")
e("v_cmp_ne_u64 vcc, v[24:25], v[20:21]")
e("v_cmp_ne_u64 s[56:57], v[26:27], v[20:21]")
e("s_or_b64 vcc, vcc, s[56:57]")
e(f"s_cbranch_vccz {ld}")
budget_check()
e("s_sleep 2")
e(f"s_branch {lp}")
lab(ld)
lab(lsd)
if P["wolate"]:
    lds_wait1("v6", CF_VI)
WO = 64; FO = 96; DO = 128
e("s_lshl_b32 s56, s26, 9")
e("s_and_b32 s57, s31, 1")
e("s_lshl_b32 s57, s57, 6")
e("s_add_u32 s56, s56, s57")
e("s_lshl_b32 s57, s53, 1")
e("s_add_u32 s56, s56, s57")
e("s_lshr_b32 s57, s31, 1")
e("s_add_u32 s56, s56, s57")
e("s_lshl_b32 s56, s56, 10")
e("s_lshl_b32 s57, s54, 8")
e("s_add_u32 s56, s56, s57")
e(f"v_lshlrev_b32 v8, 14, {V_G}")
e(f"v_lshl_add_u32 v8, {V_C}, 4, v8")
for i in range(8):
    dd, h = i >> 2, i & 3
    e(f"s_add_u32 s57, s56, {(h*128 + 8*dd)*1024}")
    e(f"buffer_load_dwordx4 v[{WO+4*i}:{WO+4*i+3}], v8, {SRD_B}, s57 offen{wpol}")
e("v_and_b32 v9, 7, v0")
e("v_lshlrev_b32 v9, 12, v9")
e(f"v_lshrrev_b32 v10, 3, {V_C}")
e("v_lshl_add_u32 v9, v10, 11, v9")
e(f"v_lshl_add_u32 v9, {V_G}, 5, v9")
e("s_lshl_b32 s58, s30, 15")
e("s_lshl_b32 s59, s53, 9")
e("s_add_u32 s58, s58, s59")
e("s_lshl_b32 s59, s31, 7")
e("s_add_u32 s58, s58, s59")
e(f"s_add_u32 s58, s58, {WS_OP}")
e("s_barrier")
stamp_if_role(0, 13)
e("s_waitcnt vmcnt(0)")
perms_block(WO, FO)
stamp_if_role(0, 14)
lp, ld = uid("Lp"), uid("Ld")
lab(lp)
e(f"buffer_load_dwordx4 v[16:19], v9, {SRD_WS}, s58 offen sc1")
e(f"buffer_load_dwordx4 v[20:23], v9, {SRD_WS}, s58 offen offset:16 sc1")
e("s_waitcnt vmcnt(0)")
e("v_max3_u32 v24, v16, v17, v18")
e("v_max3_u32 v25, v19, v20, v21")
e("v_max3_u32 v24, v24, v22, v23")
e("v_max_u32 v24, v24, v25")
e("v_cmp_eq_u32 vcc, -1, v24")
e(f"s_cbranch_vccz {ld}")
budget_check()
e(f"s_branch {lp}")
lab(ld)
stamp_if_role(0, 15)
e("v_cvt_pk_bf16_f32 v24, v16, v17")
e("v_cvt_pk_bf16_f32 v25, v18, v19")
e("v_cvt_pk_bf16_f32 v26, v20, v21")
e("v_cvt_pk_bf16_f32 v27, v22, v23")
e("s_lshl_b32 s55, s31, 13")
e(f"v_add_u32 v7, s55, {V_L16}")
for j in range(8):
    e(f"v_mfma_f32_16x16x32_bf16 v[{DO+4*j}:{DO+4*j+3}], v[24:27], v[{FO+4*j}:{FO+4*j+3}], 0")
e("s_lshr_b32 s55, s31, 1")
e("s_lshl_b32 s55, s55, 12")
e("s_and_b32 s56, s31, 1")
e("s_lshl_b32 s56, s56, 8")
e("s_add_u32 s55, s55, s56")
e(f"v_lshlrev_b32 v8, 10, {V_G}")
e(f"v_lshl_add_u32 v8, {V_C}, 4, v8")
e("v_add_u32 v8, s55, v8")
for j in range(8):
    e(f"ds_write_b128 v7, v[{DO+4*j}:{DO+4*j+3}] offset:{j*1024}")
e("s_waitcnt lgkmcnt(0)")
e("s_barrier")
for k in range(8):
    a, sp = k >> 1, k & 1
    e(f"ds_read_b128 v[{64+4*k}:{67+4*k}], v8 offset:{a*8192 + sp*512}")
e("s_waitcnt lgkmcnt(6)")
for r in range(4): e(f"v_add_f32 v{64+r}, v{64+r}, v{68+r}")
e("s_waitcnt lgkmcnt(4)")
for r in range(4): e(f"v_add_f32 v{72+r}, v{72+r}, v{76+r}")
e("s_waitcnt lgkmcnt(2)")
for r in range(4): e(f"v_add_f32 v{80+r}, v{80+r}, v{84+r}")
for r in range(4): e(f"v_add_f32 v{64+r}, v{64+r}, v{72+r}")
e("s_waitcnt lgkmcnt(0)")
for r in range(4): e(f"v_add_f32 v{88+r}, v{88+r}, v{92+r}")
for r in range(4): e(f"v_add_f32 v{80+r}, v{80+r}, v{88+r}")
for r in range(4): e(f"v_add_f32 v{64+r}, v{64+r}, v{80+r}")
for r in range(4): e(f"v_min_u32 v{64+r}, -2, v{64+r}")
e(f"buffer_store_dwordx4 v[64:67], v12, {SRD_WS}, s60 offen sc1")
e("s_cmp_lg_u32 s31, 0")
e("s_cbranch_scc1 L_end")
stamp(16)
e("s_and_b32 s55, s2, 1")
e("s_lshl_b32 s56, s4, 1")
e("s_add_u32 s56, s56, s55")
e("s_lshl_b32 s56, s56, 18")
e("s_bfe_u32 s57, s2, 0x60001")
e("s_lshl_b32 s58, s57, 12")
e("s_add_u32 s56, s56, s58")
e(f"s_add_u32 s56, s56, {WS_RP}")
e("s_mov_b32 s44, s20"); e("s_mov_b32 s45, s21"); e("s_mov_b32 s46, 16384"); e("s_mov_b32 s47, 0x20000")
e("s_lshl_b32 s58, s55, 13")
e("s_lshl_b32 s59, s4, 10")
e("s_add_u32 s58, s58, s59")
e("s_lshl_b32 s59, s57, 4")
e("s_add_u32 s58, s58, s59")
e("v_lshlrev_b32 v8, 1, v0")
lp, ld = uid("Lp"), uid("Ld")
lab(lp)
for t in range(4):
    e(f"buffer_load_dwordx4 v[{16+4*t}:{19+4*t}], {V_L16}, {SRD_WS}, s56 offen offset:{t*1024} sc1")
e("s_waitcnt vmcnt(0)")
e("v_max3_u32 v32, v16, v17, v18")
e("v_max3_u32 v33, v19, v20, v21")
e("v_max3_u32 v32, v32, v22, v23")
e("v_max3_u32 v33, v33, v24, v25")
e("v_max3_u32 v32, v32, v26, v27")
e("v_max3_u32 v33, v33, v28, v29")
e("v_max3_u32 v32, v32, v30, v31")
e("v_max_u32 v32, v32, v33")
e("v_cmp_eq_u32 vcc, -1, v32")
e(f"s_cbranch_vccz {ld}")
budget_check()
e(f"s_branch {lp}")
lab(ld)
stamp(17)
for r in range(4): e(f"v_add_f32 v{16+r}, v{16+r}, v{20+r}")
for r in range(4): e(f"v_add_f32 v{24+r}, v{24+r}, v{28+r}")
for r in range(4): e(f"v_add_f32 v{16+r}, v{16+r}, v{24+r}")
e("s_nop 1")
for r in range(4): e(f"v_add_f32_dpp v{20+r}, v{16+r}, v{16+r} row_ror:8 row_mask:0xf bank_mask:0xf")
for r in range(4): e(f"v_mov_b32 v{24+r}, v{20+r}")
e("s_nop 1")
for r in range(4): e(f"v_permlane32_swap_b32 v{20+r}, v{24+r}")
e("s_nop 1")
for r in range(4): e(f"v_add_f32 v{20+r}, v{20+r}, v{24+r}")
for r in range(4): e(f"v_mov_b32 v{24+r}, v{20+r}")
e("s_nop 1")
for r in range(4): e(f"v_permlane16_swap_b32 v{20+r}, v{24+r}")
e("s_nop 1")
for r in range(4): e(f"v_add_f32 v{20+r}, v{20+r}, v{24+r}")
for r in range(4): e(f"v_cvt_pk_bf16_f32 v{20+r}, v{20+r}, v{20+r}")
e("s_mov_b64 exec, 0xff")
e("s_add_u32 s59, s58, 4096")
for r in range(4):
    e(f"buffer_store_short v{20+r}, v8, {SRD_X}, {'s58' if r < 2 else 's59'} offen offset:{(r&1)*2048}")
e("s_and_b32 s55, s2, 127")
e("s_cmp_lg_u32 s55, 0")
lfin = uid("Lf")
e(f"s_cbranch_scc1 {lfin}")
e("s_mov_b64 exec, 1")
e("v_mov_b32 v24, s50")
e("v_mov_b32 v25, s51")
e("v_mov_b32 v26, 0")
e("s_lshl_b32 s58, s4, 7")
e(f"buffer_store_dwordx2 v[24:25], v26, {SRD_WS}, s58 offen sc1")
lab(lfin)
if NST:
    e("s_mov_b64 exec, -1")
    e("s_waitcnt vmcnt(0)")
    stamp(18)
lab("L_end")
e("s_endpgm")

ftr = f""".section .rodata,"a"
.p2align 6
.amdhsa_kernel {NAME}_kernel
  .amdhsa_next_free_vgpr 256
  .amdhsa_next_free_sgpr 102
  .amdhsa_accum_offset 256
  .amdhsa_group_segment_fixed_size 0
  .amdhsa_kernarg_size 104
  .amdhsa_user_sgpr_count 2
  .amdhsa_user_sgpr_kernarg_segment_ptr 1
  .amdhsa_system_sgpr_workgroup_id_x 1
.end_amdhsa_kernel
"""
open(out, "w").write(hdr + "\n" + "\n".join(L) + "\n" + ftr)
```

```python
import sys

out = sys.argv[1]
P = dict(wothr=4, pipe=4, othr=24, rthr=32, pgap=2, psw=64, pace2=0, dbg=0, noswz=0, qprobe=0, smask=0, qdelay=32, osleep=2, qsleep=12, pace=8, stamps=0, pol="nt", wpol="nt", budget=1 << 22, wolate=2)
for a in sys.argv[2:]:
    k, v = a.split("=")
    P[k] = v if k in ("pol", "wpol") else int(v, 0)
NAME = "concat_heads__sliding_block_cached__sliding_block_cached__decode"
pol = "".join(" " + x for x in P["pol"].split("+") if x != "none")
wpol = "".join(" " + x for x in P["wpol"].split("+") if x != "none")
NST = P["stamps"]
STAMPOFF = 200 << 20

WS_E = 0x0
WS_FL = 0x1000
WS_ST = 0x2000
WS_OP = 0x10000
WS_QP = 0x100000
WS_RP = 0x200000
WS_SIZE = 0x300000

L_K = 0
L_RR = 0
L_QR = 131072
L_PL = 131072
L_OR = 147456
L_QL = 155648
L_SL = 156672
L_FW = 156800
L_CF = 156928
CF_QR, CF_QST, CF_QL, CF_KL, CF_VI, CF_P, CF_SL, CF_GO = [16 * i for i in range(8)]
LDS_BYTES = 157184 + 128

L = []
def e(s): L.append("    " + s)
def lab(s): L.append(s + ":")
def cmt(s): L.append("    ; " + s)
_uid = [0]
def uid(p="L"):
    _uid[0] += 1
    return f"{p}_{_uid[0]}"

S_WG, S_WAVE, S_BR = "s2", "s3", "s4"
S_HKV, S_B, S_SPLIT, S_C, S_GRP, S_ROLE = "s26", "s27", "s28", "s29", "s30", "s31"
SRD_A, SRD_B, SRD_WS, SRD_X = "s[32:35]", "s[36:39]", "s[40:43]", "s[44:47]"
S_SELLO, S_SELHI = "s48", "s49"
S_TAG0, S_TAG1 = "s50", "s51"
S_BUD = "s52"
S_HI, S_LO = "s53", "s54"

V_LANE = "v0"
V_CF = "v1"
V_G = "v2"
V_C = "v3"
V_ONE = "v4"
V_L16 = "v5"

def stamp(idx):
    if not NST: return
    if P["smask"] and not (P["smask"] >> idx) & 1: return
    e("s_memrealtime s[64:65]")
    e("s_waitcnt lgkmcnt(0)")
    e("v_mov_b32 v250, s64")
    e("v_mov_b32 v251, s65")
    e(f"v_mov_b32 v252, {idx*8}")
    e("s_mov_b64 s[66:67], exec")
    e("s_mov_b64 exec, 1")
    e("buffer_store_dwordx2 v[250:251], v252, s[72:75], s68 offen")
    e("s_mov_b64 exec, s[66:67]")

def stamp_if_role(role, idx):
    if not NST: return
    if P["smask"] and not (P["smask"] >> idx) & 1: return
    l = uid("Lst")
    e(f"s_cmp_lg_u32 {S_ROLE}, {role}")
    e(f"s_cbranch_scc1 {l}")
    stamp(idx)
    lab(l)

def budget_check():
    e(f"s_sub_u32 {S_BUD}, {S_BUD}, 1")
    e("s_cbranch_scc1 L_end")

def lds_wait4(off, t="v[244:247]"):
    l, d = uid("Lw"), uid("Ld")
    lab(l)
    e(f"ds_read_b128 v[244:247], {V_CF} offset:{off}")
    e("s_waitcnt lgkmcnt(0)")
    e("v_and_b32 v244, v244, v245")
    e("v_and_b32 v246, v246, v247")
    e("v_and_b32 v244, v244, v246")
    e("s_nop 0")
    e("v_readfirstlane_b32 s55, v244")
    e("s_cmp_eq_u32 s55, 1")
    e(f"s_cbranch_scc1 {d}")
    budget_check()
    e("s_sleep 1")
    e(f"s_branch {l}")
    lab(d)

def lds_wait1(vaddr, off):
    l, d = uid("Lw"), uid("Ld")
    lab(l)
    e(f"ds_read_b32 v244, {vaddr} offset:{off}")
    e("s_waitcnt lgkmcnt(0)")
    e("v_readfirstlane_b32 s55, v244")
    e("s_cmp_eq_u32 s55, 1")
    e(f"s_cbranch_scc1 {d}")
    budget_check()
    e("s_sleep 1")
    e(f"s_branch {l}")
    lab(d)

def lds_set(vaddr, off):
    e(f"ds_write_b32 {vaddr}, {V_ONE} offset:{off}")


def pipe_poll(nload, issue, final, sets, slow_thresh, slow_sleep, pre=None):
    N = len(sets)
    nreg = 4 * nload
    ld = uid("Ld")
    def check(base, mask):
        e(f"s_mov_b64 exec, {mask}")
        regs = [f"v{base+i}" for i in range(nreg)]
        e(f"v_max3_u32 v248, {regs[0]}, {regs[1]}, {regs[2]}")
        rest = regs[3:]
        while len(rest) >= 2:
            e(f"v_max3_u32 v248, v248, {rest[0]}, {rest[1]}"); rest = rest[2:]
        if rest: e(f"v_max_u32 v248, v248, {rest[0]}")
        e("v_cmp_ne_u32 vcc, -1, v248")
        e("s_and_b64 exec, vcc, s[76:77]")
        for i in range(nreg): e(f"v_mov_b32 v{final+i}, v{base+i}")
        e("s_andn2_b64 s[76:77], s[76:77], exec")
        e(f"s_cbranch_scc0 {ld}")
    e("s_mov_b64 s[76:77], -1")
    ls, lf, l1 = uid("Lsl"), uid("Lfa"), uid("L1")
    if pre is not None:
        e("s_mov_b64 s[78:79], -1")
        issue(sets[0])
        pre()
        e(f"s_branch {l1}")
    lab(ls)
    e("s_mov_b64 exec, s[76:77]")
    e("s_mov_b64 s[78:79], s[76:77]")
    issue(sets[0])
    lab(l1)
    e("s_waitcnt vmcnt(0)")
    check(sets[0], "s[78:79]")
    e("s_bcnt1_i32_b64 s55, s[76:77]")
    e(f"s_cmp_le_u32 s55, {slow_thresh}")
    e(f"s_cbranch_scc1 {lf}")
    budget_check()
    if slow_sleep: e(f"s_sleep {slow_sleep}")
    e(f"s_branch {ls}")
    lab(lf)
    for k in range(N - 1):
        e("s_mov_b64 exec, s[76:77]")
        e(f"s_mov_b64 s[{78+2*k}:{79+2*k}], s[76:77]")
        issue(sets[k])
        if P["pgap"]: e(f"s_sleep {P['pgap']}")
    lp = uid("Lp")
    lab(lp)
    for k in range(N):
        kk = (k + N - 1) % N
        e("s_mov_b64 exec, s[76:77]")
        e(f"s_mov_b64 s[{78+2*kk}:{79+2*kk}], s[76:77]")
        issue(sets[kk])
        e(f"s_waitcnt vmcnt({(N-1)*nload})")
        check(sets[k], f"s[{78+2*k}:{79+2*k}]")
    budget_check()
    e(f"s_branch {lp}")
    lab(ld)
    e("s_mov_b64 exec, -1")

def perms_block(src, dst, plist=range(4)):
    for p in plist:
        for jj in range(4):
            a = src + 4 * (2 * p) + jj
            b = src + 4 * (2 * p + 1) + jj
            e(f"v_perm_b32 v{dst + 4*(2*jj) + p}, v{b}, v{a}, {S_SELLO}")
            e(f"v_perm_b32 v{dst + 4*(2*jj+1) + p}, v{b}, v{a}, {S_SELHI}")

hdr = f"""; fused sliding-window GQA decode attention (two branches), one persistent launch of 256 workgroups
; @launch grid=(256,1,1) block=(512,1,1) lds={LDS_BYTES}
.amdgcn_target "amdgcn-amd-amdhsa--gfx950"
.text
.globl {NAME}_kernel
.p2align 8
.type {NAME}_kernel,@function
{NAME}_kernel:"""

e("s_cmp_ge_u32 s2, 256")
e("s_cbranch_scc1 L_end")
if NST: e("s_memrealtime s[70:71]")
e("s_lshr_b32 s4, s2, 7")
e("s_mul_i32 s5, s4, 40")
e("s_add_u32 s6, s0, s5")
e("s_addc_u32 s7, s1, 0")
e("s_load_dwordx8 s[8:15], s[6:7], 0")
e("s_load_dwordx2 s[16:17], s[6:7], 32")
e("s_load_dwordx4 s[20:23], s[0:1], 80")
e("s_load_dwordx2 s[24:25], s[0:1], 96")
e("v_lshrrev_b32 v1, 6, v0")
e("v_and_b32 v0, 63, v0")
e("s_bfe_u32 s26, s2, 0x30004")
e("v_readfirstlane_b32 s3, v1")
e("s_bfe_u32 s27, s2, 0x30001")
e("s_and_b32 s28, s2, 1")
e("s_and_b32 s29, s2, 15")
e("s_lshr_b32 s30, s2, 4")
e("s_lshr_b32 s53, s29, 2")
e("s_and_b32 s54, s29, 3")
e("s_and_b32 s31, s3, 3")
e("s_mov_b32 s48, 0x05040100")
e("s_mov_b32 s49, 0x07060302")
e(f"s_mov_b32 s52, {P['budget']}")
e(f"v_mov_b32 {V_CF}, {L_CF}")
e(f"v_lshrrev_b32 {V_G}, 4, v0")
e(f"v_and_b32 {V_C}, 15, v0")
e(f"v_mov_b32 {V_ONE}, 1")
e(f"v_lshlrev_b32 {V_L16}, 4, v0")
e("s_lshl_b32 s55, s31, 2")
e(f"v_add_u32 v6, s55, {V_CF}")
e("s_waitcnt lgkmcnt(0)")
e("s_mov_b32 s40, s24"); e("s_mov_b32 s41, s25"); e(f"s_mov_b32 s42, {WS_SIZE}"); e("s_mov_b32 s43, 0x20000")
if NST:
    e(f"s_add_u32 s72, s24, {STAMPOFF}")
    e("s_addc_u32 s73, s25, 0")
    e(f"s_mov_b32 s74, {256*NST*8}")
    e("s_mov_b32 s75, 0x20000")
    e(f"s_mul_i32 s68, s2, {NST*8}")
e("s_cmp_lt_u32 s3, 4")
e("s_cbranch_scc1 L_aux")

VB = 64
FB = 192
AC = 16
PB = 48
e("s_mov_b32 s32, s10"); e("s_mov_b32 s33, s11"); e("s_mov_b32 s34, 0x4000000"); e("s_mov_b32 s35, 0x20000")
e("s_mov_b32 s36, s12"); e("s_mov_b32 s37, s13"); e("s_mov_b32 s38, 0x4000000"); e("s_mov_b32 s39, 0x20000")
e("s_lshl_b32 s56, s27, 23")
e("s_lshl_b32 s57, s26, 20")
e("s_add_u32 s56, s56, s57")
e("s_lshl_b32 s57, s28, 17")
e("s_add_u32 s56, s56, s57")
e("s_lshl_b32 s57, s31, 15")
e("s_add_u32 s56, s56, s57")
e(f"s_add_u32 s56, s56, {3072*256}")
e(f"v_lshlrev_b32 v12, 2, {V_G}")
e(f"v_lshlrev_b32 v13, 8, {V_G}")
for ii in range(4):
    e(f"v_add_u32 v14, {ii}, v12")
    e(f"v_xor_b32 v14, v14, {V_C}") if not P["noswz"] else e(f"v_mov_b32 v14, {V_C}")
    e(f"v_lshl_add_u32 v{8+ii}, v14, 4, v13")
PACE = P["pace"]
n_issued = 0
def pre_issue():
    global n_issued
    if n_issued == min(PACE, 8) if PACE else n_issued == 8:
        e("s_barrier")
    pc = PACE if n_issued < P["psw"] else P["pace2"]
    if pc and n_issued >= pc:
        e(f"s_waitcnt vmcnt({pc-1})")
    n_issued += 1
kl_done = False
e("s_mul_i32 s61, s2, 5")
e("s_lshl_b32 s62, s31, 3")
e("s_add_u32 s61, s61, s62")
e("s_lshl_b32 s61, s61, 10")
def rotaddr(n):
    e(f"s_add_u32 s58, s61, {n*1024}")
    e("s_and_b32 s58, s58, 0x7c00")
    e("s_add_u32 s58, s58, s56")
for n in range(32):
    e(f"s_add_u32 m0, s57, {n*1024}")
    rotaddr(n)
    pre_issue()
    e(f"buffer_load_dwordx4 v{8+(n&3)}, {SRD_A}, s58 offen{pol} lds")
for n in range(32):
    rotaddr(n)
    pre_issue()
    pc = PACE if (n_issued - 1) < P["psw"] else P["pace2"]
    if pc and not kl_done and (n_issued - 1) - pc >= 31:
        lds_set("v6", CF_KL)
        kl_done = True
        stamp_if_role(0, 8)
    r = VB + 4 * n
    e(f"buffer_load_dwordx4 v[{r}:{r+3}], {V_L16}, {SRD_B}, s58 offen{pol}")
if P["wolate"] != 3: lds_set("v6", CF_VI)
if not kl_done:
    e("s_waitcnt vmcnt(32)")
    lds_set("v6", CF_KL)
nst_extra = 0
if NST:
    stamp_if_role(0, 9)
if not P["dbg"]: lds_wait1("v6", CF_P)
stamp_if_role(0, 10)
e("s_lshl_b32 s55, s31, 12")
e(f"v_add_u32 v7, s55, {V_L16}")
e(f"v_add_u32 v7, {L_PL}, v7")
for T in range(4):
    e(f"ds_read_b128 v[{PB+4*T}:{PB+4*T+3}], v7 offset:{T*1024}")
for T in range(4):
    src = VB + 32 * T
    if T < 3:
        e(f"s_waitcnt vmcnt({24 - 8*T})")
        if P["wolate"] == 3 and P["wothr"] == 24 - 8*T: lds_set("v6", CF_VI)
        perms_block(src, FB)
    else:
        for p in range(4):
            e(f"s_waitcnt vmcnt({6 - 2*p})")
            if P["wolate"] == 3 and P["wothr"] == 6 - 2*p: lds_set("v6", CF_VI)
            perms_block(src, FB, [p])
    if T == 0: e("s_waitcnt lgkmcnt(0)")
    e("s_nop 1")
    for j in range(8):
        c = "0" if T == 0 else f"v[{AC+4*j}:{AC+4*j+3}]"
        e(f"v_mfma_f32_16x16x32_bf16 v[{AC+4*j}:{AC+4*j+3}], v[{PB+4*T}:{PB+4*T+3}], v[{FB+4*j}:{FB+4*j+3}], {c}")
stamp_if_role(0, 11)
if P["dbg"]: e("s_branch L_end")
e("s_lshl_b32 s55, s31, 11")
e(f"v_add_u32 v7, s55, {V_L16}")
e(f"v_add_u32 v7, {L_OR}, v7")
e("s_mov_b64 exec, 0xffff")
e("s_nop 4")
for j in range(8):
    e(f"ds_write_b128 v7, v[{AC+4*j}:{AC+4*j+3}] offset:{j*256}")
e("s_mov_b64 exec, -1")
e("s_waitcnt lgkmcnt(0)")
e("s_barrier")
e("s_cmp_ge_u32 s31, 2")
e("s_cbranch_scc1 L_end")
e("s_lshl_b32 s55, s31, 10")
e(f"v_add_u32 v7, s55, {V_L16}")
e(f"v_add_u32 v8, {L_OR}, v7")
e(f"v_mov_b32 v9, {L_FW}")
for w in range(4):
    e(f"ds_read_b128 v[{16+4*w}:{19+4*w}], v8 offset:{w*2048}")
    e(f"ds_read_b128 v[{32+4*w}:{35+4*w}], v9 offset:{w*16}")
e("s_lshl_b32 s55, s2, 10")
e(f"s_add_u32 s55, s55, {WS_OP}")
e("v_lshrrev_b32 v7, 1, v7")
e("s_waitcnt lgkmcnt(6)")
for h in range(4): e(f"v_mul_f32 v{48+h}, v{16+h}, v{32+h}")
for w in range(1, 4):
    e(f"s_waitcnt lgkmcnt({6-2*w})")
    for h in range(4): e(f"v_fmac_f32 v{48+h}, v{16+4*w+h}, v{32+4*w+h}")
e("v_cvt_pk_bf16_f32 v48, v48, v49")
e("v_cvt_pk_bf16_f32 v49, v50, v51")
e("v_min_u32 v48, -2, v48")
e("v_min_u32 v49, -2, v49")
e(f"buffer_store_dwordx2 v[48:49], v7, {SRD_WS}, s55 offen sc1")
stamp_if_role(0, 12)
e("s_branch L_end")

lab("L_aux")
e("s_setprio 3")
WQ = 64
FQ = 96
DQ = 128
XF = 16
e("s_mov_b32 s32, s14"); e("s_mov_b32 s33, s15"); e("s_mov_b32 s34, 0x400000"); e("s_mov_b32 s35, 0x20000")
e("s_mov_b32 s36, s16"); e("s_mov_b32 s37, s17"); e("s_mov_b32 s38, 0x400000"); e("s_mov_b32 s39, 0x20000")
e("s_mov_b32 s44, s8"); e("s_mov_b32 s45, s9"); e("s_mov_b32 s46, 8192"); e("s_mov_b32 s47, 0x20000")
e("s_lshl_b32 s56, s28, 8")
e("s_lshl_b32 s57, s31, 6")
e("s_add_u32 s56, s56, s57")
e("s_lshl_b32 s57, s56, 13")
e("s_lshl_b32 s58, s26, 10")
e("s_add_u32 s57, s57, s58")
e("s_lshl_b32 s58, s27, 7")
e("s_add_u32 s57, s57, s58")
e(f"v_lshrrev_b32 v10, 3, {V_C}")
e("v_and_b32 v11, 7, v0")
e(f"v_lshlrev_b32 v8, 16, {V_G}")
e("v_lshl_add_u32 v8, v10, 18, v8")
e("v_lshl_add_u32 v8, v11, 4, v8")
for i in range(8):
    e(f"s_add_u32 s58, s57, {i*8192}")
    e(f"buffer_load_dwordx4 v[{WQ+4*i}:{WQ+4*i+3}], v8, {SRD_A}, s58 offen{wpol}")
e("v_lshlrev_b32 v9, 10, v11")
e(f"v_lshl_add_u32 v9, {V_G}, 4, v9")
e("v_lshl_add_u32 v9, v10, 6, v9")
e("s_lshl_b32 s58, s56, 1")
e(f"buffer_load_dwordx4 v[{XF}:{XF+3}], v9, {SRD_X}, s58 offen")
e("s_lshl_b32 s58, s4, 7")
e("v_mov_b32 v10, 0")
e(f"buffer_load_dwordx2 v[20:21], v10, {SRD_WS}, s58 offen sc1")
e("v_mov_b32 v24, -1"); e("v_mov_b32 v25, -1"); e("v_mov_b32 v26, -1"); e("v_mov_b32 v27, -1")
lz = uid("Lz")
e("s_cmp_lg_u32 s31, 0")
e(f"s_cbranch_scc1 {lz}")
e(f"v_lshl_add_u32 v13, v0, 2, {V_CF}")
e("ds_write_b32 v13, v10")
e("s_waitcnt lgkmcnt(0)")
lab(lz)
e("s_and_b32 s58, s31, 1")
e("s_lshl_b32 s59, s4, 1")
e("s_add_u32 s59, s59, s58")
e("s_lshl_b32 s60, s59, 18")
e("s_lshl_b32 s59, s54, 16")
e("s_add_u32 s60, s60, s59")
e("s_lshl_b32 s59, s26, 2")
e("s_add_u32 s59, s59, s53")
e("s_lshl_b32 s59, s59, 7")
e("s_add_u32 s60, s60, s59")
e("s_lshr_b32 s59, s31, 1")
e("s_lshl_b32 s59, s59, 6")
e("s_add_u32 s60, s60, s59")
e(f"s_add_u32 s60, s60, {WS_RP}")
e(f"v_lshlrev_b32 v12, 12, {V_C}")
e(f"v_lshl_add_u32 v12, {V_G}, 4, v12")
e(f"buffer_store_dwordx4 v[24:27], v12, {SRD_WS}, s60 offen sc1")
e("s_lshl_b32 s58, s2, 10")
e("s_lshl_b32 s59, s31, 8")
e("s_add_u32 s58, s58, s59")
e(f"s_add_u32 s58, s58, {WS_OP}")
e("s_mov_b64 exec, 0xffff")
e(f"buffer_store_dwordx4 v[24:27], {V_L16}, {SRD_WS}, s58 offen sc1")
e("s_mov_b64 exec, -1")
e("s_barrier")
if NST:
    l = uid("Lst")
    e("s_cmp_lg_u32 s31, 0")
    e(f"s_cbranch_scc1 {l}")
    e("v_mov_b32 v250, s70"); e("v_mov_b32 v251, s71"); e("v_mov_b32 v252, 0")
    e("s_mov_b64 exec, 1")
    e("buffer_store_dwordx2 v[250:251], v252, s[72:75], s68 offen")
    e("s_mov_b64 exec, -1")
    e("s_waitcnt vmcnt(3)")
    lab(l)
e("s_waitcnt vmcnt(2)" if not NST else "s_waitcnt vmcnt(3)")
if NST:
    l = uid("Lst")
    e("s_cmp_eq_u32 s31, 0")
    e(f"s_cbranch_scc1 {l}")
    e("s_waitcnt vmcnt(2)")
    lab(l)
stamp_if_role(0, 1)
if P["dbg"] == 1: e("s_branch L_end")
perms_block(WQ, FQ)
e("v_readfirstlane_b32 s50, v20")
e("v_readfirstlane_b32 s51, v21")
for j in range(8):
    e(f"v_mfma_f32_16x16x32_bf16 v[{DQ+4*j}:{DQ+4*j+3}], v[{XF}:{XF+3}], v[{FQ+4*j}:{FQ+4*j+3}], 0")
e("s_add_u32 s50, s50, 1")
e("s_addc_u32 s51, s51, 0")
e("s_lshl_b32 s55, s31, 12")
e(f"s_add_u32 s55, s55, {L_QR}")
e(f"v_lshlrev_b32 v7, 7, {V_G}")
e("v_lshl_add_u32 v7, v11, 4, v7")
e("v_add_u32 v7, s55, v7")
e("s_mov_b32 exec_lo, 0x00ff00ff")
e("s_mov_b32 exec_hi, 0xff00ff00")
e("s_nop 1")
for j in range(8):
    e(f"ds_write_b128 v7, v[{DQ+4*j}:{DQ+4*j+3}] offset:{j*512}")
e("s_mov_b64 exec, -1")
e("s_waitcnt lgkmcnt(0)")
lds_set("v6", CF_QR)
e("s_lshl_b32 s55, s31, 10")
e(f"s_add_u32 s55, s55, {L_QR}")
e("v_lshlrev_b32 v7, 2, v0")
e("v_add_u32 v7, s55, v7")
e("v_and_b32 v8, 3, v0")
e("v_lshlrev_b32 v8, 13, v8")
e("v_lshrrev_b32 v9, 5, v0")
e("v_lshl_add_u32 v8, v9, 15, v8")
e("v_bfe_u32 v9, v0, 2, 3")
e("v_lshl_add_u32 v8, v9, 4, v8")
e("s_lshl_b32 s59, s30, 16")
e("s_lshl_b32 s61, s28, 12")
e("s_add_u32 s59, s59, s61")
e("s_lshl_b32 s61, s27, 9")
e("s_add_u32 s59, s59, s61")
e("s_lshl_b32 s61, s31, 7")
e("s_add_u32 s59, s59, s61")
e(f"s_add_u32 s59, s59, {WS_QP}")
e("v_mov_b32 v66, s50")
e("v_mov_b32 v67, s51")
lds_wait4(CF_QR)
for k in range(8):
    a_, s_ = k >> 1, k & 1
    e(f"ds_read2st64_b32 v[{68+2*k}:{69+2*k}], v7 offset0:{16*a_+s_} offset1:{16*a_+s_+2}")
e("s_waitcnt lgkmcnt(0)")
for k in range(4):
    e(f"v_add_f32 v{68+4*k}, v{68+4*k}, v{70+4*k}")
    e(f"v_add_f32 v{69+4*k}, v{69+4*k}, v{71+4*k}")
e("v_add_f32 v68, v68, v72"); e("v_add_f32 v69, v69, v73")
e("v_add_f32 v76, v76, v80"); e("v_add_f32 v77, v77, v81")
e("v_add_f32 v64, v68, v76"); e("v_add_f32 v65, v69, v77")
e(f"buffer_store_dwordx4 v[64:67], v8, {SRD_WS}, s59 offen sc1")
stamp_if_role(0, 2)
if P["dbg"] == 2: e("s_branch L_end")
e("s_lshl_b32 s58, s30, 16")
e("s_lshl_b32 s59, s27, 13")
e("s_add_u32 s58, s58, s59")
e("s_lshl_b32 s59, s31, 10")
e("s_add_u32 s58, s58, s59")
e(f"s_add_u32 s58, s58, {WS_QP}")
e("s_add_u32 s59, s58, 4096")
e("v_lshrrev_b32 v8, 5, v0")
e("v_lshlrev_b32 v8, 7, v8")
e("v_lshl_add_u32 v8, v11, 4, v8")
e("v_bfe_u32 v9, v0, 3, 2")
e("v_lshl_add_u32 v8, v9, 2, v8")
e("s_lshl_b32 s55, s31, 8")
e(f"s_add_u32 s55, s55, {L_QL}")
e("v_add_u32 v8, s55, v8")
if P["qdelay"]: e(f"s_sleep {P['qdelay']}")
if P["qprobe"]:
    e("v_and_b32 v9, 1, v0")
    e("v_lshlrev_b32 v9, 9, v9")
    e("v_lshrrev_b32 v10, 1, v0")
    e("v_lshl_add_u32 v9, v10, 12, v9")
    e("s_mov_b64 exec, 0xf")
    lp, ld = uid("Lp"), uid("Ld")
    lab(lp)
    e(f"buffer_load_dwordx4 v[68:71], v9, {SRD_WS}, s58 offen offset:496 sc1")
    e("s_waitcnt vmcnt(0)")
    e("v_cmp_ne_u64 vcc, v[70:71], v[66:67]")
    e("s_mov_b64 exec, vcc")
    e(f"s_cbranch_execz {ld}")
    budget_check()
    e(f"s_sleep {P['qsleep']}")
    e(f"s_branch {lp}")
    lab(ld)
    e("s_mov_b64 exec, -1")
lp, ld = uid("Lp"), uid("Ld")
lab(lp)
e(f"buffer_load_dwordx4 v[68:71], {V_L16}, {SRD_WS}, s58 offen sc1")
e(f"buffer_load_dwordx4 v[72:75], {V_L16}, {SRD_WS}, s59 offen sc1")
e("s_waitcnt vmcnt(0)")
e("v_cmp_ne_u64 vcc, v[70:71], v[66:67]")
e("v_cmp_ne_u64 s[56:57], v[74:75], v[66:67]")
e("s_or_b64 exec, vcc, s[56:57]")
e(f"s_cbranch_execz {ld}")
budget_check()
e(f"s_sleep {P['qsleep']}")
e(f"s_branch {lp}")
lab(ld)
e("s_mov_b64 exec, -1")
e("v_add_f32 v68, v68, v72"); e("v_add_f32 v69, v69, v73")
e("v_cvt_pk_bf16_f32 v68, v68, v69")
e("ds_write_b32 v8, v68")
lds_set("v6", CF_QST)
e("s_waitcnt lgkmcnt(0)")
lds_set("v6", CF_QL)
stamp_if_role(0, 3)
if P["dbg"] == 3: e("s_branch L_end")
lgo = uid("Lgo")
e("s_cmp_lg_u32 s31, 0")
e(f"s_cbranch_scc1 {lgo}")
lds_wait4(CF_QST)
e("s_lshl_b32 s58, s30, 7")
e(f"s_add_u32 s58, s58, {WS_FL}")
e("s_lshl_b32 s59, s29, 3")
e("v_mov_b32 v22, s59")
e("s_mov_b64 exec, 1")
e(f"buffer_store_dwordx2 v[66:67], v22, {SRD_WS}, s58 offen sc1")
e("s_mov_b64 exec, -1")
lab(lgo)
e(f"v_and_b32 v8, 3, {V_C}")
e("v_lshlrev_b32 v8, 2, v8")
e(f"v_lshrrev_b32 v9, 2, {V_C}")
e("v_add_u32 v8, v8, v9")
e("v_lshlrev_b32 v8, 8, v8")
e("s_lshl_b32 s55, s31, 15")
e("v_add_u32 v8, s55, v8")
for s in range(4):
    e(f"v_add_u32 v9, {4*s}, {V_G}")
    e(f"v_xor_b32 v9, v9, {V_C}")
    e(f"v_lshl_add_u32 v{28+s}, v9, 4, v8")
e(f"v_and_b32 v9, 3, {V_C}")
e("v_lshlrev_b32 v9, 8, v9")
e(f"v_lshl_add_u32 v9, {V_G}, 4, v9")
e(f"v_add_u32 v9, {L_QL}, v9")
lds_wait4(CF_QL)
stamp_if_role(0, 4)
QF = 32
for s in range(4):
    e(f"ds_read_b128 v[{QF+4*s}:{QF+4*s+3}], v9 offset:{s*64}")
lds_wait1("v6", CF_KL)
stamp_if_role(0, 5)
KF = 64
SC = 128
def kread(t):
    b = KF + 16 * (t & 3)
    for s in range(4):
        e(f"ds_read_b128 v[{b+4*s}:{b+4*s+3}], v{28+s} offset:{t*4096}")
kread(0); kread(1)
for t in range(8):
    if t + 2 < 8:
        kread(t + 2)
        e("s_waitcnt lgkmcnt(8)")
    else:
        e(f"s_waitcnt lgkmcnt({4*(7-t)})")
    b = KF + 16 * (t & 3)
    for s in range(4):
        c = "0" if s == 0 else f"v[{SC+4*t}:{SC+4*t+3}]"
        e(f"v_mfma_f32_16x16x32_bf16 v[{SC+4*t}:{SC+4*t+3}], v[{b+4*s}:{b+4*s+3}], v[{QF+4*s}:{QF+4*s+3}], {c}")
import math
CSC = (128 ** -0.5) * math.log2(math.e)
import struct
e(f"s_mov_b32 s58, 0x{struct.unpack('<I', struct.pack('<f', CSC))[0]:08x}")
e("s_nop 7")
e(f"v_max3_f32 v10, v{SC}, v{SC+1}, v{SC+2}")
e(f"v_max3_f32 v11, v{SC+3}, v{SC+4}, v{SC+5}")
for k in range(6, 30, 4):
    e(f"v_max3_f32 v10, v10, v{SC+k}, v{SC+k+1}")
    e(f"v_max3_f32 v11, v11, v{SC+k+2}, v{SC+k+3}")
e(f"v_max3_f32 v10, v10, v{SC+30}, v{SC+31}")
e("v_max_f32 v10, v10, v11")
def xlane(op, v, t):
    e(f"v_mov_b32 {t}, {v}")
    e("s_nop 1")
    e(f"v_permlane32_swap_b32 {v}, {t}")
    e("s_nop 1")
    e(f"{op} {v}, {v}, {t}")
    e(f"v_mov_b32 {t}, {v}")
    e("s_nop 1")
    e(f"v_permlane16_swap_b32 {v}, {t}")
    e("s_nop 1")
    e(f"{op} {v}, {v}, {t}")
xlane("v_max_f32", "v10", "v11")
e("v_mul_f32 v10, s58, v10")
e("v_sub_f32 v13, 0, v10")
for k in range(32):
    e(f"v_fma_f32 v{SC+k}, v{SC+k}, s58, v13")
for k in range(32):
    e(f"v_exp_f32 v{SC+k}, v{SC+k}")
e("s_nop 0")
e(f"v_add_f32 v11, v{SC}, v{SC+1}")
e(f"v_add_f32 v14, v{SC+2}, v{SC+3}")
for k in range(4, 32, 2):
    e(f"v_add_f32 v11, v11, v{SC+k}")
    e(f"v_add_f32 v14, v14, v{SC+k+1}")
e("v_add_f32 v11, v11, v14")
for k in range(16):
    e(f"v_cvt_pk_bf16_f32 v{64+k}, v{SC+2*k}, v{SC+2*k+1}")
e("s_lshl_b32 s55, s31, 12")
e(f"v_add_u32 v7, s55, {V_L16}")
e(f"v_add_u32 v7, {L_PL}, v7")
for T in range(4):
    e(f"ds_write_b128 v7, v[{64+4*T}:{67+4*T}] offset:{T*1024}")
xlane("v_add_f32", "v11", "v14")
e("s_lshl_b32 s55, s31, 5")
e(f"s_add_u32 s55, s55, {L_SL}")
e("v_lshlrev_b32 v8, 3, v0")
e("v_add_u32 v8, s55, v8")
e("s_mov_b64 exec, 0xf")
e("ds_write_b64 v8, v[10:11]")
e("s_mov_b64 exec, -1")
e("s_waitcnt lgkmcnt(0)")
lds_set("v6", CF_P)
lds_set("v6", CF_SL)
stamp_if_role(0, 6)
if P["dbg"] == 4: e("s_branch L_end")
ls3, ls0, lsd = uid("Ls"), uid("Ls"), uid("Ls")
e("s_cmp_eq_u32 s31, 0")
e(f"s_cbranch_scc1 {ls0}")
e("s_cmp_lg_u32 s31, 3")
e(f"s_cbranch_scc1 {lsd}")
lds_wait4(CF_SL)
e("s_mov_b64 exec, 0xffff")
e("v_lshlrev_b32 v8, 3, v0")
e(f"v_add_u32 v8, {L_SL}, v8")
e("ds_read_b64 v[10:11], v8")
e("s_waitcnt lgkmcnt(0)")
e("v_max_f32_dpp v13, v10, v10 row_ror:4 row_mask:0xf bank_mask:0xf")
e("s_nop 1")
e("v_max_f32_dpp v13, v13, v13 row_ror:8 row_mask:0xf bank_mask:0xf")
e("v_sub_f32 v14, v10, v13")
e("v_exp_f32 v14, v14")
e("s_nop 0")
e("v_mul_f32 v14, v14, v11")
e("s_nop 1")
e("v_add_f32_dpp v15, v14, v14 row_ror:4 row_mask:0xf bank_mask:0xf")
e("s_nop 1")
e("v_add_f32_dpp v15, v15, v15 row_ror:8 row_mask:0xf bank_mask:0xf")
e("v_mov_b32 v20, v13")
e("v_mov_b32 v21, v15")
e("v_mov_b32 v22, s50")
e("v_mov_b32 v23, s51")
e("v_and_b32 v9, 3, v0")
e("v_lshlrev_b32 v9, 4, v9")
e("s_lshl_b32 s58, s2, 7")
e(f"s_add_u32 s58, s58, {WS_ST}")
e("s_xor_b32 s59, s58, 128")
e("s_mov_b64 exec, 0xf")
e(f"buffer_store_dwordx4 v[20:23], v9, {SRD_WS}, s58 offen sc1")
e("s_mov_b64 exec, 0xffff")
lp, ld = uid("Lp"), uid("Ld")
lab(lp)
e(f"buffer_load_dwordx4 v[24:27], v9, {SRD_WS}, s59 offen sc1")
e("s_waitcnt vmcnt(0)")
e("v_cmp_ne_u64 vcc, v[26:27], v[22:23]")
e(f"s_cbranch_vccz {ld}")
budget_check()
e("s_sleep 2")
e(f"s_branch {lp}")
lab(ld)
e("v_max_f32 v26, v13, v24")
e("v_sub_f32 v27, v13, v26")
e("v_sub_f32 v20, v24, v26")
e("v_sub_f32 v21, v10, v26")
e("v_exp_f32 v27, v27")
e("v_exp_f32 v20, v20")
e("v_exp_f32 v21, v21")
e("s_nop 0")
e("v_mul_f32 v27, v27, v15")
e("v_fmac_f32 v27, v20, v25")
e("v_rcp_f32 v27, v27")
e("s_nop 0")
e("v_mul_f32 v21, v21, v27")
e("v_lshlrev_b32 v8, 2, v0")
e(f"v_add_u32 v8, {L_FW}, v8")
e("ds_write_b32 v8, v21")
e("s_mov_b64 exec, -1")
e("s_waitcnt lgkmcnt(0)")
stamp(7)
e(f"s_branch {lsd}")
lab(ls0)
e("s_lshl_b32 s58, s4, 10")
e(f"s_add_u32 s58, s58, {WS_FL}")
e("v_mov_b32 v20, s50")
e("v_mov_b32 v21, s51")
lp, ld = uid("Lp"), uid("Ld")
lab(lp)
e(f"buffer_load_dwordx4 v[24:27], {V_L16}, {SRD_WS}, s58 offen sc1")
e("s_waitcnt vmcnt(0)")
e("v_cmp_ne_u64 vcc, v[24:25], v[20:21]")
e("v_cmp_ne_u64 s[56:57], v[26:27], v[20:21]")
e("s_or_b64 vcc, vcc, s[56:57]")
e(f"s_cbranch_vccz {ld}")
budget_check()
e("s_sleep 2")
e(f"s_branch {lp}")
lab(ld)
lab(lsd)
if P["wolate"] in (1, 3):
    lds_wait1("v6", CF_VI)
WO = 64; FO = 96; DO = 128
e("s_lshl_b32 s56, s26, 9")
e("s_and_b32 s57, s31, 1")
e("s_lshl_b32 s57, s57, 6")
e("s_add_u32 s56, s56, s57")
e("s_lshl_b32 s57, s53, 1")
e("s_add_u32 s56, s56, s57")
e("s_lshr_b32 s57, s31, 1")
e("s_add_u32 s56, s56, s57")
e("s_lshl_b32 s56, s56, 10")
e("s_lshl_b32 s57, s54, 8")
e("s_add_u32 s56, s56, s57")
e(f"v_lshlrev_b32 v8, 14, {V_G}")
e(f"v_lshl_add_u32 v8, {V_C}, 4, v8")
def wo_loads():
    for i in range(8):
        dd, h = i >> 2, i & 3
        e(f"s_add_u32 s57, s56, {(h*128 + 8*dd)*1024}")
        e(f"buffer_load_dwordx4 v[{WO+4*i}:{WO+4*i+3}], v8, {SRD_B}, s57 offen{wpol}")
if P["wolate"] != 2: wo_loads()
e("v_and_b32 v9, 7, v0")
e("v_lshlrev_b32 v9, 11, v9")
e(f"v_lshrrev_b32 v10, 3, {V_C}")
e("v_lshl_add_u32 v9, v10, 10, v9")
e(f"v_lshl_add_u32 v9, {V_G}, 4, v9")
e("s_lshl_b32 s58, s30, 14")
e("s_lshl_b32 s59, s53, 8")
e("s_add_u32 s58, s58, s59")
e("s_lshl_b32 s59, s31, 6")
e("s_add_u32 s58, s58, s59")
e(f"s_add_u32 s58, s58, {WS_OP}")
if P["dbg"] == 5:
    e("s_waitcnt vmcnt(0)")
    stamp_if_role(0, 13)
    e("s_branch L_end")
e("s_barrier")
if P["wolate"] == 2: wo_loads()
stamp_if_role(0, 13)
def wo_perms():
    e("s_waitcnt vmcnt(1)")
    perms_block(WO, FO)
    stamp_if_role(0, 14)
if P["pipe"]:
    pipe_poll(1, lambda b: e(f"buffer_load_dwordx4 v[{b}:{b+3}], v9, {SRD_WS}, s58 offen sc1"),
              16, [32 + 4*k for k in range(P["pipe"])], P["othr"], P["osleep"], pre=wo_perms)
else:
    e("s_waitcnt vmcnt(0)")
    perms_block(WO, FO)
    lp, ld = uid("Lp"), uid("Ld")
    lab(lp)
    e(f"buffer_load_dwordx4 v[16:19], v9, {SRD_WS}, s58 offen sc1")
    e("s_waitcnt vmcnt(0)")
    e("v_max3_u32 v24, v16, v17, v18")
    e("v_max_u32 v24, v24, v19")
    e("v_cmp_eq_u32 vcc, -1, v24")
    e("s_mov_b64 exec, vcc")
    e(f"s_cbranch_execz {ld}")
    budget_check()
    if P["osleep"]: e(f"s_sleep {P['osleep']}")
    e(f"s_branch {lp}")
    lab(ld)
    e("s_mov_b64 exec, -1")
stamp_if_role(0, 15)
e("s_nop 3")
for j in range(8):
    e(f"v_mfma_f32_16x16x32_bf16 v[{DO+4*j}:{DO+4*j+3}], v[16:19], v[{FO+4*j}:{FO+4*j+3}], 0")
e("s_lshl_b32 s55, s31, 13")
e(f"v_add_u32 v7, s55, {V_L16}")
e("s_lshr_b32 s55, s31, 1")
e("s_lshl_b32 s55, s55, 12")
e("s_and_b32 s56, s31, 1")
e("s_lshl_b32 s56, s56, 8")
e("s_add_u32 s55, s55, s56")
e(f"v_lshlrev_b32 v8, 10, {V_G}")
e(f"v_lshl_add_u32 v8, {V_C}, 4, v8")
e("v_add_u32 v8, s55, v8")
for j in range(8):
    e(f"ds_write_b128 v7, v[{DO+4*j}:{DO+4*j+3}] offset:{j*1024}")
e("s_waitcnt lgkmcnt(0)")
e("s_barrier")
for k in range(8):
    a, sp = k >> 1, k & 1
    e(f"ds_read_b128 v[{64+4*k}:{67+4*k}], v8 offset:{a*8192 + sp*512}")
e("s_waitcnt lgkmcnt(6)")
for r in range(4): e(f"v_add_f32 v{64+r}, v{64+r}, v{68+r}")
e("s_waitcnt lgkmcnt(4)")
for r in range(4): e(f"v_add_f32 v{72+r}, v{72+r}, v{76+r}")
e("s_waitcnt lgkmcnt(2)")
for r in range(4): e(f"v_add_f32 v{80+r}, v{80+r}, v{84+r}")
for r in range(4): e(f"v_add_f32 v{64+r}, v{64+r}, v{72+r}")
e("s_waitcnt lgkmcnt(0)")
for r in range(4): e(f"v_add_f32 v{88+r}, v{88+r}, v{92+r}")
for r in range(4): e(f"v_add_f32 v{80+r}, v{80+r}, v{88+r}")
for r in range(4): e(f"v_add_f32 v{64+r}, v{64+r}, v{80+r}")
for r in range(4): e(f"v_min_u32 v{64+r}, -2, v{64+r}")
e(f"buffer_store_dwordx4 v[64:67], v12, {SRD_WS}, s60 offen sc1")
e("s_cmp_lg_u32 s31, 0")
e("s_cbranch_scc1 L_end")
stamp(16)
e("s_and_b32 s55, s2, 1")
e("s_lshl_b32 s56, s4, 1")
e("s_add_u32 s56, s56, s55")
e("s_lshl_b32 s56, s56, 18")
e("s_bfe_u32 s57, s2, 0x60001")
e("s_lshl_b32 s58, s57, 12")
e("s_add_u32 s56, s56, s58")
e(f"s_add_u32 s56, s56, {WS_RP}")
e("s_mov_b32 s44, s20"); e("s_mov_b32 s45, s21"); e("s_mov_b32 s46, 16384"); e("s_mov_b32 s47, 0x20000")
e("s_lshl_b32 s58, s55, 13")
e("s_lshl_b32 s59, s4, 10")
e("s_add_u32 s58, s58, s59")
e("s_lshl_b32 s59, s57, 4")
e("s_add_u32 s58, s58, s59")
e("v_lshlrev_b32 v8, 1, v0")
if P["pipe"]:
    def iss(b):
        for t in range(4):
            e(f"buffer_load_dwordx4 v[{b+4*t}:{b+4*t+3}], {V_L16}, {SRD_WS}, s56 offen offset:{t*1024} sc1")
    pipe_poll(4, iss, 16, [160 + 16*k for k in range(P["pipe"])], P["rthr"], P["osleep"])
else:
    lp, ld = uid("Lp"), uid("Ld")
    lab(lp)
    for t in range(4):
        e(f"buffer_load_dwordx4 v[{16+4*t}:{19+4*t}], {V_L16}, {SRD_WS}, s56 offen offset:{t*1024} sc1")
    e("s_waitcnt vmcnt(0)")
    e("v_max3_u32 v32, v16, v17, v18")
    e("v_max3_u32 v33, v19, v20, v21")
    e("v_max3_u32 v32, v32, v22, v23")
    e("v_max3_u32 v33, v33, v24, v25")
    e("v_max3_u32 v32, v32, v26, v27")
    e("v_max3_u32 v33, v33, v28, v29")
    e("v_max3_u32 v32, v32, v30, v31")
    e("v_max_u32 v32, v32, v33")
    e("v_cmp_eq_u32 vcc, -1, v32")
    e("s_mov_b64 exec, vcc")
    e(f"s_cbranch_execz {ld}")
    budget_check()
    if P["osleep"]: e(f"s_sleep {P['osleep']}")
    e(f"s_branch {lp}")
    lab(ld)
    e("s_mov_b64 exec, -1")
stamp(17)
for r in range(4): e(f"v_add_f32 v{16+r}, v{16+r}, v{20+r}")
for r in range(4): e(f"v_add_f32 v{24+r}, v{24+r}, v{28+r}")
for r in range(4): e(f"v_add_f32 v{16+r}, v{16+r}, v{24+r}")
e("s_nop 1")
for r in range(4): e(f"v_add_f32_dpp v{20+r}, v{16+r}, v{16+r} row_ror:8 row_mask:0xf bank_mask:0xf")
for r in range(4): e(f"v_mov_b32 v{24+r}, v{20+r}")
e("s_nop 1")
for r in range(4): e(f"v_permlane32_swap_b32 v{20+r}, v{24+r}")
e("s_nop 1")
for r in range(4): e(f"v_add_f32 v{20+r}, v{20+r}, v{24+r}")
for r in range(4): e(f"v_mov_b32 v{24+r}, v{20+r}")
e("s_nop 1")
for r in range(4): e(f"v_permlane16_swap_b32 v{20+r}, v{24+r}")
e("s_nop 1")
for r in range(4): e(f"v_add_f32 v{20+r}, v{20+r}, v{24+r}")
for r in range(4): e(f"v_cvt_pk_bf16_f32 v{20+r}, v{20+r}, v{20+r}")
e("s_mov_b64 exec, 0xff")
e("s_add_u32 s59, s58, 4096")
for r in range(4):
    e(f"buffer_store_short v{20+r}, v8, {SRD_X}, {'s58' if r < 2 else 's59'} offen offset:{(r&1)*2048}")
e("s_and_b32 s55, s2, 127")
e("s_cmp_lg_u32 s55, 0")
lfin = uid("Lf")
e(f"s_cbranch_scc1 {lfin}")
e("s_mov_b64 exec, 1")
e("v_mov_b32 v24, s50")
e("v_mov_b32 v25, s51")
e("v_mov_b32 v26, 0")
e("s_lshl_b32 s58, s4, 7")
e(f"buffer_store_dwordx2 v[24:25], v26, {SRD_WS}, s58 offen sc1")
lab(lfin)
if NST:
    e("s_mov_b64 exec, -1")
    e("s_waitcnt vmcnt(0)")
    stamp(18)
lab("L_end")
e("s_endpgm")

ftr = f""".section .rodata,"a"
.p2align 6
.amdhsa_kernel {NAME}_kernel
  .amdhsa_next_free_vgpr 256
  .amdhsa_next_free_sgpr 102
  .amdhsa_accum_offset 256
  .amdhsa_group_segment_fixed_size 0
  .amdhsa_kernarg_size 104
  .amdhsa_user_sgpr_count 2
  .amdhsa_user_sgpr_kernarg_segment_ptr 1
  .amdhsa_system_sgpr_workgroup_id_x 1
.end_amdhsa_kernel
"""
open(out, "w").write(hdr + "\n" + "\n".join(L) + "\n" + ftr)
```

```python
import sys

out = sys.argv[1]
P = dict(dspan=0, wothr=4, pipe=4, othr=24, rthr=32, pgap=2, psw=64, pace2=0, dbg=0, noswz=0, qprobe=0, smask=0, qdelay=32, osleep=2, qsleep=12, pace=8, stamps=0, pol="nt", wpol="nt", budget=1 << 22, wolate=2)
for a in sys.argv[2:]:
    k, v = a.split("=")
    P[k] = v if k in ("pol", "wpol") else int(v, 0)
NAME = "concat_heads__sliding_block_cached__sliding_block_cached__decode"
pol = "".join(" " + x for x in P["pol"].split("+") if x != "none")
wpol = "".join(" " + x for x in P["wpol"].split("+") if x != "none")
NST = P["stamps"]
STAMPOFF = 200 << 20

WS_E = 0x0
WS_FL = 0x1000
WS_ST = 0x2000
WS_OP = 0x10000
WS_QP = 0x100000
WS_RP = 0x200000
WS_SIZE = 0x300000

L_K = 0
L_RR = 0
L_QR = 131072
L_PL = 131072
L_OR = 147456
L_QL = 155648
L_SL = 156672
L_FW = 156800
L_CF = 156928
CF_QR, CF_QST, CF_QL, CF_KL, CF_VI, CF_P, CF_SL, CF_GO = [16 * i for i in range(8)]
LDS_BYTES = 157184 + 128

L = []
def e(s): L.append("    " + s)
def lab(s): L.append(s + ":")
def cmt(s): L.append("    ; " + s)
_uid = [0]
def uid(p="L"):
    _uid[0] += 1
    return f"{p}_{_uid[0]}"

S_WG, S_WAVE, S_BR = "s2", "s3", "s4"
S_HKV, S_B, S_SPLIT, S_C, S_GRP, S_ROLE = "s26", "s27", "s28", "s29", "s30", "s31"
SRD_A, SRD_B, SRD_WS, SRD_X = "s[32:35]", "s[36:39]", "s[40:43]", "s[44:47]"
S_SELLO, S_SELHI = "s48", "s49"
S_TAG0, S_TAG1 = "s50", "s51"
S_BUD = "s52"
S_HI, S_LO = "s53", "s54"

V_LANE = "v0"
V_CF = "v1"
V_G = "v2"
V_C = "v3"
V_ONE = "v4"
V_L16 = "v5"

def stamp(idx):
    if not NST: return
    if P["smask"] and not (P["smask"] >> idx) & 1: return
    e("s_memrealtime s[64:65]")
    e("s_waitcnt lgkmcnt(0)")
    e("v_mov_b32 v250, s64")
    e("v_mov_b32 v251, s65")
    e(f"v_mov_b32 v252, {idx*8}")
    e("s_mov_b64 s[66:67], exec")
    e("s_mov_b64 exec, 1")
    e("buffer_store_dwordx2 v[250:251], v252, s[72:75], s68 offen")
    e("s_mov_b64 exec, s[66:67]")

def stamp_if_role(role, idx):
    if not NST: return
    if P["smask"] and not (P["smask"] >> idx) & 1: return
    l = uid("Lst")
    e(f"s_cmp_lg_u32 {S_ROLE}, {role}")
    e(f"s_cbranch_scc1 {l}")
    stamp(idx)
    lab(l)

def budget_check():
    e(f"s_sub_u32 {S_BUD}, {S_BUD}, 1")
    e("s_cbranch_scc1 L_end")

def lds_wait4(off, t="v[244:247]"):
    l, d = uid("Lw"), uid("Ld")
    lab(l)
    e(f"ds_read_b128 v[244:247], {V_CF} offset:{off}")
    e("s_waitcnt lgkmcnt(0)")
    e("v_and_b32 v244, v244, v245")
    e("v_and_b32 v246, v246, v247")
    e("v_and_b32 v244, v244, v246")
    e("s_nop 0")
    e("v_readfirstlane_b32 s55, v244")
    e("s_cmp_eq_u32 s55, 1")
    e(f"s_cbranch_scc1 {d}")
    budget_check()
    e("s_sleep 1")
    e(f"s_branch {l}")
    lab(d)

def lds_wait1(vaddr, off):
    l, d = uid("Lw"), uid("Ld")
    lab(l)
    e(f"ds_read_b32 v244, {vaddr} offset:{off}")
    e("s_waitcnt lgkmcnt(0)")
    e("v_readfirstlane_b32 s55, v244")
    e("s_cmp_eq_u32 s55, 1")
    e(f"s_cbranch_scc1 {d}")
    budget_check()
    e("s_sleep 1")
    e(f"s_branch {l}")
    lab(d)

def lds_set(vaddr, off):
    e(f"ds_write_b32 {vaddr}, {V_ONE} offset:{off}")


def pipe_poll(nload, issue, final, sets, slow_thresh, slow_sleep, pre=None):
    N = len(sets)
    nreg = 4 * nload
    ld = uid("Ld")
    def check(base, mask):
        e(f"s_mov_b64 exec, {mask}")
        regs = [f"v{base+i}" for i in range(nreg)]
        e(f"v_max3_u32 v248, {regs[0]}, {regs[1]}, {regs[2]}")
        rest = regs[3:]
        while len(rest) >= 2:
            e(f"v_max3_u32 v248, v248, {rest[0]}, {rest[1]}"); rest = rest[2:]
        if rest: e(f"v_max_u32 v248, v248, {rest[0]}")
        e("v_cmp_ne_u32 vcc, -1, v248")
        e("s_and_b64 exec, vcc, s[76:77]")
        for i in range(nreg): e(f"v_mov_b32 v{final+i}, v{base+i}")
        e("s_andn2_b64 s[76:77], s[76:77], exec")
        e(f"s_cbranch_scc0 {ld}")
    e("s_mov_b64 s[76:77], -1")
    ls, lf, l1 = uid("Lsl"), uid("Lfa"), uid("L1")
    if pre is not None:
        e("s_mov_b64 s[78:79], -1")
        issue(sets[0])
        pre()
        e(f"s_branch {l1}")
    lab(ls)
    e("s_mov_b64 exec, s[76:77]")
    e("s_mov_b64 s[78:79], s[76:77]")
    issue(sets[0])
    lab(l1)
    e("s_waitcnt vmcnt(0)")
    check(sets[0], "s[78:79]")
    e("s_bcnt1_i32_b64 s55, s[76:77]")
    e(f"s_cmp_le_u32 s55, {slow_thresh}")
    e(f"s_cbranch_scc1 {lf}")
    budget_check()
    if slow_sleep: e(f"s_sleep {slow_sleep}")
    e(f"s_branch {ls}")
    lab(lf)
    for k in range(N - 1):
        e("s_mov_b64 exec, s[76:77]")
        e(f"s_mov_b64 s[{78+2*k}:{79+2*k}], s[76:77]")
        issue(sets[k])
        if P["pgap"]: e(f"s_sleep {P['pgap']}")
    lp = uid("Lp")
    lab(lp)
    for k in range(N):
        kk = (k + N - 1) % N
        e("s_mov_b64 exec, s[76:77]")
        e(f"s_mov_b64 s[{78+2*kk}:{79+2*kk}], s[76:77]")
        issue(sets[kk])
        e(f"s_waitcnt vmcnt({(N-1)*nload})")
        check(sets[k], f"s[{78+2*k}:{79+2*k}]")
    budget_check()
    e(f"s_branch {lp}")
    lab(ld)
    e("s_mov_b64 exec, -1")

def perms_block(src, dst, plist=range(4)):
    for p in plist:
        for jj in range(4):
            a = src + 4 * (2 * p) + jj
            b = src + 4 * (2 * p + 1) + jj
            e(f"v_perm_b32 v{dst + 4*(2*jj) + p}, v{b}, v{a}, {S_SELLO}")
            e(f"v_perm_b32 v{dst + 4*(2*jj+1) + p}, v{b}, v{a}, {S_SELHI}")

hdr = f"""; fused sliding-window GQA decode attention (two branches), one persistent launch of 256 workgroups
; @launch grid=(256,1,1) block=(512,1,1) lds={LDS_BYTES}
.amdgcn_target "amdgcn-amd-amdhsa--gfx950"
.text
.globl {NAME}_kernel
.p2align 8
.type {NAME}_kernel,@function
{NAME}_kernel:"""

e("s_cmp_ge_u32 s2, 256")
e("s_cbranch_scc1 L_end")
if NST or P["dspan"]: e("s_memrealtime s[70:71]")
e("s_lshr_b32 s4, s2, 7")
e("s_mul_i32 s5, s4, 40")
e("s_add_u32 s6, s0, s5")
e("s_addc_u32 s7, s1, 0")
e("s_load_dwordx8 s[8:15], s[6:7], 0")
e("s_load_dwordx2 s[16:17], s[6:7], 32")
e("s_load_dwordx4 s[20:23], s[0:1], 80")
e("s_load_dwordx2 s[24:25], s[0:1], 96")
e("v_lshrrev_b32 v1, 6, v0")
e("v_and_b32 v0, 63, v0")
e("s_bfe_u32 s26, s2, 0x30004")
e("v_readfirstlane_b32 s3, v1")
e("s_bfe_u32 s27, s2, 0x30001")
e("s_and_b32 s28, s2, 1")
e("s_and_b32 s29, s2, 15")
e("s_lshr_b32 s30, s2, 4")
e("s_lshr_b32 s53, s29, 2")
e("s_and_b32 s54, s29, 3")
e("s_and_b32 s31, s3, 3")
e("s_mov_b32 s48, 0x05040100")
e("s_mov_b32 s49, 0x07060302")
e(f"s_mov_b32 s52, {P['budget']}")
e(f"v_mov_b32 {V_CF}, {L_CF}")
e(f"v_lshrrev_b32 {V_G}, 4, v0")
e(f"v_and_b32 {V_C}, 15, v0")
e(f"v_mov_b32 {V_ONE}, 1")
e(f"v_lshlrev_b32 {V_L16}, 4, v0")
e("s_lshl_b32 s55, s31, 2")
e(f"v_add_u32 v6, s55, {V_CF}")
e("s_waitcnt lgkmcnt(0)")
e("s_mov_b32 s40, s24"); e("s_mov_b32 s41, s25"); e(f"s_mov_b32 s42, {WS_SIZE}"); e("s_mov_b32 s43, 0x20000")
if NST:
    e(f"s_add_u32 s72, s24, {STAMPOFF}")
    e("s_addc_u32 s73, s25, 0")
    e(f"s_mov_b32 s74, {256*NST*8}")
    e("s_mov_b32 s75, 0x20000")
    e(f"s_mul_i32 s68, s2, {NST*8}")
e("s_cmp_lt_u32 s3, 4")
e("s_cbranch_scc1 L_aux")

VB = 64
FB = 192
AC = 16
PB = 48
e("s_mov_b32 s32, s10"); e("s_mov_b32 s33, s11"); e("s_mov_b32 s34, 0x4000000"); e("s_mov_b32 s35, 0x20000")
e("s_mov_b32 s36, s12"); e("s_mov_b32 s37, s13"); e("s_mov_b32 s38, 0x4000000"); e("s_mov_b32 s39, 0x20000")
e("s_lshl_b32 s56, s27, 23")
e("s_lshl_b32 s57, s26, 20")
e("s_add_u32 s56, s56, s57")
e("s_lshl_b32 s57, s28, 17")
e("s_add_u32 s56, s56, s57")
e("s_lshl_b32 s57, s31, 15")
e("s_add_u32 s56, s56, s57")
e(f"s_add_u32 s56, s56, {3072*256}")
e(f"v_lshlrev_b32 v12, 2, {V_G}")
e(f"v_lshlrev_b32 v13, 8, {V_G}")
for ii in range(4):
    e(f"v_add_u32 v14, {ii}, v12")
    e(f"v_xor_b32 v14, v14, {V_C}") if not P["noswz"] else e(f"v_mov_b32 v14, {V_C}")
    e(f"v_lshl_add_u32 v{8+ii}, v14, 4, v13")
PACE = P["pace"]
n_issued = 0
def pre_issue():
    global n_issued
    if n_issued == min(PACE, 8) if PACE else n_issued == 8:
        e("s_barrier")
    pc = PACE if n_issued < P["psw"] else P["pace2"]
    if pc and n_issued >= pc:
        e(f"s_waitcnt vmcnt({pc-1})")
    n_issued += 1
kl_done = False
e("s_mul_i32 s61, s2, 5")
e("s_lshl_b32 s62, s31, 3")
e("s_add_u32 s61, s61, s62")
e("s_lshl_b32 s61, s61, 10")
def rotaddr(n):
    e(f"s_add_u32 s58, s61, {n*1024}")
    e("s_and_b32 s58, s58, 0x7c00")
    e("s_add_u32 s58, s58, s56")
for n in range(32):
    e(f"s_add_u32 m0, s57, {n*1024}")
    rotaddr(n)
    pre_issue()
    e(f"buffer_load_dwordx4 v{8+(n&3)}, {SRD_A}, s58 offen{pol} lds")
for n in range(32):
    rotaddr(n)
    pre_issue()
    pc = PACE if (n_issued - 1) < P["psw"] else P["pace2"]
    if pc and not kl_done and (n_issued - 1) - pc >= 31:
        lds_set("v6", CF_KL)
        kl_done = True
        stamp_if_role(0, 8)
    r = VB + 4 * n
    e(f"buffer_load_dwordx4 v[{r}:{r+3}], {V_L16}, {SRD_B}, s58 offen{pol}")
if P["wolate"] != 3: lds_set("v6", CF_VI)
if not kl_done:
    e("s_waitcnt vmcnt(32)")
    lds_set("v6", CF_KL)
nst_extra = 0
if NST:
    stamp_if_role(0, 9)
if not P["dbg"]: lds_wait1("v6", CF_P)
stamp_if_role(0, 10)
e("s_lshl_b32 s55, s31, 12")
e(f"v_add_u32 v7, s55, {V_L16}")
e(f"v_add_u32 v7, {L_PL}, v7")
for T in range(4):
    e(f"ds_read_b128 v[{PB+4*T}:{PB+4*T+3}], v7 offset:{T*1024}")
for T in range(4):
    src = VB + 32 * T
    if T < 3:
        e(f"s_waitcnt vmcnt({24 - 8*T})")
        if P["wolate"] == 3 and P["wothr"] == 24 - 8*T: lds_set("v6", CF_VI)
        perms_block(src, FB)
    else:
        for p in range(4):
            e(f"s_waitcnt vmcnt({6 - 2*p})")
            if P["wolate"] == 3 and P["wothr"] == 6 - 2*p: lds_set("v6", CF_VI)
            perms_block(src, FB, [p])
    if T == 0: e("s_waitcnt lgkmcnt(0)")
    e("s_nop 1")
    for j in range(8):
        c = "0" if T == 0 else f"v[{AC+4*j}:{AC+4*j+3}]"
        e(f"v_mfma_f32_16x16x32_bf16 v[{AC+4*j}:{AC+4*j+3}], v[{PB+4*T}:{PB+4*T+3}], v[{FB+4*j}:{FB+4*j+3}], {c}")
stamp_if_role(0, 11)
if P["dbg"]: e("s_branch L_end")
e("s_lshl_b32 s55, s31, 11")
e(f"v_add_u32 v7, s55, {V_L16}")
e(f"v_add_u32 v7, {L_OR}, v7")
e("s_mov_b64 exec, 0xffff")
e("s_nop 4")
for j in range(8):
    e(f"ds_write_b128 v7, v[{AC+4*j}:{AC+4*j+3}] offset:{j*256}")
e("s_mov_b64 exec, -1")
e("s_waitcnt lgkmcnt(0)")
e("s_barrier")
e("s_cmp_ge_u32 s31, 2")
e("s_cbranch_scc1 L_end")
e("s_lshl_b32 s55, s31, 10")
e(f"v_add_u32 v7, s55, {V_L16}")
e(f"v_add_u32 v8, {L_OR}, v7")
e(f"v_mov_b32 v9, {L_FW}")
for w in range(4):
    e(f"ds_read_b128 v[{16+4*w}:{19+4*w}], v8 offset:{w*2048}")
    e(f"ds_read_b128 v[{32+4*w}:{35+4*w}], v9 offset:{w*16}")
e("s_lshl_b32 s55, s2, 10")
e(f"s_add_u32 s55, s55, {WS_OP}")
e("v_lshrrev_b32 v7, 1, v7")
e("s_waitcnt lgkmcnt(6)")
for h in range(4): e(f"v_mul_f32 v{48+h}, v{16+h}, v{32+h}")
for w in range(1, 4):
    e(f"s_waitcnt lgkmcnt({6-2*w})")
    for h in range(4): e(f"v_fmac_f32 v{48+h}, v{16+4*w+h}, v{32+4*w+h}")
e("v_cvt_pk_bf16_f32 v48, v48, v49")
e("v_cvt_pk_bf16_f32 v49, v50, v51")
e("v_min_u32 v48, -2, v48")
e("v_min_u32 v49, -2, v49")
e(f"buffer_store_dwordx2 v[48:49], v7, {SRD_WS}, s55 offen sc1")
stamp_if_role(0, 12)
e("s_branch L_end")

lab("L_aux")
e("s_setprio 3")
WQ = 64
FQ = 96
DQ = 128
XF = 16
e("s_mov_b32 s32, s14"); e("s_mov_b32 s33, s15"); e("s_mov_b32 s34, 0x400000"); e("s_mov_b32 s35, 0x20000")
e("s_mov_b32 s36, s16"); e("s_mov_b32 s37, s17"); e("s_mov_b32 s38, 0x400000"); e("s_mov_b32 s39, 0x20000")
e("s_mov_b32 s44, s8"); e("s_mov_b32 s45, s9"); e("s_mov_b32 s46, 8192"); e("s_mov_b32 s47, 0x20000")
e("s_lshl_b32 s56, s28, 8")
e("s_lshl_b32 s57, s31, 6")
e("s_add_u32 s56, s56, s57")
e("s_lshl_b32 s57, s56, 13")
e("s_lshl_b32 s58, s26, 10")
e("s_add_u32 s57, s57, s58")
e("s_lshl_b32 s58, s27, 7")
e("s_add_u32 s57, s57, s58")
e(f"v_lshrrev_b32 v10, 3, {V_C}")
e("v_and_b32 v11, 7, v0")
e(f"v_lshlrev_b32 v8, 16, {V_G}")
e("v_lshl_add_u32 v8, v10, 18, v8")
e("v_lshl_add_u32 v8, v11, 4, v8")
for i in range(8):
    e(f"s_add_u32 s58, s57, {i*8192}")
    e(f"buffer_load_dwordx4 v[{WQ+4*i}:{WQ+4*i+3}], v8, {SRD_A}, s58 offen{wpol}")
e("v_lshlrev_b32 v9, 10, v11")
e(f"v_lshl_add_u32 v9, {V_G}, 4, v9")
e("v_lshl_add_u32 v9, v10, 6, v9")
e("s_lshl_b32 s58, s56, 1")
e(f"buffer_load_dwordx4 v[{XF}:{XF+3}], v9, {SRD_X}, s58 offen")
e("s_lshl_b32 s58, s4, 7")
e("v_mov_b32 v10, 0")
e(f"buffer_load_dwordx2 v[20:21], v10, {SRD_WS}, s58 offen sc1")
e("v_mov_b32 v24, -1"); e("v_mov_b32 v25, -1"); e("v_mov_b32 v26, -1"); e("v_mov_b32 v27, -1")
lz = uid("Lz")
e("s_cmp_lg_u32 s31, 0")
e(f"s_cbranch_scc1 {lz}")
e(f"v_lshl_add_u32 v13, v0, 2, {V_CF}")
e("ds_write_b32 v13, v10")
e("s_waitcnt lgkmcnt(0)")
lab(lz)
e("s_and_b32 s58, s31, 1")
e("s_lshl_b32 s59, s4, 1")
e("s_add_u32 s59, s59, s58")
e("s_lshl_b32 s60, s59, 18")
e("s_lshl_b32 s59, s54, 16")
e("s_add_u32 s60, s60, s59")
e("s_lshl_b32 s59, s26, 2")
e("s_add_u32 s59, s59, s53")
e("s_lshl_b32 s59, s59, 7")
e("s_add_u32 s60, s60, s59")
e("s_lshr_b32 s59, s31, 1")
e("s_lshl_b32 s59, s59, 6")
e("s_add_u32 s60, s60, s59")
e(f"s_add_u32 s60, s60, {WS_RP}")
e(f"v_lshlrev_b32 v12, 12, {V_C}")
e(f"v_lshl_add_u32 v12, {V_G}, 4, v12")
e(f"buffer_store_dwordx4 v[24:27], v12, {SRD_WS}, s60 offen sc1")
e("s_lshl_b32 s58, s2, 10")
e("s_lshl_b32 s59, s31, 8")
e("s_add_u32 s58, s58, s59")
e(f"s_add_u32 s58, s58, {WS_OP}")
e("s_mov_b64 exec, 0xffff")
e(f"buffer_store_dwordx4 v[24:27], {V_L16}, {SRD_WS}, s58 offen sc1")
e("s_mov_b64 exec, -1")
e("s_barrier")
if NST:
    l = uid("Lst")
    e("s_cmp_lg_u32 s31, 0")
    e(f"s_cbranch_scc1 {l}")
    e("v_mov_b32 v250, s70"); e("v_mov_b32 v251, s71"); e("v_mov_b32 v252, 0")
    e("s_mov_b64 exec, 1")
    e("buffer_store_dwordx2 v[250:251], v252, s[72:75], s68 offen")
    e("s_mov_b64 exec, -1")
    e("s_waitcnt vmcnt(3)")
    lab(l)
e("s_waitcnt vmcnt(2)" if not NST else "s_waitcnt vmcnt(3)")
if NST:
    l = uid("Lst")
    e("s_cmp_eq_u32 s31, 0")
    e(f"s_cbranch_scc1 {l}")
    e("s_waitcnt vmcnt(2)")
    lab(l)
stamp_if_role(0, 1)
if P["dbg"] == 1: e("s_branch L_end")
perms_block(WQ, FQ)
e("v_readfirstlane_b32 s50, v20")
e("v_readfirstlane_b32 s51, v21")
for j in range(8):
    e(f"v_mfma_f32_16x16x32_bf16 v[{DQ+4*j}:{DQ+4*j+3}], v[{XF}:{XF+3}], v[{FQ+4*j}:{FQ+4*j+3}], 0")
e("s_add_u32 s50, s50, 1")
e("s_addc_u32 s51, s51, 0")
e("s_lshl_b32 s55, s31, 12")
e(f"s_add_u32 s55, s55, {L_QR}")
e(f"v_lshlrev_b32 v7, 7, {V_G}")
e("v_lshl_add_u32 v7, v11, 4, v7")
e("v_add_u32 v7, s55, v7")
e("s_mov_b32 exec_lo, 0x00ff00ff")
e("s_mov_b32 exec_hi, 0xff00ff00")
e("s_nop 1")
for j in range(8):
    e(f"ds_write_b128 v7, v[{DQ+4*j}:{DQ+4*j+3}] offset:{j*512}")
e("s_mov_b64 exec, -1")
e("s_waitcnt lgkmcnt(0)")
lds_set("v6", CF_QR)
e("s_lshl_b32 s55, s31, 10")
e(f"s_add_u32 s55, s55, {L_QR}")
e("v_lshlrev_b32 v7, 2, v0")
e("v_add_u32 v7, s55, v7")
e("v_and_b32 v8, 3, v0")
e("v_lshlrev_b32 v8, 13, v8")
e("v_lshrrev_b32 v9, 5, v0")
e("v_lshl_add_u32 v8, v9, 15, v8")
e("v_bfe_u32 v9, v0, 2, 3")
e("v_lshl_add_u32 v8, v9, 4, v8")
e("s_lshl_b32 s59, s30, 16")
e("s_lshl_b32 s61, s28, 12")
e("s_add_u32 s59, s59, s61")
e("s_lshl_b32 s61, s27, 9")
e("s_add_u32 s59, s59, s61")
e("s_lshl_b32 s61, s31, 7")
e("s_add_u32 s59, s59, s61")
e(f"s_add_u32 s59, s59, {WS_QP}")
e("v_mov_b32 v66, s50")
e("v_mov_b32 v67, s51")
lds_wait4(CF_QR)
for k in range(8):
    a_, s_ = k >> 1, k & 1
    e(f"ds_read2st64_b32 v[{68+2*k}:{69+2*k}], v7 offset0:{16*a_+s_} offset1:{16*a_+s_+2}")
e("s_waitcnt lgkmcnt(0)")
for k in range(4):
    e(f"v_add_f32 v{68+4*k}, v{68+4*k}, v{70+4*k}")
    e(f"v_add_f32 v{69+4*k}, v{69+4*k}, v{71+4*k}")
e("v_add_f32 v68, v68, v72"); e("v_add_f32 v69, v69, v73")
e("v_add_f32 v76, v76, v80"); e("v_add_f32 v77, v77, v81")
e("v_add_f32 v64, v68, v76"); e("v_add_f32 v65, v69, v77")
e(f"buffer_store_dwordx4 v[64:67], v8, {SRD_WS}, s59 offen sc1")
stamp_if_role(0, 2)
if P["dbg"] == 2: e("s_branch L_end")
e("s_lshl_b32 s58, s30, 16")
e("s_lshl_b32 s59, s27, 13")
e("s_add_u32 s58, s58, s59")
e("s_lshl_b32 s59, s31, 10")
e("s_add_u32 s58, s58, s59")
e(f"s_add_u32 s58, s58, {WS_QP}")
e("s_add_u32 s59, s58, 4096")
e("v_lshrrev_b32 v8, 5, v0")
e("v_lshlrev_b32 v8, 7, v8")
e("v_lshl_add_u32 v8, v11, 4, v8")
e("v_bfe_u32 v9, v0, 3, 2")
e("v_lshl_add_u32 v8, v9, 2, v8")
e("s_lshl_b32 s55, s31, 8")
e(f"s_add_u32 s55, s55, {L_QL}")
e("v_add_u32 v8, s55, v8")
if P["qdelay"]: e(f"s_sleep {P['qdelay']}")
if P["qprobe"]:
    e("v_and_b32 v9, 1, v0")
    e("v_lshlrev_b32 v9, 9, v9")
    e("v_lshrrev_b32 v10, 1, v0")
    e("v_lshl_add_u32 v9, v10, 12, v9")
    e("s_mov_b64 exec, 0xf")
    lp, ld = uid("Lp"), uid("Ld")
    lab(lp)
    e(f"buffer_load_dwordx4 v[68:71], v9, {SRD_WS}, s58 offen offset:496 sc1")
    e("s_waitcnt vmcnt(0)")
    e("v_cmp_ne_u64 vcc, v[70:71], v[66:67]")
    e("s_mov_b64 exec, vcc")
    e(f"s_cbranch_execz {ld}")
    budget_check()
    e(f"s_sleep {P['qsleep']}")
    e(f"s_branch {lp}")
    lab(ld)
    e("s_mov_b64 exec, -1")
lp, ld = uid("Lp"), uid("Ld")
lab(lp)
e(f"buffer_load_dwordx4 v[68:71], {V_L16}, {SRD_WS}, s58 offen sc1")
e(f"buffer_load_dwordx4 v[72:75], {V_L16}, {SRD_WS}, s59 offen sc1")
e("s_waitcnt vmcnt(0)")
e("v_cmp_ne_u64 vcc, v[70:71], v[66:67]")
e("v_cmp_ne_u64 s[56:57], v[74:75], v[66:67]")
e("s_or_b64 exec, vcc, s[56:57]")
e(f"s_cbranch_execz {ld}")
budget_check()
e(f"s_sleep {P['qsleep']}")
e(f"s_branch {lp}")
lab(ld)
e("s_mov_b64 exec, -1")
e("v_add_f32 v68, v68, v72"); e("v_add_f32 v69, v69, v73")
e("v_cvt_pk_bf16_f32 v68, v68, v69")
e("ds_write_b32 v8, v68")
lds_set("v6", CF_QST)
e("s_waitcnt lgkmcnt(0)")
lds_set("v6", CF_QL)
stamp_if_role(0, 3)
if P["dbg"] == 3: e("s_branch L_end")
lgo = uid("Lgo")
e("s_cmp_lg_u32 s31, 0")
e(f"s_cbranch_scc1 {lgo}")
lds_wait4(CF_QST)
e("s_lshl_b32 s58, s30, 7")
e(f"s_add_u32 s58, s58, {WS_FL}")
e("s_lshl_b32 s59, s29, 3")
e("v_mov_b32 v22, s59")
e("s_mov_b64 exec, 1")
e(f"buffer_store_dwordx2 v[66:67], v22, {SRD_WS}, s58 offen sc1")
e("s_mov_b64 exec, -1")
lab(lgo)
e(f"v_and_b32 v8, 3, {V_C}")
e("v_lshlrev_b32 v8, 2, v8")
e(f"v_lshrrev_b32 v9, 2, {V_C}")
e("v_add_u32 v8, v8, v9")
e("v_lshlrev_b32 v8, 8, v8")
e("s_lshl_b32 s55, s31, 15")
e("v_add_u32 v8, s55, v8")
for s in range(4):
    e(f"v_add_u32 v9, {4*s}, {V_G}")
    e(f"v_xor_b32 v9, v9, {V_C}")
    e(f"v_lshl_add_u32 v{28+s}, v9, 4, v8")
e(f"v_and_b32 v9, 3, {V_C}")
e("v_lshlrev_b32 v9, 8, v9")
e(f"v_lshl_add_u32 v9, {V_G}, 4, v9")
e(f"v_add_u32 v9, {L_QL}, v9")
lds_wait4(CF_QL)
stamp_if_role(0, 4)
QF = 32
for s in range(4):
    e(f"ds_read_b128 v[{QF+4*s}:{QF+4*s+3}], v9 offset:{s*64}")
lds_wait1("v6", CF_KL)
stamp_if_role(0, 5)
KF = 64
SC = 128
def kread(t):
    b = KF + 16 * (t & 3)
    for s in range(4):
        e(f"ds_read_b128 v[{b+4*s}:{b+4*s+3}], v{28+s} offset:{t*4096}")
kread(0); kread(1)
for t in range(8):
    if t + 2 < 8:
        kread(t + 2)
        e("s_waitcnt lgkmcnt(8)")
    else:
        e(f"s_waitcnt lgkmcnt({4*(7-t)})")
    b = KF + 16 * (t & 3)
    for s in range(4):
        c = "0" if s == 0 else f"v[{SC+4*t}:{SC+4*t+3}]"
        e(f"v_mfma_f32_16x16x32_bf16 v[{SC+4*t}:{SC+4*t+3}], v[{b+4*s}:{b+4*s+3}], v[{QF+4*s}:{QF+4*s+3}], {c}")
import math
CSC = (128 ** -0.5) * math.log2(math.e)
import struct
e(f"s_mov_b32 s58, 0x{struct.unpack('<I', struct.pack('<f', CSC))[0]:08x}")
e("s_nop 7")
e(f"v_max3_f32 v10, v{SC}, v{SC+1}, v{SC+2}")
e(f"v_max3_f32 v11, v{SC+3}, v{SC+4}, v{SC+5}")
for k in range(6, 30, 4):
    e(f"v_max3_f32 v10, v10, v{SC+k}, v{SC+k+1}")
    e(f"v_max3_f32 v11, v11, v{SC+k+2}, v{SC+k+3}")
e(f"v_max3_f32 v10, v10, v{SC+30}, v{SC+31}")
e("v_max_f32 v10, v10, v11")
def xlane(op, v, t):
    e(f"v_mov_b32 {t}, {v}")
    e("s_nop 1")
    e(f"v_permlane32_swap_b32 {v}, {t}")
    e("s_nop 1")
    e(f"{op} {v}, {v}, {t}")
    e(f"v_mov_b32 {t}, {v}")
    e("s_nop 1")
    e(f"v_permlane16_swap_b32 {v}, {t}")
    e("s_nop 1")
    e(f"{op} {v}, {v}, {t}")
xlane("v_max_f32", "v10", "v11")
e("v_mul_f32 v10, s58, v10")
e("v_sub_f32 v13, 0, v10")
for k in range(32):
    e(f"v_fma_f32 v{SC+k}, v{SC+k}, s58, v13")
for k in range(32):
    e(f"v_exp_f32 v{SC+k}, v{SC+k}")
e("s_nop 0")
e(f"v_add_f32 v11, v{SC}, v{SC+1}")
e(f"v_add_f32 v14, v{SC+2}, v{SC+3}")
for k in range(4, 32, 2):
    e(f"v_add_f32 v11, v11, v{SC+k}")
    e(f"v_add_f32 v14, v14, v{SC+k+1}")
e("v_add_f32 v11, v11, v14")
for k in range(16):
    e(f"v_cvt_pk_bf16_f32 v{64+k}, v{SC+2*k}, v{SC+2*k+1}")
e("s_lshl_b32 s55, s31, 12")
e(f"v_add_u32 v7, s55, {V_L16}")
e(f"v_add_u32 v7, {L_PL}, v7")
for T in range(4):
    e(f"ds_write_b128 v7, v[{64+4*T}:{67+4*T}] offset:{T*1024}")
xlane("v_add_f32", "v11", "v14")
e("s_lshl_b32 s55, s31, 5")
e(f"s_add_u32 s55, s55, {L_SL}")
e("v_lshlrev_b32 v8, 3, v0")
e("v_add_u32 v8, s55, v8")
e("s_mov_b64 exec, 0xf")
e("ds_write_b64 v8, v[10:11]")
e("s_mov_b64 exec, -1")
e("s_waitcnt lgkmcnt(0)")
lds_set("v6", CF_P)
lds_set("v6", CF_SL)
stamp_if_role(0, 6)
if P["dbg"] == 4: e("s_branch L_end")
ls3, ls0, lsd = uid("Ls"), uid("Ls"), uid("Ls")
e("s_cmp_eq_u32 s31, 0")
e(f"s_cbranch_scc1 {ls0}")
e("s_cmp_lg_u32 s31, 3")
e(f"s_cbranch_scc1 {lsd}")
lds_wait4(CF_SL)
e("s_mov_b64 exec, 0xffff")
e("v_lshlrev_b32 v8, 3, v0")
e(f"v_add_u32 v8, {L_SL}, v8")
e("ds_read_b64 v[10:11], v8")
e("s_waitcnt lgkmcnt(0)")
e("v_max_f32_dpp v13, v10, v10 row_ror:4 row_mask:0xf bank_mask:0xf")
e("s_nop 1")
e("v_max_f32_dpp v13, v13, v13 row_ror:8 row_mask:0xf bank_mask:0xf")
e("v_sub_f32 v14, v10, v13")
e("v_exp_f32 v14, v14")
e("s_nop 0")
e("v_mul_f32 v14, v14, v11")
e("s_nop 1")
e("v_add_f32_dpp v15, v14, v14 row_ror:4 row_mask:0xf bank_mask:0xf")
e("s_nop 1")
e("v_add_f32_dpp v15, v15, v15 row_ror:8 row_mask:0xf bank_mask:0xf")
e("v_mov_b32 v20, v13")
e("v_mov_b32 v21, v15")
e("v_mov_b32 v22, s50")
e("v_mov_b32 v23, s51")
e("v_and_b32 v9, 3, v0")
e("v_lshlrev_b32 v9, 4, v9")
e("s_lshl_b32 s58, s2, 7")
e(f"s_add_u32 s58, s58, {WS_ST}")
e("s_xor_b32 s59, s58, 128")
e("s_mov_b64 exec, 0xf")
e(f"buffer_store_dwordx4 v[20:23], v9, {SRD_WS}, s58 offen sc1")
e("s_mov_b64 exec, 0xffff")
lp, ld = uid("Lp"), uid("Ld")
lab(lp)
e(f"buffer_load_dwordx4 v[24:27], v9, {SRD_WS}, s59 offen sc1")
e("s_waitcnt vmcnt(0)")
e("v_cmp_ne_u64 vcc, v[26:27], v[22:23]")
e(f"s_cbranch_vccz {ld}")
budget_check()
e("s_sleep 2")
e(f"s_branch {lp}")
lab(ld)
e("v_max_f32 v26, v13, v24")
e("v_sub_f32 v27, v13, v26")
e("v_sub_f32 v20, v24, v26")
e("v_sub_f32 v21, v10, v26")
e("v_exp_f32 v27, v27")
e("v_exp_f32 v20, v20")
e("v_exp_f32 v21, v21")
e("s_nop 0")
e("v_mul_f32 v27, v27, v15")
e("v_fmac_f32 v27, v20, v25")
e("v_rcp_f32 v27, v27")
e("s_nop 0")
e("v_mul_f32 v21, v21, v27")
e("v_lshlrev_b32 v8, 2, v0")
e(f"v_add_u32 v8, {L_FW}, v8")
e("ds_write_b32 v8, v21")
e("s_mov_b64 exec, -1")
e("s_waitcnt lgkmcnt(0)")
stamp(7)
e(f"s_branch {lsd}")
lab(ls0)
e("s_lshl_b32 s58, s4, 10")
e(f"s_add_u32 s58, s58, {WS_FL}")
e("v_mov_b32 v20, s50")
e("v_mov_b32 v21, s51")
lp, ld = uid("Lp"), uid("Ld")
lab(lp)
e(f"buffer_load_dwordx4 v[24:27], {V_L16}, {SRD_WS}, s58 offen sc1")
e("s_waitcnt vmcnt(0)")
e("v_cmp_ne_u64 vcc, v[24:25], v[20:21]")
e("v_cmp_ne_u64 s[56:57], v[26:27], v[20:21]")
e("s_or_b64 vcc, vcc, s[56:57]")
e(f"s_cbranch_vccz {ld}")
budget_check()
e("s_sleep 2")
e(f"s_branch {lp}")
lab(ld)
lab(lsd)
if P["wolate"] in (1, 3):
    lds_wait1("v6", CF_VI)
WO = 64; FO = 96; DO = 128
e("s_lshl_b32 s56, s26, 9")
e("s_and_b32 s57, s31, 1")
e("s_lshl_b32 s57, s57, 6")
e("s_add_u32 s56, s56, s57")
e("s_lshl_b32 s57, s53, 1")
e("s_add_u32 s56, s56, s57")
e("s_lshr_b32 s57, s31, 1")
e("s_add_u32 s56, s56, s57")
e("s_lshl_b32 s56, s56, 10")
e("s_lshl_b32 s57, s54, 8")
e("s_add_u32 s56, s56, s57")
e(f"v_lshlrev_b32 v8, 14, {V_G}")
e(f"v_lshl_add_u32 v8, {V_C}, 4, v8")
def wo_loads():
    for i in range(8):
        dd, h = i >> 2, i & 3
        e(f"s_add_u32 s57, s56, {(h*128 + 8*dd)*1024}")
        e(f"buffer_load_dwordx4 v[{WO+4*i}:{WO+4*i+3}], v8, {SRD_B}, s57 offen{wpol}")
if P["wolate"] != 2: wo_loads()
e("v_and_b32 v9, 7, v0")
e("v_lshlrev_b32 v9, 11, v9")
e(f"v_lshrrev_b32 v10, 3, {V_C}")
e("v_lshl_add_u32 v9, v10, 10, v9")
e(f"v_lshl_add_u32 v9, {V_G}, 4, v9")
e("s_lshl_b32 s58, s30, 14")
e("s_lshl_b32 s59, s53, 8")
e("s_add_u32 s58, s58, s59")
e("s_lshl_b32 s59, s31, 6")
e("s_add_u32 s58, s58, s59")
e(f"s_add_u32 s58, s58, {WS_OP}")
if P["dbg"] == 5:
    e("s_waitcnt vmcnt(0)")
    stamp_if_role(0, 13)
    e("s_branch L_end")
e("s_barrier")
if P["wolate"] == 2: wo_loads()
stamp_if_role(0, 13)
def wo_perms():
    e("s_waitcnt vmcnt(1)")
    perms_block(WO, FO)
    stamp_if_role(0, 14)
if P["pipe"]:
    pipe_poll(1, lambda b: e(f"buffer_load_dwordx4 v[{b}:{b+3}], v9, {SRD_WS}, s58 offen sc1"),
              16, [32 + 4*k for k in range(P["pipe"])], P["othr"], P["osleep"], pre=wo_perms)
else:
    e("s_waitcnt vmcnt(0)")
    perms_block(WO, FO)
    lp, ld = uid("Lp"), uid("Ld")
    lab(lp)
    e(f"buffer_load_dwordx4 v[16:19], v9, {SRD_WS}, s58 offen sc1")
    e("s_waitcnt vmcnt(0)")
    e("v_max3_u32 v24, v16, v17, v18")
    e("v_max_u32 v24, v24, v19")
    e("v_cmp_eq_u32 vcc, -1, v24")
    e("s_mov_b64 exec, vcc")
    e(f"s_cbranch_execz {ld}")
    budget_check()
    if P["osleep"]: e(f"s_sleep {P['osleep']}")
    e(f"s_branch {lp}")
    lab(ld)
    e("s_mov_b64 exec, -1")
stamp_if_role(0, 15)
e("s_nop 3")
for j in range(8):
    e(f"v_mfma_f32_16x16x32_bf16 v[{DO+4*j}:{DO+4*j+3}], v[16:19], v[{FO+4*j}:{FO+4*j+3}], 0")
e("s_lshl_b32 s55, s31, 13")
e(f"v_add_u32 v7, s55, {V_L16}")
e("s_lshr_b32 s55, s31, 1")
e("s_lshl_b32 s55, s55, 12")
e("s_and_b32 s56, s31, 1")
e("s_lshl_b32 s56, s56, 8")
e("s_add_u32 s55, s55, s56")
e(f"v_lshlrev_b32 v8, 10, {V_G}")
e(f"v_lshl_add_u32 v8, {V_C}, 4, v8")
e("v_add_u32 v8, s55, v8")
for j in range(8):
    e(f"ds_write_b128 v7, v[{DO+4*j}:{DO+4*j+3}] offset:{j*1024}")
e("s_waitcnt lgkmcnt(0)")
e("s_barrier")
for k in range(8):
    a, sp = k >> 1, k & 1
    e(f"ds_read_b128 v[{64+4*k}:{67+4*k}], v8 offset:{a*8192 + sp*512}")
e("s_waitcnt lgkmcnt(6)")
for r in range(4): e(f"v_add_f32 v{64+r}, v{64+r}, v{68+r}")
e("s_waitcnt lgkmcnt(4)")
for r in range(4): e(f"v_add_f32 v{72+r}, v{72+r}, v{76+r}")
e("s_waitcnt lgkmcnt(2)")
for r in range(4): e(f"v_add_f32 v{80+r}, v{80+r}, v{84+r}")
for r in range(4): e(f"v_add_f32 v{64+r}, v{64+r}, v{72+r}")
e("s_waitcnt lgkmcnt(0)")
for r in range(4): e(f"v_add_f32 v{88+r}, v{88+r}, v{92+r}")
for r in range(4): e(f"v_add_f32 v{80+r}, v{80+r}, v{88+r}")
for r in range(4): e(f"v_add_f32 v{64+r}, v{64+r}, v{80+r}")
for r in range(4): e(f"v_min_u32 v{64+r}, -2, v{64+r}")
e(f"buffer_store_dwordx4 v[64:67], v12, {SRD_WS}, s60 offen sc1")
e("s_cmp_lg_u32 s31, 0")
e("s_cbranch_scc1 L_end")
stamp(16)
e("s_and_b32 s55, s2, 1")
e("s_lshl_b32 s56, s4, 1")
e("s_add_u32 s56, s56, s55")
e("s_lshl_b32 s56, s56, 18")
e("s_bfe_u32 s57, s2, 0x60001")
e("s_lshl_b32 s58, s57, 12")
e("s_add_u32 s56, s56, s58")
e(f"s_add_u32 s56, s56, {WS_RP}")
e("s_mov_b32 s44, s20"); e("s_mov_b32 s45, s21"); e("s_mov_b32 s46, 16384"); e("s_mov_b32 s47, 0x20000")
e("s_lshl_b32 s58, s55, 13")
e("s_lshl_b32 s59, s4, 10")
e("s_add_u32 s58, s58, s59")
e("s_lshl_b32 s59, s57, 4")
e("s_add_u32 s58, s58, s59")
e("v_lshlrev_b32 v8, 1, v0")
if P["pipe"]:
    def iss(b):
        for t in range(4):
            e(f"buffer_load_dwordx4 v[{b+4*t}:{b+4*t+3}], {V_L16}, {SRD_WS}, s56 offen offset:{t*1024} sc1")
    pipe_poll(4, iss, 16, [160 + 16*k for k in range(P["pipe"])], P["rthr"], P["osleep"])
else:
    lp, ld = uid("Lp"), uid("Ld")
    lab(lp)
    for t in range(4):
        e(f"buffer_load_dwordx4 v[{16+4*t}:{19+4*t}], {V_L16}, {SRD_WS}, s56 offen offset:{t*1024} sc1")
    e("s_waitcnt vmcnt(0)")
    e("v_max3_u32 v32, v16, v17, v18")
    e("v_max3_u32 v33, v19, v20, v21")
    e("v_max3_u32 v32, v32, v22, v23")
    e("v_max3_u32 v33, v33, v24, v25")
    e("v_max3_u32 v32, v32, v26, v27")
    e("v_max3_u32 v33, v33, v28, v29")
    e("v_max3_u32 v32, v32, v30, v31")
    e("v_max_u32 v32, v32, v33")
    e("v_cmp_eq_u32 vcc, -1, v32")
    e("s_mov_b64 exec, vcc")
    e(f"s_cbranch_execz {ld}")
    budget_check()
    if P["osleep"]: e(f"s_sleep {P['osleep']}")
    e(f"s_branch {lp}")
    lab(ld)
    e("s_mov_b64 exec, -1")
stamp(17)
for r in range(4): e(f"v_add_f32 v{16+r}, v{16+r}, v{20+r}")
for r in range(4): e(f"v_add_f32 v{24+r}, v{24+r}, v{28+r}")
for r in range(4): e(f"v_add_f32 v{16+r}, v{16+r}, v{24+r}")
e("s_nop 1")
for r in range(4): e(f"v_add_f32_dpp v{20+r}, v{16+r}, v{16+r} row_ror:8 row_mask:0xf bank_mask:0xf")
for r in range(4): e(f"v_mov_b32 v{24+r}, v{20+r}")
e("s_nop 1")
for r in range(4): e(f"v_permlane32_swap_b32 v{20+r}, v{24+r}")
e("s_nop 1")
for r in range(4): e(f"v_add_f32 v{20+r}, v{20+r}, v{24+r}")
for r in range(4): e(f"v_mov_b32 v{24+r}, v{20+r}")
e("s_nop 1")
for r in range(4): e(f"v_permlane16_swap_b32 v{20+r}, v{24+r}")
e("s_nop 1")
for r in range(4): e(f"v_add_f32 v{20+r}, v{20+r}, v{24+r}")
for r in range(4): e(f"v_cvt_pk_bf16_f32 v{20+r}, v{20+r}, v{20+r}")
e("s_mov_b64 exec, 0xff")
e("s_add_u32 s59, s58, 4096")
for r in range(4):
    e(f"buffer_store_short v{20+r}, v8, {SRD_X}, {'s58' if r < 2 else 's59'} offen offset:{(r&1)*2048}")
e("s_and_b32 s55, s2, 127")
e("s_cmp_lg_u32 s55, 0")
lfin = uid("Lf")
e(f"s_cbranch_scc1 {lfin}")
e("s_mov_b64 exec, 1")
e("v_mov_b32 v24, s50")
e("v_mov_b32 v25, s51")
e("v_mov_b32 v26, 0")
e("s_lshl_b32 s58, s4, 7")
e(f"buffer_store_dwordx2 v[24:25], v26, {SRD_WS}, s58 offen sc1")
lab(lfin)
if P["dspan"]:
    e("s_waitcnt vmcnt(0)")
    e("s_memrealtime s[64:65]")
    e("s_mov_b32 s44, s22"); e("s_mov_b32 s45, s23"); e("s_mov_b32 s46, 256"); e("s_mov_b32 s47, 0x20000")
    e("s_waitcnt lgkmcnt(0)")
    e("s_mov_b64 exec, 1")
    e("s_not_b32 s66, s70")
    e("v_mov_b32 v24, s64")
    e("v_mov_b32 v25, s66")
    e("v_mov_b32 v26, 0")
    e("buffer_atomic_umax v24, v26, s[44:47], 0 offen")
    e("buffer_atomic_umax v25, v26, s[44:47], 0 offen offset:4")
    e("v_mov_b32 v24, s70")
    e("buffer_atomic_umax v24, v26, s[44:47], 0 offen offset:8")
    e("s_not_b32 s66, s64")
    e("v_mov_b32 v25, s66")
    e("buffer_atomic_umax v25, v26, s[44:47], 0 offen offset:12")
if NST:
    e("s_mov_b64 exec, -1")
    e("s_waitcnt vmcnt(0)")
    stamp(18)
lab("L_end")
e("s_endpgm")

ftr = f""".section .rodata,"a"
.p2align 6
.amdhsa_kernel {NAME}_kernel
  .amdhsa_next_free_vgpr 256
  .amdhsa_next_free_sgpr 102
  .amdhsa_accum_offset 256
  .amdhsa_group_segment_fixed_size 0
  .amdhsa_kernarg_size 104
  .amdhsa_user_sgpr_count 2
  .amdhsa_user_sgpr_kernarg_segment_ptr 1
  .amdhsa_system_sgpr_workgroup_id_x 1
.end_amdhsa_kernel
"""
open(out, "w").write(hdr + "\n" + "\n".join(L) + "\n" + ftr)
```

```python
import sys

out = sys.argv[1]
P = dict(s2bulk=1, woprio=3, wopace=0, noclr=0, ilv=0, mimic=1, remap=0, rmul=5, warm=1, dspan=0, wothr=4, pipe=4, othr=24, rthr=32, pgap=2, psw=64, pace2=0, dbg=0, noswz=0, qprobe=0, smask=0, qdelay=32, osleep=2, qsleep=12, pace=8, stamps=0, pol="nt", wpol="nt", budget=1 << 22, wolate=2)
for a in sys.argv[2:]:
    k, v = a.split("=")
    P[k] = v if k in ("pol", "wpol") else int(v, 0)
NAME = "concat_heads__sliding_block_cached__sliding_block_cached__decode"
pol = "".join(" " + x for x in P["pol"].split("+") if x != "none")
wpol = "".join(" " + x for x in P["wpol"].split("+") if x != "none")
NST = P["stamps"]
NW_ = 2 if P["warm"] else 0
STAMPOFF = 200 << 20

WS_E = 0x0
WS_FL = 0x1000
WS_ST = 0x2000
WS_OP = 0x10000
WS_QP = 0x100000
WS_RP = 0x200000
WS_SIZE = 0x300000

L_K = 0
L_RR = 0
L_QR = 131072
L_PL = 131072
L_OR = 147456
L_QL = 155648
L_SL = 156672
L_FW = 156800
L_CF = 156928
CF_QR, CF_QST, CF_QL, CF_KL, CF_VI, CF_P, CF_SL, CF_GO = [16 * i for i in range(8)]
LDS_BYTES = 157184 + 128

L = []
def e(s): L.append("    " + s)
def lab(s): L.append(s + ":")
def cmt(s): L.append("    ; " + s)
_uid = [0]
def uid(p="L"):
    _uid[0] += 1
    return f"{p}_{_uid[0]}"

S_WG, S_WAVE, S_BR = "s2", "s3", "s4"
S_HKV, S_B, S_SPLIT, S_C, S_GRP, S_ROLE = "s26", "s27", "s28", "s29", "s30", "s31"
SRD_A, SRD_B, SRD_WS, SRD_X = "s[32:35]", "s[36:39]", "s[40:43]", "s[44:47]"
S_SELLO, S_SELHI = "s48", "s49"
S_TAG0, S_TAG1 = "s50", "s51"
S_BUD = "s52"
S_HI, S_LO = "s53", "s54"

V_LANE = "v0"
V_CF = "v1"
V_G = "v2"
V_C = "v3"
V_ONE = "v4"
V_L16 = "v5"

TMP = dict(st=250, w=244, pp=248)
def stamp(idx):
    if not NST: return
    if P["smask"] and not (P["smask"] >> idx) & 1: return
    t = TMP["st"]
    e("s_memrealtime s[64:65]")
    e("s_waitcnt lgkmcnt(0)")
    e("s_mov_b64 s[66:67], exec")
    e("s_mov_b64 exec, 1")
    e(f"v_mov_b32 v{t}, s64")
    e(f"v_mov_b32 v{t+1}, s65")
    e(f"v_mov_b32 v{t+2}, {idx*8}")
    e(f"buffer_store_dwordx2 v[{t}:{t+1}], v{t+2}, s[72:75], s68 offen")
    e("s_mov_b64 exec, s[66:67]")

def stamp_if_role(role, idx):
    if not NST: return
    if P["smask"] and not (P["smask"] >> idx) & 1: return
    l = uid("Lst")
    e(f"s_cmp_lg_u32 {S_ROLE}, {role}")
    e(f"s_cbranch_scc1 {l}")
    stamp(idx)
    lab(l)

def budget_check():
    e(f"s_sub_u32 {S_BUD}, {S_BUD}, 1")
    e("s_cbranch_scc1 L_end")

def lds_wait4(off, t="v[244:247]"):
    l, d = uid("Lw"), uid("Ld")
    lab(l)
    e(f"ds_read_b128 v[244:247], {V_CF} offset:{off}")
    e("s_waitcnt lgkmcnt(0)")
    e("v_and_b32 v244, v244, v245")
    e("v_and_b32 v246, v246, v247")
    e("v_and_b32 v244, v244, v246")
    e("s_nop 0")
    e("v_readfirstlane_b32 s55, v244")
    e("s_cmp_eq_u32 s55, 1")
    e(f"s_cbranch_scc1 {d}")
    budget_check()
    e("s_sleep 1")
    e(f"s_branch {l}")
    lab(d)

def lds_wait1(vaddr, off):
    l, d = uid("Lw"), uid("Ld")
    lab(l)
    e(f"ds_read_b32 v{TMP['w']}, {vaddr} offset:{off}")
    e("s_waitcnt lgkmcnt(0)")
    e(f"v_readfirstlane_b32 s55, v{TMP['w']}")
    e("s_cmp_eq_u32 s55, 1")
    e(f"s_cbranch_scc1 {d}")
    budget_check()
    e("s_sleep 1")
    e(f"s_branch {l}")
    lab(d)

def lds_set(vaddr, off):
    e(f"ds_write_b32 {vaddr}, {V_ONE} offset:{off}")


def pipe_poll(nload, issue, final, sets, slow_thresh, slow_sleep, pre=None):
    N = len(sets)
    nreg = 4 * nload
    ld = uid("Ld")
    def check(base, mask):
        e(f"s_mov_b64 exec, {mask}")
        regs = [f"v{base+i}" for i in range(nreg)]
        e(f"v_max3_u32 v{TMP['pp']}, {regs[0]}, {regs[1]}, {regs[2]}")
        rest = regs[3:]
        while len(rest) >= 2:
            e(f"v_max3_u32 v{TMP['pp']}, v{TMP['pp']}, {rest[0]}, {rest[1]}"); rest = rest[2:]
        if rest: e(f"v_max_u32 v{TMP['pp']}, v{TMP['pp']}, {rest[0]}")
        e(f"v_cmp_ne_u32 vcc, -1, v{TMP['pp']}")
        e("s_and_b64 exec, vcc, s[76:77]")
        for i in range(nreg): e(f"v_mov_b32 v{final+i}, v{base+i}")
        e("s_andn2_b64 s[76:77], s[76:77], exec")
        e(f"s_cbranch_scc0 {ld}")
    e("s_mov_b64 s[76:77], -1")
    ls, lf, l1 = uid("Lsl"), uid("Lfa"), uid("L1")
    if pre is not None:
        e("s_mov_b64 s[78:79], -1")
        issue(sets[0])
        pre()
        e(f"s_branch {l1}")
    lab(ls)
    e("s_mov_b64 exec, s[76:77]")
    e("s_mov_b64 s[78:79], s[76:77]")
    issue(sets[0])
    lab(l1)
    e("s_waitcnt vmcnt(0)")
    check(sets[0], "s[78:79]")
    e("s_bcnt1_i32_b64 s55, s[76:77]")
    e(f"s_cmp_le_u32 s55, {slow_thresh}")
    e(f"s_cbranch_scc1 {lf}")
    budget_check()
    if slow_sleep: e(f"s_sleep {slow_sleep}")
    e(f"s_branch {ls}")
    lab(lf)
    for k in range(N - 1):
        e("s_mov_b64 exec, s[76:77]")
        e(f"s_mov_b64 s[{78+2*k}:{79+2*k}], s[76:77]")
        issue(sets[k])
        if P["pgap"]: e(f"s_sleep {P['pgap']}")
    lp = uid("Lp")
    lab(lp)
    for k in range(N):
        kk = (k + N - 1) % N
        e("s_mov_b64 exec, s[76:77]")
        e(f"s_mov_b64 s[{78+2*kk}:{79+2*kk}], s[76:77]")
        issue(sets[kk])
        e(f"s_waitcnt vmcnt({(N-1)*nload})")
        check(sets[k], f"s[{78+2*k}:{79+2*k}]")
    budget_check()
    e(f"s_branch {lp}")
    lab(ld)
    e("s_mov_b64 exec, -1")

def perms_block(src, dst, plist=range(4)):
    for p in plist:
        for jj in range(4):
            a = src + 4 * (2 * p) + jj
            b = src + 4 * (2 * p + 1) + jj
            e(f"v_perm_b32 v{dst + 4*(2*jj) + p}, v{b}, v{a}, {S_SELLO}")
            e(f"v_perm_b32 v{dst + 4*(2*jj+1) + p}, v{b}, v{a}, {S_SELHI}")


def wo_addr(vreg):
    e("s_lshl_b32 s62, s26, 9")
    e("s_and_b32 s63, s31, 1")
    e("s_lshl_b32 s63, s63, 6")
    e("s_add_u32 s62, s62, s63")
    e("s_lshl_b32 s63, s53, 1")
    e("s_add_u32 s62, s62, s63")
    e("s_lshr_b32 s63, s31, 1")
    e("s_add_u32 s62, s62, s63")
    e("s_lshl_b32 s62, s62, 10")
    e("s_lshl_b32 s63, s54, 8")
    e("s_add_u32 s62, s62, s63")
    e(f"v_lshlrev_b32 {vreg}, 14, {V_G}")
    e(f"v_lshl_add_u32 {vreg}, {V_C}, 4, {vreg}")
def rp_addr(vreg):
    e("s_and_b32 s58, s31, 1")
    e("s_lshl_b32 s59, s4, 1")
    e("s_add_u32 s59, s59, s58")
    e("s_lshl_b32 s60, s59, 18")
    e("s_lshl_b32 s59, s54, 16")
    e("s_add_u32 s60, s60, s59")
    e("s_lshl_b32 s59, s26, 2")
    e("s_add_u32 s59, s59, s53")
    e("s_lshl_b32 s59, s59, 7")
    e("s_add_u32 s60, s60, s59")
    e("s_lshr_b32 s59, s31, 1")
    e("s_lshl_b32 s59, s59, 6")
    e("s_add_u32 s60, s60, s59")
    e(f"s_add_u32 s60, s60, {WS_RP}")
    e(f"v_lshlrev_b32 {vreg}, 12, {V_C}")
    e(f"v_lshl_add_u32 {vreg}, {V_G}, 4, {vreg}")
def op_addr():
    e("v_and_b32 v9, 7, v0")
    e("v_lshlrev_b32 v9, 11, v9")
    e(f"v_lshrrev_b32 v10, 3, {V_C}")
    e("v_lshl_add_u32 v9, v10, 10, v9")
    e(f"v_lshl_add_u32 v9, {V_G}, 4, v9")
    e("s_lshl_b32 s58, s30, 14")
    e("s_lshl_b32 s59, s53, 8")
    e("s_add_u32 s58, s58, s59")
    e("s_lshl_b32 s59, s31, 6")
    e("s_add_u32 s58, s58, s59")
    e(f"s_add_u32 s58, s58, {WS_OP}")
def stage2(WO, FO, DO, vrp, nwait):
    def wo_perms():
        e(f"s_waitcnt vmcnt({nwait})")
        perms_block(WO, FO)
        stamp_if_role(0, 14)
    pipe_poll(1, lambda b: e(f"buffer_load_dwordx4 v[{b}:{b+3}], v9, {SRD_WS}, s58 offen sc1"),
              16, [32 + 4*k for k in range(P["pipe"])], P["othr"], P["osleep"], pre=wo_perms)
    stamp_if_role(0, 15)
    e("s_nop 3")
    for j in range(8):
        e(f"v_mfma_f32_16x16x32_bf16 v[{DO+4*j}:{DO+4*j+3}], v[16:19], v[{FO+4*j}:{FO+4*j+3}], 0")
    e("s_lshl_b32 s55, s31, 13")
    e(f"v_add_u32 v7, s55, {V_L16}")
    e("s_lshr_b32 s55, s31, 1")
    e("s_lshl_b32 s55, s55, 12")
    e("s_and_b32 s56, s31, 1")
    e("s_lshl_b32 s56, s56, 8")
    e("s_add_u32 s55, s55, s56")
    e(f"v_lshlrev_b32 v8, 10, {V_G}")
    e(f"v_lshl_add_u32 v8, {V_C}, 4, v8")
    e("v_add_u32 v8, s55, v8")
    for j in range(8):
        e(f"ds_write_b128 v7, v[{DO+4*j}:{DO+4*j+3}] offset:{j*1024}")
    e("s_waitcnt lgkmcnt(0)")
    e("s_barrier")
    for k in range(8):
        a, sp = k >> 1, k & 1
        e(f"ds_read_b128 v[{64+4*k}:{67+4*k}], v8 offset:{a*8192 + sp*512}")
    e("s_waitcnt lgkmcnt(6)")
    for r in range(4): e(f"v_add_f32 v{64+r}, v{64+r}, v{68+r}")
    e("s_waitcnt lgkmcnt(4)")
    for r in range(4): e(f"v_add_f32 v{72+r}, v{72+r}, v{76+r}")
    e("s_waitcnt lgkmcnt(2)")
    for r in range(4): e(f"v_add_f32 v{80+r}, v{80+r}, v{84+r}")
    for r in range(4): e(f"v_add_f32 v{64+r}, v{64+r}, v{72+r}")
    e("s_waitcnt lgkmcnt(0)")
    for r in range(4): e(f"v_add_f32 v{88+r}, v{88+r}, v{92+r}")
    for r in range(4): e(f"v_add_f32 v{80+r}, v{80+r}, v{88+r}")
    for r in range(4): e(f"v_add_f32 v{64+r}, v{64+r}, v{80+r}")
    for r in range(4): e(f"v_min_u32 v{64+r}, -2, v{64+r}")
    e(f"buffer_store_dwordx4 v[64:67], {vrp}, {SRD_WS}, s60 offen sc1")
    stamp_if_role(0, 16)

hdr = f"""; fused sliding-window GQA decode attention (two branches), one persistent launch of 256 workgroups
; @launch grid=(256,1,1) block=(512,1,1) lds={LDS_BYTES}
.amdgcn_target "amdgcn-amd-amdhsa--gfx950"
.text
.globl {NAME}_kernel
.p2align 8
.type {NAME}_kernel,@function
{NAME}_kernel:"""

e("s_cmp_ge_u32 s2, 256")
e("s_cbranch_scc1 L_end")
if NST or P["dspan"]: e("s_memrealtime s[70:71]")
if NST: e(f"s_mul_i32 s68, s2, {NST*8}")
if P["remap"] == 1:
    e("s_and_b32 s4, s2, 7")
    e("s_lshl_b32 s4, s4, 5")
    e("s_bfe_u32 s5, s2, 0x10003")
    e("s_lshl_b32 s5, s5, 4")
    e("s_lshr_b32 s2, s2, 4")
    e("s_or_b32 s2, s2, s4")
    e("s_or_b32 s2, s2, s5")
e("s_lshr_b32 s4, s2, 7")
e("s_mul_i32 s5, s4, 40")
e("s_add_u32 s6, s0, s5")
e("s_addc_u32 s7, s1, 0")
e("s_load_dwordx8 s[8:15], s[6:7], 0")
e("s_load_dwordx2 s[16:17], s[6:7], 32")
e("s_load_dwordx4 s[20:23], s[0:1], 80")
e("s_load_dwordx2 s[24:25], s[0:1], 96")
e("v_lshrrev_b32 v1, 6, v0")
e("v_and_b32 v0, 63, v0")
e("s_bfe_u32 s26, s2, 0x30004")
e("v_readfirstlane_b32 s3, v1")
e("s_bfe_u32 s27, s2, 0x30001")
e("s_and_b32 s28, s2, 1")
e("s_and_b32 s29, s2, 15")
e("s_lshr_b32 s30, s2, 4")
e("s_lshr_b32 s53, s29, 2")
e("s_and_b32 s54, s29, 3")
e("s_and_b32 s31, s3, 3")
e("s_mov_b32 s48, 0x05040100")
e("s_mov_b32 s49, 0x07060302")
e(f"s_mov_b32 s52, {P['budget']}")
e(f"v_mov_b32 {V_CF}, {L_CF}")
e(f"v_lshrrev_b32 {V_G}, 4, v0")
e(f"v_and_b32 {V_C}, 15, v0")
e(f"v_mov_b32 {V_ONE}, 1")
e(f"v_lshlrev_b32 {V_L16}, 4, v0")
e("s_lshl_b32 s55, s31, 2")
e(f"v_add_u32 v6, s55, {V_CF}")
e("s_waitcnt lgkmcnt(0)")
e("s_mov_b32 s40, s24"); e("s_mov_b32 s41, s25"); e(f"s_mov_b32 s42, {WS_SIZE}"); e("s_mov_b32 s43, 0x20000")
if NST:
    e(f"s_add_u32 s72, s24, {STAMPOFF}")
    e("s_addc_u32 s73, s25, 0")
    e(f"s_mov_b32 s74, {256*NST*8}")
    e("s_mov_b32 s75, 0x20000")
e("s_cmp_lt_u32 s3, 4")
e("s_cbranch_scc1 L_aux")

if P["s2bulk"]: TMP.update(st=12, w=8, pp=11)
NWO = 8 if P["s2bulk"] else 0
WOB = 224
VB = 64
FB = 192
AC = 16
PB = 48
e("s_mov_b32 s32, s10"); e("s_mov_b32 s33, s11"); e("s_mov_b32 s34, 0x4000000"); e("s_mov_b32 s35, 0x20000")
e("s_mov_b32 s36, s12"); e("s_mov_b32 s37, s13"); e("s_mov_b32 s38, 0x4000000"); e("s_mov_b32 s39, 0x20000")
e("s_lshl_b32 s56, s27, 23")
e("s_lshl_b32 s57, s26, 20")
e("s_add_u32 s56, s56, s57")
e("s_lshl_b32 s57, s28, 17")
e("s_add_u32 s56, s56, s57")
e("s_lshl_b32 s57, s31, 15")
if P["ilv"]:
    e("s_lshl_b32 s58, s31, 10")
    e("s_add_u32 s56, s56, s58")
else:
    e("s_add_u32 s56, s56, s57")
e(f"s_add_u32 s56, s56, {3072*256}")
e(f"v_lshlrev_b32 v12, 2, {V_G}")
e(f"v_lshlrev_b32 v13, 8, {V_G}")
for ii in range(4):
    e(f"v_add_u32 v14, {ii}, v12")
    e(f"v_xor_b32 v14, v14, {V_C}") if not P["noswz"] else e(f"v_mov_b32 v14, {V_C}")
    e(f"v_lshl_add_u32 v{8+ii}, v14, 4, v13")
PACE = P["pace"]
n_issued = 0
def pre_issue():
    global n_issued
    if n_issued == min(PACE, 8) if PACE else n_issued == 8:
        e("s_barrier")
        if NST and (P["smask"] >> 20) & 1:
            e(f"s_waitcnt vmcnt({n_issued - 1})")
            stamp_if_role(0, 20)
    pc = PACE if n_issued < P["psw"] else P["pace2"]
    if pc and n_issued >= pc:
        e(f"s_waitcnt vmcnt({pc-1})")
    n_issued += 1
kl_done = False
e(f"s_mul_i32 s61, s2, {P['rmul']}")
if not P["ilv"]:
    e("s_lshl_b32 s62, s31, 3")
    e("s_add_u32 s61, s61, s62")
CSH = 12 if P["ilv"] else 10
e(f"s_lshl_b32 s61, s61, {CSH}")
if P["warm"]:
    e("v_mov_b32 v15, 0")
    e(f"buffer_load_dword v15, v15, {SRD_B}, s56 offen")
def rotaddr(n):
    e(f"s_add_u32 s58, s61, {n << CSH}")
    e(f"s_and_b32 s58, s58, {31 << CSH}")
    e("s_add_u32 s58, s58, s56")
for n in range(32):
    e(f"s_add_u32 m0, s57, {n*1024}")
    rotaddr(n)
    pre_issue()
    e(f"buffer_load_dwordx4 v{8+(n&3)}, {SRD_A}, s58 offen{pol} lds")
for n in range(32):
    rotaddr(n)
    pre_issue()
    pc = PACE if (n_issued - 1) < P["psw"] else P["pace2"]
    if pc and not kl_done and (n_issued - 1) - pc >= 31:
        lds_set("v6", CF_KL)
        kl_done = True
        stamp_if_role(0, 8)
    r = VB + 4 * n
    e(f"buffer_load_dwordx4 v[{r}:{r+3}], {V_L16}, {SRD_B}, s58 offen{pol}")
if P["wolate"] != 3: lds_set("v6", CF_VI)
if not kl_done:
    e("s_waitcnt vmcnt(32)")
    lds_set("v6", CF_KL)
if P["s2bulk"]:
    e("s_mov_b32 s32, s16"); e("s_mov_b32 s33, s17"); e("s_mov_b32 s34, 0x400000"); e("s_mov_b32 s35, 0x20000")
    wo_addr("v7")
    for i in range(8):
        dd, h = i >> 2, i & 3
        e(f"s_add_u32 s63, s62, {(h*128 + 8*dd)*1024}")
        if P["wopace"]: pre_issue()
        e(f"buffer_load_dwordx4 v[{WOB+4*i}:{WOB+4*i+3}], v7, {SRD_A}, s63 offen{wpol}")
nst_extra = 0
if NST:
    stamp_if_role(0, 9)
if not P["dbg"]: lds_wait1("v6", CF_P)
stamp_if_role(0, 10)
e("s_lshl_b32 s55, s31, 12")
e(f"v_add_u32 v7, s55, {V_L16}")
e(f"v_add_u32 v7, {L_PL}, v7")
for T in range(4):
    e(f"ds_read_b128 v[{PB+4*T}:{PB+4*T+3}], v7 offset:{T*1024}")
for T in range(4):
    src = VB + 32 * T
    if T < 3:
        e(f"s_waitcnt vmcnt({24 - 8*T + NWO})")
        if P["wolate"] == 3 and P["wothr"] == 24 - 8*T: lds_set("v6", CF_VI)
        perms_block(src, FB)
    else:
        for p in range(4):
            e(f"s_waitcnt vmcnt({6 - 2*p + NWO})")
            if P["wolate"] == 3 and P["wothr"] == 6 - 2*p: lds_set("v6", CF_VI)
            perms_block(src, FB, [p])
    if T == 0: e("s_waitcnt lgkmcnt(0)")
    e("s_nop 1")
    for j in range(8):
        c = "0" if T == 0 else f"v[{AC+4*j}:{AC+4*j+3}]"
        e(f"v_mfma_f32_16x16x32_bf16 v[{AC+4*j}:{AC+4*j+3}], v[{PB+4*T}:{PB+4*T+3}], v[{FB+4*j}:{FB+4*j+3}], {c}")
stamp_if_role(0, 11)
if P["dbg"]: e("s_branch L_end")
e("s_lshl_b32 s55, s31, 11")
e(f"v_add_u32 v7, s55, {V_L16}")
e(f"v_add_u32 v7, {L_OR}, v7")
e("s_mov_b64 exec, 0xffff")
e("s_nop 4")
for j in range(8):
    e(f"ds_write_b128 v7, v[{AC+4*j}:{AC+4*j+3}] offset:{j*256}")
e("s_mov_b64 exec, -1")
e("s_waitcnt lgkmcnt(0)")
e("s_barrier")
e("s_cmp_ge_u32 s31, 2")
e("s_cbranch_scc1 L_end" if not P["s2bulk"] else "s_cbranch_scc1 L_s2x")
e("s_lshl_b32 s55, s31, 10")
e(f"v_add_u32 v7, s55, {V_L16}")
e(f"v_add_u32 v8, {L_OR}, v7")
e(f"v_mov_b32 v9, {L_FW}")
for w in range(4):
    e(f"ds_read_b128 v[{16+4*w}:{19+4*w}], v8 offset:{w*2048}")
    e(f"ds_read_b128 v[{32+4*w}:{35+4*w}], v9 offset:{w*16}")
e("s_lshl_b32 s55, s2, 10")
e(f"s_add_u32 s55, s55, {WS_OP}")
e("v_lshrrev_b32 v7, 1, v7")
e("s_waitcnt lgkmcnt(6)")
for h in range(4): e(f"v_mul_f32 v{48+h}, v{16+h}, v{32+h}")
for w in range(1, 4):
    e(f"s_waitcnt lgkmcnt({6-2*w})")
    for h in range(4): e(f"v_fmac_f32 v{48+h}, v{16+4*w+h}, v{32+4*w+h}")
e("v_cvt_pk_bf16_f32 v48, v48, v49")
e("v_cvt_pk_bf16_f32 v49, v50, v51")
e("v_min_u32 v48, -2, v48")
e("v_min_u32 v49, -2, v49")
e(f"buffer_store_dwordx2 v[48:49], v7, {SRD_WS}, s55 offen sc1")
stamp_if_role(0, 12)
if P["s2bulk"]:
    e("s_branch L_s2")
    lab("L_s2x")
    e("v_mov_b32 v14, 0")
    e(f"buffer_load_dword v14, v14, {SRD_WS}, 0 offen")
    lab("L_s2")
    rp_addr("v15")
    op_addr()
    stage2(WOB, FB, 128, "v15", 2)
    TMP.update(st=250, w=244, pp=248)
e("s_branch L_end")

lab("L_aux")
e("s_setprio 3")
stamp_if_role(0, 19)
WQ = 64
FQ = 96
DQ = 128
XF = 16
e("s_mov_b32 s32, s14"); e("s_mov_b32 s33, s15"); e("s_mov_b32 s34, 0x400000"); e("s_mov_b32 s35, 0x20000")
e("s_mov_b32 s36, s16"); e("s_mov_b32 s37, s17"); e("s_mov_b32 s38, 0x400000"); e("s_mov_b32 s39, 0x20000")
e("s_mov_b32 s44, s8"); e("s_mov_b32 s45, s9"); e("s_mov_b32 s46, 8192"); e("s_mov_b32 s47, 0x20000")
e("s_lshl_b32 s56, s28, 8")
e("s_lshl_b32 s57, s31, 6")
e("s_add_u32 s56, s56, s57")
e("s_lshl_b32 s57, s56, 13")
e("s_lshl_b32 s58, s26, 10")
e("s_add_u32 s57, s57, s58")
e("s_lshl_b32 s58, s27, 7")
e("s_add_u32 s57, s57, s58")
e(f"v_lshrrev_b32 v10, 3, {V_C}")
e("v_and_b32 v11, 7, v0")
e(f"v_lshlrev_b32 v8, 16, {V_G}")
e("v_lshl_add_u32 v8, v10, 18, v8")
e("v_lshl_add_u32 v8, v11, 4, v8")
for i in range(8):
    e(f"s_add_u32 s58, s57, {i*8192}")
    e(f"buffer_load_dwordx4 v[{WQ+4*i}:{WQ+4*i+3}], v8, {SRD_A}, s58 offen{wpol}")
e("v_lshlrev_b32 v9, 10, v11")
e(f"v_lshl_add_u32 v9, {V_G}, 4, v9")
e("v_lshl_add_u32 v9, v10, 6, v9")
e("s_lshl_b32 s58, s56, 1")
e(f"buffer_load_dwordx4 v[{XF}:{XF+3}], v9, {SRD_X}, s58 offen")
e("s_lshl_b32 s58, s4, 7")
e("v_mov_b32 v10, 0")
e(f"buffer_load_dwordx2 v[20:21], v10, {SRD_WS}, s58 offen sc1")
e("v_mov_b32 v24, -1"); e("v_mov_b32 v25, -1"); e("v_mov_b32 v26, -1"); e("v_mov_b32 v27, -1")
lz = uid("Lz")
e("s_cmp_lg_u32 s31, 0")
e(f"s_cbranch_scc1 {lz}")
e(f"v_lshl_add_u32 v13, v0, 2, {V_CF}")
e("ds_write_b32 v13, v10")
e("s_waitcnt lgkmcnt(0)")
lab(lz)
e("s_and_b32 s58, s31, 1")
e("s_lshl_b32 s59, s4, 1")
e("s_add_u32 s59, s59, s58")
e("s_lshl_b32 s60, s59, 18")
e("s_lshl_b32 s59, s54, 16")
e("s_add_u32 s60, s60, s59")
e("s_lshl_b32 s59, s26, 2")
e("s_add_u32 s59, s59, s53")
e("s_lshl_b32 s59, s59, 7")
e("s_add_u32 s60, s60, s59")
e("s_lshr_b32 s59, s31, 1")
e("s_lshl_b32 s59, s59, 6")
e("s_add_u32 s60, s60, s59")
e(f"s_add_u32 s60, s60, {WS_RP}")
e(f"v_lshlrev_b32 v12, 12, {V_C}")
e(f"v_lshl_add_u32 v12, {V_G}, 4, v12")
if P["noclr"]: e("s_mov_b64 exec, 1")
e(f"buffer_store_dwordx4 v[24:27], v12, {SRD_WS}, s60 offen sc1")
e("s_lshl_b32 s58, s2, 10")
e("s_lshl_b32 s59, s31, 8")
e("s_add_u32 s58, s58, s59")
e(f"s_add_u32 s58, s58, {WS_OP}")
e("s_mov_b64 exec, 0xffff" if not P["noclr"] else "s_mov_b64 exec, 1")
e(f"buffer_store_dwordx4 v[24:27], {V_L16}, {SRD_WS}, s58 offen sc1")
e("s_mov_b64 exec, -1")
if P["warm"]:
    e("s_lshl_b32 s58, s26, 19")
    e("s_lshl_b32 s59, s31, 17")
    e("s_add_u32 s58, s58, s59")
    e(f"buffer_load_dword v240, v10, {SRD_B}, s58 offen")
    e("s_mov_b32 s80, s20"); e("s_mov_b32 s81, s21"); e("s_mov_b32 s82, 16384"); e("s_mov_b32 s83, 0x20000")
    e("buffer_load_dword v241, v10, s[80:83], 0 offen")
e("s_barrier")
if NST:
    l = uid("Lst")
    e("s_cmp_lg_u32 s31, 0")
    e(f"s_cbranch_scc1 {l}")
    e("v_mov_b32 v250, s70"); e("v_mov_b32 v251, s71"); e("v_mov_b32 v252, 0")
    e("s_mov_b64 exec, 1")
    e("buffer_store_dwordx2 v[250:251], v252, s[72:75], s68 offen")
    e("s_mov_b64 exec, -1")
    e(f"s_waitcnt vmcnt({3+NW_})")
    lab(l)
e(f"s_waitcnt vmcnt({2+NW_})" if not NST else f"s_waitcnt vmcnt({3+NW_})")
if NST:
    l = uid("Lst")
    e("s_cmp_eq_u32 s31, 0")
    e(f"s_cbranch_scc1 {l}")
    e(f"s_waitcnt vmcnt({2+NW_})")
    lab(l)
stamp_if_role(0, 1)
if P["dbg"] == 1: e("s_branch L_end")
perms_block(WQ, FQ)
e("v_readfirstlane_b32 s50, v20")
e("v_readfirstlane_b32 s51, v21")
for j in range(8):
    e(f"v_mfma_f32_16x16x32_bf16 v[{DQ+4*j}:{DQ+4*j+3}], v[{XF}:{XF+3}], v[{FQ+4*j}:{FQ+4*j+3}], 0")
e("s_add_u32 s50, s50, 1")
e("s_addc_u32 s51, s51, 0")
e("s_lshl_b32 s55, s31, 12")
e(f"s_add_u32 s55, s55, {L_QR}")
e(f"v_lshlrev_b32 v7, 7, {V_G}")
e("v_lshl_add_u32 v7, v11, 4, v7")
e("v_add_u32 v7, s55, v7")
e("s_mov_b32 exec_lo, 0x00ff00ff")
e("s_mov_b32 exec_hi, 0xff00ff00")
e("s_nop 1")
for j in range(8):
    e(f"ds_write_b128 v7, v[{DQ+4*j}:{DQ+4*j+3}] offset:{j*512}")
e("s_mov_b64 exec, -1")
e("s_waitcnt lgkmcnt(0)")
lds_set("v6", CF_QR)
e("s_lshl_b32 s55, s31, 10")
e(f"s_add_u32 s55, s55, {L_QR}")
e("v_lshlrev_b32 v7, 2, v0")
e("v_add_u32 v7, s55, v7")
e("v_and_b32 v8, 3, v0")
e("v_lshlrev_b32 v8, 13, v8")
e("v_lshrrev_b32 v9, 5, v0")
e("v_lshl_add_u32 v8, v9, 15, v8")
e("v_bfe_u32 v9, v0, 2, 3")
e("v_lshl_add_u32 v8, v9, 4, v8")
e("s_lshl_b32 s59, s30, 16")
e("s_lshl_b32 s61, s28, 12")
e("s_add_u32 s59, s59, s61")
e("s_lshl_b32 s61, s27, 9")
e("s_add_u32 s59, s59, s61")
e("s_lshl_b32 s61, s31, 7")
e("s_add_u32 s59, s59, s61")
e(f"s_add_u32 s59, s59, {WS_QP}")
e("v_mov_b32 v66, s50")
e("v_mov_b32 v67, s51")
lds_wait4(CF_QR)
for k in range(8):
    a_, s_ = k >> 1, k & 1
    e(f"ds_read2st64_b32 v[{68+2*k}:{69+2*k}], v7 offset0:{16*a_+s_} offset1:{16*a_+s_+2}")
e("s_waitcnt lgkmcnt(0)")
for k in range(4):
    e(f"v_add_f32 v{68+4*k}, v{68+4*k}, v{70+4*k}")
    e(f"v_add_f32 v{69+4*k}, v{69+4*k}, v{71+4*k}")
e("v_add_f32 v68, v68, v72"); e("v_add_f32 v69, v69, v73")
e("v_add_f32 v76, v76, v80"); e("v_add_f32 v77, v77, v81")
e("v_add_f32 v64, v68, v76"); e("v_add_f32 v65, v69, v77")
e(f"buffer_store_dwordx4 v[64:67], v8, {SRD_WS}, s59 offen sc1")
stamp_if_role(0, 2)
if P["dbg"] == 2: e("s_branch L_end")
e("s_lshl_b32 s58, s30, 16")
e("s_lshl_b32 s59, s27, 13")
e("s_add_u32 s58, s58, s59")
e("s_lshl_b32 s59, s31, 10")
e("s_add_u32 s58, s58, s59")
e(f"s_add_u32 s58, s58, {WS_QP}")
e("s_add_u32 s59, s58, 4096")
e("v_lshrrev_b32 v8, 5, v0")
e("v_lshlrev_b32 v8, 7, v8")
e("v_lshl_add_u32 v8, v11, 4, v8")
e("v_bfe_u32 v9, v0, 3, 2")
e("v_lshl_add_u32 v8, v9, 2, v8")
e("s_lshl_b32 s55, s31, 8")
e(f"s_add_u32 s55, s55, {L_QL}")
e("v_add_u32 v8, s55, v8")
if P["qdelay"]: e(f"s_sleep {P['qdelay']}")
if P["qprobe"]:
    e("v_and_b32 v9, 1, v0")
    e("v_lshlrev_b32 v9, 9, v9")
    e("v_lshrrev_b32 v10, 1, v0")
    e("v_lshl_add_u32 v9, v10, 12, v9")
    e("s_mov_b64 exec, 0xf")
    lp, ld = uid("Lp"), uid("Ld")
    lab(lp)
    e(f"buffer_load_dwordx4 v[68:71], v9, {SRD_WS}, s58 offen offset:496 sc1")
    e("s_waitcnt vmcnt(0)")
    e("v_cmp_ne_u64 vcc, v[70:71], v[66:67]")
    e("s_mov_b64 exec, vcc")
    e(f"s_cbranch_execz {ld}")
    budget_check()
    e(f"s_sleep {P['qsleep']}")
    e(f"s_branch {lp}")
    lab(ld)
    e("s_mov_b64 exec, -1")
lp, ld = uid("Lp"), uid("Ld")
lab(lp)
e(f"buffer_load_dwordx4 v[68:71], {V_L16}, {SRD_WS}, s58 offen sc1")
e(f"buffer_load_dwordx4 v[72:75], {V_L16}, {SRD_WS}, s59 offen sc1")
e("s_waitcnt vmcnt(0)")
e("v_cmp_ne_u64 vcc, v[70:71], v[66:67]")
e("v_cmp_ne_u64 s[56:57], v[74:75], v[66:67]")
e("s_or_b64 exec, vcc, s[56:57]")
e(f"s_cbranch_execz {ld}")
budget_check()
e(f"s_sleep {P['qsleep']}")
e(f"s_branch {lp}")
lab(ld)
e("s_mov_b64 exec, -1")
e("v_add_f32 v68, v68, v72"); e("v_add_f32 v69, v69, v73")
e("v_cvt_pk_bf16_f32 v68, v68, v69")
e("ds_write_b32 v8, v68")
lds_set("v6", CF_QST)
e("s_waitcnt lgkmcnt(0)")
lds_set("v6", CF_QL)
stamp_if_role(0, 3)
if P["dbg"] == 3: e("s_branch L_end")
lgo = uid("Lgo")
e("s_cmp_lg_u32 s31, 0")
e(f"s_cbranch_scc1 {lgo}")
lds_wait4(CF_QST)
e("s_lshl_b32 s58, s30, 7")
e(f"s_add_u32 s58, s58, {WS_FL}")
e("s_lshl_b32 s59, s29, 3")
e("v_mov_b32 v22, s59")
e("s_mov_b64 exec, 1")
e(f"buffer_store_dwordx2 v[66:67], v22, {SRD_WS}, s58 offen sc1")
e("s_mov_b64 exec, -1")
lab(lgo)
e(f"v_and_b32 v8, 3, {V_C}")
e("v_lshlrev_b32 v8, 2, v8")
e(f"v_lshrrev_b32 v9, 2, {V_C}")
e("v_add_u32 v8, v8, v9")
e("v_lshlrev_b32 v8, 8, v8")
e("s_lshl_b32 s55, s31, 15")
e("v_add_u32 v8, s55, v8")
for s in range(4):
    e(f"v_add_u32 v9, {4*s}, {V_G}")
    e(f"v_xor_b32 v9, v9, {V_C}")
    e(f"v_lshl_add_u32 v{28+s}, v9, 4, v8")
e(f"v_and_b32 v9, 3, {V_C}")
e("v_lshlrev_b32 v9, 8, v9")
e(f"v_lshl_add_u32 v9, {V_G}, 4, v9")
e(f"v_add_u32 v9, {L_QL}, v9")
lds_wait4(CF_QL)
stamp_if_role(0, 4)
QF = 32
for s in range(4):
    e(f"ds_read_b128 v[{QF+4*s}:{QF+4*s+3}], v9 offset:{s*64}")
lds_wait1("v6", CF_KL)
stamp_if_role(0, 5)
KF = 64
SC = 128
def kread(t):
    b = KF + 16 * (t & 3)
    for s in range(4):
        e(f"ds_read_b128 v[{b+4*s}:{b+4*s+3}], v{28+s} offset:{t*4096}")
kread(0); kread(1)
for t in range(8):
    if t + 2 < 8:
        kread(t + 2)
        e("s_waitcnt lgkmcnt(8)")
    else:
        e(f"s_waitcnt lgkmcnt({4*(7-t)})")
    b = KF + 16 * (t & 3)
    for s in range(4):
        c = "0" if s == 0 else f"v[{SC+4*t}:{SC+4*t+3}]"
        e(f"v_mfma_f32_16x16x32_bf16 v[{SC+4*t}:{SC+4*t+3}], v[{b+4*s}:{b+4*s+3}], v[{QF+4*s}:{QF+4*s+3}], {c}")
import math
CSC = (128 ** -0.5) * math.log2(math.e)
import struct
f2u = lambda x: struct.unpack('<I', struct.pack('<f', x))[0]
if P["mimic"]:
    e(f"s_mov_b32 s58, 0x{f2u(math.log2(math.e)):08x}")
    e(f"s_mov_b32 s59, 0x{f2u(128 ** -0.5):08x}")
    e("s_mov_b32 s57, 0xffff0000")
    e("s_nop 6")
    for k in range(16):
        e(f"v_cvt_pk_bf16_f32 v{64+k}, v{SC+2*k}, v{SC+2*k+1}")
    for k in range(16):
        e(f"v_lshlrev_b32 v{SC+2*k}, 16, v{64+k}")
        e(f"v_and_b32 v{SC+2*k+1}, s57, v{64+k}")
    for k in range(32):
        e(f"v_mul_f32 v{SC+k}, s59, v{SC+k}")
    for k in range(16):
        e(f"v_cvt_pk_bf16_f32 v{64+k}, v{SC+2*k}, v{SC+2*k+1}")
    for k in range(16):
        e(f"v_lshlrev_b32 v{SC+2*k}, 16, v{64+k}")
        e(f"v_and_b32 v{SC+2*k+1}, s57, v{64+k}")
else:
    e(f"s_mov_b32 s58, 0x{f2u(CSC):08x}")
    e("s_nop 7")
e(f"v_max3_f32 v10, v{SC}, v{SC+1}, v{SC+2}")
e(f"v_max3_f32 v11, v{SC+3}, v{SC+4}, v{SC+5}")
for k in range(6, 30, 4):
    e(f"v_max3_f32 v10, v10, v{SC+k}, v{SC+k+1}")
    e(f"v_max3_f32 v11, v11, v{SC+k+2}, v{SC+k+3}")
e(f"v_max3_f32 v10, v10, v{SC+30}, v{SC+31}")
e("v_max_f32 v10, v10, v11")
def xlane(op, v, t):
    e(f"v_mov_b32 {t}, {v}")
    e("s_nop 1")
    e(f"v_permlane32_swap_b32 {v}, {t}")
    e("s_nop 1")
    e(f"{op} {v}, {v}, {t}")
    e(f"v_mov_b32 {t}, {v}")
    e("s_nop 1")
    e(f"v_permlane16_swap_b32 {v}, {t}")
    e("s_nop 1")
    e(f"{op} {v}, {v}, {t}")
xlane("v_max_f32", "v10", "v11")
e("v_mul_f32 v10, s58, v10")
e("v_sub_f32 v13, 0, v10")
for k in range(32):
    e(f"v_fma_f32 v{SC+k}, v{SC+k}, s58, v13")
for k in range(32):
    e(f"v_exp_f32 v{SC+k}, v{SC+k}")
e("s_nop 0")
e(f"v_add_f32 v11, v{SC}, v{SC+1}")
e(f"v_add_f32 v14, v{SC+2}, v{SC+3}")
for k in range(4, 32, 2):
    e(f"v_add_f32 v11, v11, v{SC+k}")
    e(f"v_add_f32 v14, v14, v{SC+k+1}")
e("v_add_f32 v11, v11, v14")
for k in range(16):
    e(f"v_cvt_pk_bf16_f32 v{64+k}, v{SC+2*k}, v{SC+2*k+1}")
e("s_lshl_b32 s55, s31, 12")
e(f"v_add_u32 v7, s55, {V_L16}")
e(f"v_add_u32 v7, {L_PL}, v7")
for T in range(4):
    e(f"ds_write_b128 v7, v[{64+4*T}:{67+4*T}] offset:{T*1024}")
xlane("v_add_f32", "v11", "v14")
e("s_lshl_b32 s55, s31, 5")
e(f"s_add_u32 s55, s55, {L_SL}")
e("v_lshlrev_b32 v8, 3, v0")
e("v_add_u32 v8, s55, v8")
e("s_mov_b64 exec, 0xf")
e("ds_write_b64 v8, v[10:11]")
e("s_mov_b64 exec, -1")
e("s_waitcnt lgkmcnt(0)")
lds_set("v6", CF_P)
lds_set("v6", CF_SL)
stamp_if_role(0, 6)
if P["dbg"] == 4: e("s_branch L_end")
ls3, ls0, lsd = uid("Ls"), uid("Ls"), uid("Ls")
e("s_cmp_eq_u32 s31, 0")
e(f"s_cbranch_scc1 {ls0}")
e("s_cmp_lg_u32 s31, 3")
e(f"s_cbranch_scc1 {lsd}")
lds_wait4(CF_SL)
e("s_mov_b64 exec, 0xffff")
e("v_lshlrev_b32 v8, 3, v0")
e(f"v_add_u32 v8, {L_SL}, v8")
e("ds_read_b64 v[10:11], v8")
e("s_waitcnt lgkmcnt(0)")
e("v_max_f32_dpp v13, v10, v10 row_ror:4 row_mask:0xf bank_mask:0xf")
e("s_nop 1")
e("v_max_f32_dpp v13, v13, v13 row_ror:8 row_mask:0xf bank_mask:0xf")
e("v_sub_f32 v14, v10, v13")
e("v_exp_f32 v14, v14")
e("s_nop 0")
e("v_mul_f32 v14, v14, v11")
e("s_nop 1")
e("v_add_f32_dpp v15, v14, v14 row_ror:4 row_mask:0xf bank_mask:0xf")
e("s_nop 1")
e("v_add_f32_dpp v15, v15, v15 row_ror:8 row_mask:0xf bank_mask:0xf")
e("v_mov_b32 v20, v13")
e("v_mov_b32 v21, v15")
e("v_mov_b32 v22, s50")
e("v_mov_b32 v23, s51")
e("v_and_b32 v9, 3, v0")
e("v_lshlrev_b32 v9, 4, v9")
e("s_lshl_b32 s58, s2, 7")
e(f"s_add_u32 s58, s58, {WS_ST}")
e("s_xor_b32 s59, s58, 128")
e("s_mov_b64 exec, 0xf")
e(f"buffer_store_dwordx4 v[20:23], v9, {SRD_WS}, s58 offen sc1")
e("s_mov_b64 exec, 0xffff")
lp, ld = uid("Lp"), uid("Ld")
lab(lp)
e(f"buffer_load_dwordx4 v[24:27], v9, {SRD_WS}, s59 offen sc1")
e("s_waitcnt vmcnt(0)")
e("v_cmp_ne_u64 vcc, v[26:27], v[22:23]")
e(f"s_cbranch_vccz {ld}")
budget_check()
e("s_sleep 2")
e(f"s_branch {lp}")
lab(ld)
e("v_max_f32 v26, v13, v24")
e("v_sub_f32 v27, v13, v26")
e("v_sub_f32 v20, v24, v26")
e("v_sub_f32 v21, v10, v26")
e("v_exp_f32 v27, v27")
e("v_exp_f32 v20, v20")
e("v_exp_f32 v21, v21")
e("s_nop 0")
e("v_mul_f32 v27, v27, v15")
e("v_fmac_f32 v27, v20, v25")
e("v_rcp_f32 v27, v27")
e("s_nop 0")
e("v_mul_f32 v21, v21, v27")
e("v_lshlrev_b32 v8, 2, v0")
e(f"v_add_u32 v8, {L_FW}, v8")
e("ds_write_b32 v8, v21")
e("s_mov_b64 exec, -1")
e("s_waitcnt lgkmcnt(0)")
stamp(7)
e(f"s_branch {lsd}")
lab(ls0)
e("s_lshl_b32 s58, s4, 10")
e(f"s_add_u32 s58, s58, {WS_FL}")
e("v_mov_b32 v20, s50")
e("v_mov_b32 v21, s51")
lp, ld = uid("Lp"), uid("Ld")
lab(lp)
e(f"buffer_load_dwordx4 v[24:27], {V_L16}, {SRD_WS}, s58 offen sc1")
e("s_waitcnt vmcnt(0)")
e("v_cmp_ne_u64 vcc, v[24:25], v[20:21]")
e("v_cmp_ne_u64 s[56:57], v[26:27], v[20:21]")
e("s_or_b64 vcc, vcc, s[56:57]")
e(f"s_cbranch_vccz {ld}")
budget_check()
e("s_sleep 2")
e(f"s_branch {lp}")
lab(ld)
lab(lsd)
if P["s2bulk"]:
    e("s_barrier")
    e("s_cmp_lg_u32 s31, 0")
    e("s_cbranch_scc1 L_end")
    e("s_barrier")
else:
    if P["wolate"] in (1, 3):
        lds_wait1("v6", CF_VI)
    WO = 64; FO = 96; DO = 128
    e("s_lshl_b32 s56, s26, 9")
    e("s_and_b32 s57, s31, 1")
    e("s_lshl_b32 s57, s57, 6")
    e("s_add_u32 s56, s56, s57")
    e("s_lshl_b32 s57, s53, 1")
    e("s_add_u32 s56, s56, s57")
    e("s_lshr_b32 s57, s31, 1")
    e("s_add_u32 s56, s56, s57")
    e("s_lshl_b32 s56, s56, 10")
    e("s_lshl_b32 s57, s54, 8")
    e("s_add_u32 s56, s56, s57")
    e(f"v_lshlrev_b32 v8, 14, {V_G}")
    e(f"v_lshl_add_u32 v8, {V_C}, 4, v8")
    def wo_loads():
        if P["woprio"] != 3: e(f"s_setprio {P['woprio']}")
        for i in range(8):
            dd, h = i >> 2, i & 3
            e(f"s_add_u32 s57, s56, {(h*128 + 8*dd)*1024}")
            if P["wopace"] and i >= P["wopace"]: e(f"s_waitcnt vmcnt({P['wopace']-1})")
            e(f"buffer_load_dwordx4 v[{WO+4*i}:{WO+4*i+3}], v8, {SRD_B}, s57 offen{wpol}")
        if P["woprio"] != 3: e("s_setprio 3")
    if P["wolate"] != 2: wo_loads()
    e("v_and_b32 v9, 7, v0")
    e("v_lshlrev_b32 v9, 11, v9")
    e(f"v_lshrrev_b32 v10, 3, {V_C}")
    e("v_lshl_add_u32 v9, v10, 10, v9")
    e(f"v_lshl_add_u32 v9, {V_G}, 4, v9")
    e("s_lshl_b32 s58, s30, 14")
    e("s_lshl_b32 s59, s53, 8")
    e("s_add_u32 s58, s58, s59")
    e("s_lshl_b32 s59, s31, 6")
    e("s_add_u32 s58, s58, s59")
    e(f"s_add_u32 s58, s58, {WS_OP}")
    if P["dbg"] == 5:
        e("s_waitcnt vmcnt(0)")
        stamp_if_role(0, 13)
        e("s_branch L_end")
    e("s_barrier")
    if P["wolate"] == 2: wo_loads()
    stamp_if_role(0, 13)
    def wo_perms():
        e("s_waitcnt vmcnt(1)")
        perms_block(WO, FO)
        stamp_if_role(0, 14)
    if P["pipe"]:
        pipe_poll(1, lambda b: e(f"buffer_load_dwordx4 v[{b}:{b+3}], v9, {SRD_WS}, s58 offen sc1"),
                  16, [32 + 4*k for k in range(P["pipe"])], P["othr"], P["osleep"], pre=wo_perms)
    else:
        e("s_waitcnt vmcnt(0)")
        perms_block(WO, FO)
        lp, ld = uid("Lp"), uid("Ld")
        lab(lp)
        e(f"buffer_load_dwordx4 v[16:19], v9, {SRD_WS}, s58 offen sc1")
        e("s_waitcnt vmcnt(0)")
        e("v_max3_u32 v24, v16, v17, v18")
        e("v_max_u32 v24, v24, v19")
        e("v_cmp_eq_u32 vcc, -1, v24")
        e("s_mov_b64 exec, vcc")
        e(f"s_cbranch_execz {ld}")
        budget_check()
        if P["osleep"]: e(f"s_sleep {P['osleep']}")
        e(f"s_branch {lp}")
        lab(ld)
        e("s_mov_b64 exec, -1")
    stamp_if_role(0, 15)
    e("s_nop 3")
    for j in range(8):
        e(f"v_mfma_f32_16x16x32_bf16 v[{DO+4*j}:{DO+4*j+3}], v[16:19], v[{FO+4*j}:{FO+4*j+3}], 0")
    e("s_lshl_b32 s55, s31, 13")
    e(f"v_add_u32 v7, s55, {V_L16}")
    e("s_lshr_b32 s55, s31, 1")
    e("s_lshl_b32 s55, s55, 12")
    e("s_and_b32 s56, s31, 1")
    e("s_lshl_b32 s56, s56, 8")
    e("s_add_u32 s55, s55, s56")
    e(f"v_lshlrev_b32 v8, 10, {V_G}")
    e(f"v_lshl_add_u32 v8, {V_C}, 4, v8")
    e("v_add_u32 v8, s55, v8")
    for j in range(8):
        e(f"ds_write_b128 v7, v[{DO+4*j}:{DO+4*j+3}] offset:{j*1024}")
    e("s_waitcnt lgkmcnt(0)")
    e("s_barrier")
    for k in range(8):
        a, sp = k >> 1, k & 1
        e(f"ds_read_b128 v[{64+4*k}:{67+4*k}], v8 offset:{a*8192 + sp*512}")
    e("s_waitcnt lgkmcnt(6)")
    for r in range(4): e(f"v_add_f32 v{64+r}, v{64+r}, v{68+r}")
    e("s_waitcnt lgkmcnt(4)")
    for r in range(4): e(f"v_add_f32 v{72+r}, v{72+r}, v{76+r}")
    e("s_waitcnt lgkmcnt(2)")
    for r in range(4): e(f"v_add_f32 v{80+r}, v{80+r}, v{84+r}")
    for r in range(4): e(f"v_add_f32 v{64+r}, v{64+r}, v{72+r}")
    e("s_waitcnt lgkmcnt(0)")
    for r in range(4): e(f"v_add_f32 v{88+r}, v{88+r}, v{92+r}")
    for r in range(4): e(f"v_add_f32 v{80+r}, v{80+r}, v{88+r}")
    for r in range(4): e(f"v_add_f32 v{64+r}, v{64+r}, v{80+r}")
    for r in range(4): e(f"v_min_u32 v{64+r}, -2, v{64+r}")
    e(f"buffer_store_dwordx4 v[64:67], v12, {SRD_WS}, s60 offen sc1")
e("s_cmp_lg_u32 s31, 0")
e("s_cbranch_scc1 L_end")
if not P["s2bulk"]: stamp(16)
e("s_and_b32 s55, s2, 1")
e("s_lshl_b32 s56, s4, 1")
e("s_add_u32 s56, s56, s55")
e("s_lshl_b32 s56, s56, 18")
e("s_bfe_u32 s57, s2, 0x60001")
e("s_lshl_b32 s58, s57, 12")
e("s_add_u32 s56, s56, s58")
e(f"s_add_u32 s56, s56, {WS_RP}")
e("s_mov_b32 s44, s20"); e("s_mov_b32 s45, s21"); e("s_mov_b32 s46, 16384"); e("s_mov_b32 s47, 0x20000")
e("s_lshl_b32 s58, s55, 13")
e("s_lshl_b32 s59, s4, 10")
e("s_add_u32 s58, s58, s59")
e("s_lshl_b32 s59, s57, 4")
e("s_add_u32 s58, s58, s59")
e("v_lshlrev_b32 v8, 1, v0")
if P["pipe"]:
    def iss(b):
        for t in range(4):
            e(f"buffer_load_dwordx4 v[{b+4*t}:{b+4*t+3}], {V_L16}, {SRD_WS}, s56 offen offset:{t*1024} sc1")
    pipe_poll(4, iss, 16, [160 + 16*k for k in range(P["pipe"])], P["rthr"], P["osleep"])
else:
    lp, ld = uid("Lp"), uid("Ld")
    lab(lp)
    for t in range(4):
        e(f"buffer_load_dwordx4 v[{16+4*t}:{19+4*t}], {V_L16}, {SRD_WS}, s56 offen offset:{t*1024} sc1")
    e("s_waitcnt vmcnt(0)")
    e("v_max3_u32 v32, v16, v17, v18")
    e("v_max3_u32 v33, v19, v20, v21")
    e("v_max3_u32 v32, v32, v22, v23")
    e("v_max3_u32 v33, v33, v24, v25")
    e("v_max3_u32 v32, v32, v26, v27")
    e("v_max3_u32 v33, v33, v28, v29")
    e("v_max3_u32 v32, v32, v30, v31")
    e("v_max_u32 v32, v32, v33")
    e("v_cmp_eq_u32 vcc, -1, v32")
    e("s_mov_b64 exec, vcc")
    e(f"s_cbranch_execz {ld}")
    budget_check()
    if P["osleep"]: e(f"s_sleep {P['osleep']}")
    e(f"s_branch {lp}")
    lab(ld)
    e("s_mov_b64 exec, -1")
stamp(17)
for r in range(4): e(f"v_add_f32 v{16+r}, v{16+r}, v{20+r}")
for r in range(4): e(f"v_add_f32 v{24+r}, v{24+r}, v{28+r}")
for r in range(4): e(f"v_add_f32 v{16+r}, v{16+r}, v{24+r}")
e("s_nop 1")
for r in range(4): e(f"v_add_f32_dpp v{20+r}, v{16+r}, v{16+r} row_ror:8 row_mask:0xf bank_mask:0xf")
for r in range(4): e(f"v_mov_b32 v{24+r}, v{20+r}")
e("s_nop 1")
for r in range(4): e(f"v_permlane32_swap_b32 v{20+r}, v{24+r}")
e("s_nop 1")
for r in range(4): e(f"v_add_f32 v{20+r}, v{20+r}, v{24+r}")
for r in range(4): e(f"v_mov_b32 v{24+r}, v{20+r}")
e("s_nop 1")
for r in range(4): e(f"v_permlane16_swap_b32 v{20+r}, v{24+r}")
e("s_nop 1")
for r in range(4): e(f"v_add_f32 v{20+r}, v{20+r}, v{24+r}")
for r in range(4): e(f"v_cvt_pk_bf16_f32 v{20+r}, v{20+r}, v{20+r}")
e("s_mov_b64 exec, 0xff")
e("s_add_u32 s59, s58, 4096")
for r in range(4):
    e(f"buffer_store_short v{20+r}, v8, {SRD_X}, {'s58' if r < 2 else 's59'} offen offset:{(r&1)*2048}")
e("s_and_b32 s55, s2, 127")
e("s_cmp_lg_u32 s55, 0")
lfin = uid("Lf")
e(f"s_cbranch_scc1 {lfin}")
e("s_mov_b64 exec, 1")
e("v_mov_b32 v24, s50")
e("v_mov_b32 v25, s51")
e("v_mov_b32 v26, 0")
e("s_lshl_b32 s58, s4, 7")
e(f"buffer_store_dwordx2 v[24:25], v26, {SRD_WS}, s58 offen sc1")
lab(lfin)
if P["dspan"]:
    e("s_waitcnt vmcnt(0)")
    e("s_memrealtime s[64:65]")
    e("s_mov_b32 s44, s22"); e("s_mov_b32 s45, s23"); e("s_mov_b32 s46, 256"); e("s_mov_b32 s47, 0x20000")
    e("s_waitcnt lgkmcnt(0)")
    e("s_mov_b64 exec, 1")
    e("s_not_b32 s66, s70")
    e("v_mov_b32 v24, s64")
    e("v_mov_b32 v25, s66")
    e("v_mov_b32 v26, 0")
    e("buffer_atomic_umax v24, v26, s[44:47], 0 offen")
    e("buffer_atomic_umax v25, v26, s[44:47], 0 offen offset:4")
    e("v_mov_b32 v24, s70")
    e("buffer_atomic_umax v24, v26, s[44:47], 0 offen offset:8")
    e("s_not_b32 s66, s64")
    e("v_mov_b32 v25, s66")
    e("buffer_atomic_umax v25, v26, s[44:47], 0 offen offset:12")
if NST:
    e("s_mov_b64 exec, -1")
    e("s_waitcnt vmcnt(0)")
    stamp(18)
lab("L_end")
e("s_endpgm")

ftr = f""".section .rodata,"a"
.p2align 6
.amdhsa_kernel {NAME}_kernel
  .amdhsa_next_free_vgpr 256
  .amdhsa_next_free_sgpr 102
  .amdhsa_accum_offset 256
  .amdhsa_group_segment_fixed_size 0
  .amdhsa_kernarg_size 104
  .amdhsa_user_sgpr_count 2
  .amdhsa_user_sgpr_kernarg_segment_ptr 1
  .amdhsa_system_sgpr_workgroup_id_x 1
.end_amdhsa_kernel
"""
open(out, "w").write(hdr + "\n" + "\n".join(L) + "\n" + ftr)
```

```python
import sys

out = sys.argv[1]
P = dict(cwarm=0, s2bulk=1, woprio=3, wopace=0, noclr=0, ilv=0, mimic=1, remap=0, rmul=5, warm=1, dspan=0, wothr=4, pipe=4, othr=24, rthr=32, pgap=2, psw=64, pace2=0, dbg=0, noswz=0, qprobe=0, smask=0, qdelay=32, osleep=2, qsleep=12, pace=8, stamps=0, pol="nt", wpol="nt", budget=1 << 22, wolate=2)
for a in sys.argv[2:]:
    k, v = a.split("=")
    P[k] = v if k in ("pol", "wpol") else int(v, 0)
NAME = "concat_heads__sliding_block_cached__sliding_block_cached__decode"
pol = "".join(" " + x for x in P["pol"].split("+") if x != "none")
wpol = "".join(" " + x for x in P["wpol"].split("+") if x != "none")
NST = P["stamps"]
NW_ = 2 if P["warm"] else 0
STAMPOFF = 200 << 20

WS_E = 0x0
WS_FL = 0x1000
WS_ST = 0x2000
WS_OP = 0x10000
WS_QP = 0x100000
WS_RP = 0x200000
WS_SIZE = 0x300000

L_K = 0
L_RR = 0
L_QR = 131072
L_PL = 131072
L_OR = 147456
L_QL = 155648
L_SL = 156672
L_FW = 156800
L_CF = 156928
CF_QR, CF_QST, CF_QL, CF_KL, CF_VI, CF_P, CF_SL, CF_GO = [16 * i for i in range(8)]
LDS_BYTES = 157184 + 128

L = []
def e(s): L.append("    " + s)
def lab(s): L.append(s + ":")
def cmt(s): L.append("    ; " + s)
_uid = [0]
def uid(p="L"):
    _uid[0] += 1
    return f"{p}_{_uid[0]}"

S_WG, S_WAVE, S_BR = "s2", "s3", "s4"
S_HKV, S_B, S_SPLIT, S_C, S_GRP, S_ROLE = "s26", "s27", "s28", "s29", "s30", "s31"
SRD_A, SRD_B, SRD_WS, SRD_X = "s[32:35]", "s[36:39]", "s[40:43]", "s[44:47]"
S_SELLO, S_SELHI = "s48", "s49"
S_TAG0, S_TAG1 = "s50", "s51"
S_BUD = "s52"
S_HI, S_LO = "s53", "s54"

V_LANE = "v0"
V_CF = "v1"
V_G = "v2"
V_C = "v3"
V_ONE = "v4"
V_L16 = "v5"

TMP = dict(st=250, w=244, pp=248)
def stamp(idx):
    if not NST: return
    if P["smask"] and not (P["smask"] >> idx) & 1: return
    t = TMP["st"]
    e("s_memrealtime s[64:65]")
    e("s_waitcnt lgkmcnt(0)")
    e("s_mov_b64 s[66:67], exec")
    e("s_mov_b64 exec, 1")
    e(f"v_mov_b32 v{t}, s64")
    e(f"v_mov_b32 v{t+1}, s65")
    e(f"v_mov_b32 v{t+2}, {idx*8}")
    e(f"buffer_store_dwordx2 v[{t}:{t+1}], v{t+2}, s[72:75], s68 offen")
    e("s_mov_b64 exec, s[66:67]")

def stamp_if_role(role, idx):
    if not NST: return
    if P["smask"] and not (P["smask"] >> idx) & 1: return
    l = uid("Lst")
    e(f"s_cmp_lg_u32 {S_ROLE}, {role}")
    e(f"s_cbranch_scc1 {l}")
    stamp(idx)
    lab(l)

def budget_check():
    e(f"s_sub_u32 {S_BUD}, {S_BUD}, 1")
    e("s_cbranch_scc1 L_end")

def lds_wait4(off, t="v[244:247]"):
    l, d = uid("Lw"), uid("Ld")
    lab(l)
    e(f"ds_read_b128 v[244:247], {V_CF} offset:{off}")
    e("s_waitcnt lgkmcnt(0)")
    e("v_and_b32 v244, v244, v245")
    e("v_and_b32 v246, v246, v247")
    e("v_and_b32 v244, v244, v246")
    e("s_nop 0")
    e("v_readfirstlane_b32 s55, v244")
    e("s_cmp_eq_u32 s55, 1")
    e(f"s_cbranch_scc1 {d}")
    budget_check()
    e("s_sleep 1")
    e(f"s_branch {l}")
    lab(d)

def lds_wait1(vaddr, off):
    l, d = uid("Lw"), uid("Ld")
    lab(l)
    e(f"ds_read_b32 v{TMP['w']}, {vaddr} offset:{off}")
    e("s_waitcnt lgkmcnt(0)")
    e(f"v_readfirstlane_b32 s55, v{TMP['w']}")
    e("s_cmp_eq_u32 s55, 1")
    e(f"s_cbranch_scc1 {d}")
    budget_check()
    e("s_sleep 1")
    e(f"s_branch {l}")
    lab(d)

def lds_set(vaddr, off):
    e(f"ds_write_b32 {vaddr}, {V_ONE} offset:{off}")


def pipe_poll(nload, issue, final, sets, slow_thresh, slow_sleep, pre=None):
    N = len(sets)
    nreg = 4 * nload
    ld = uid("Ld")
    def check(base, mask):
        e(f"s_mov_b64 exec, {mask}")
        regs = [f"v{base+i}" for i in range(nreg)]
        e(f"v_max3_u32 v{TMP['pp']}, {regs[0]}, {regs[1]}, {regs[2]}")
        rest = regs[3:]
        while len(rest) >= 2:
            e(f"v_max3_u32 v{TMP['pp']}, v{TMP['pp']}, {rest[0]}, {rest[1]}"); rest = rest[2:]
        if rest: e(f"v_max_u32 v{TMP['pp']}, v{TMP['pp']}, {rest[0]}")
        e(f"v_cmp_ne_u32 vcc, -1, v{TMP['pp']}")
        e("s_and_b64 exec, vcc, s[76:77]")
        for i in range(nreg): e(f"v_mov_b32 v{final+i}, v{base+i}")
        e("s_andn2_b64 s[76:77], s[76:77], exec")
        e(f"s_cbranch_scc0 {ld}")
    e("s_mov_b64 s[76:77], -1")
    ls, lf, l1 = uid("Lsl"), uid("Lfa"), uid("L1")
    if pre is not None:
        e("s_mov_b64 s[78:79], -1")
        issue(sets[0])
        pre()
        e(f"s_branch {l1}")
    lab(ls)
    e("s_mov_b64 exec, s[76:77]")
    e("s_mov_b64 s[78:79], s[76:77]")
    issue(sets[0])
    lab(l1)
    e("s_waitcnt vmcnt(0)")
    check(sets[0], "s[78:79]")
    e("s_bcnt1_i32_b64 s55, s[76:77]")
    e(f"s_cmp_le_u32 s55, {slow_thresh}")
    e(f"s_cbranch_scc1 {lf}")
    budget_check()
    if slow_sleep: e(f"s_sleep {slow_sleep}")
    e(f"s_branch {ls}")
    lab(lf)
    for k in range(N - 1):
        e("s_mov_b64 exec, s[76:77]")
        e(f"s_mov_b64 s[{78+2*k}:{79+2*k}], s[76:77]")
        issue(sets[k])
        if P["pgap"]: e(f"s_sleep {P['pgap']}")
    lp = uid("Lp")
    lab(lp)
    for k in range(N):
        kk = (k + N - 1) % N
        e("s_mov_b64 exec, s[76:77]")
        e(f"s_mov_b64 s[{78+2*kk}:{79+2*kk}], s[76:77]")
        issue(sets[kk])
        e(f"s_waitcnt vmcnt({(N-1)*nload})")
        check(sets[k], f"s[{78+2*k}:{79+2*k}]")
    budget_check()
    e(f"s_branch {lp}")
    lab(ld)
    e("s_mov_b64 exec, -1")

def perms_block(src, dst, plist=range(4)):
    for p in plist:
        for jj in range(4):
            a = src + 4 * (2 * p) + jj
            b = src + 4 * (2 * p + 1) + jj
            e(f"v_perm_b32 v{dst + 4*(2*jj) + p}, v{b}, v{a}, {S_SELLO}")
            e(f"v_perm_b32 v{dst + 4*(2*jj+1) + p}, v{b}, v{a}, {S_SELHI}")


def wo_addr(vreg):
    e("s_lshl_b32 s62, s26, 9")
    e("s_and_b32 s63, s31, 1")
    e("s_lshl_b32 s63, s63, 6")
    e("s_add_u32 s62, s62, s63")
    e("s_lshl_b32 s63, s53, 1")
    e("s_add_u32 s62, s62, s63")
    e("s_lshr_b32 s63, s31, 1")
    e("s_add_u32 s62, s62, s63")
    e("s_lshl_b32 s62, s62, 10")
    e("s_lshl_b32 s63, s54, 8")
    e("s_add_u32 s62, s62, s63")
    e(f"v_lshlrev_b32 {vreg}, 14, {V_G}")
    e(f"v_lshl_add_u32 {vreg}, {V_C}, 4, {vreg}")
def rp_addr(vreg):
    e("s_and_b32 s58, s31, 1")
    e("s_lshl_b32 s59, s4, 1")
    e("s_add_u32 s59, s59, s58")
    e("s_lshl_b32 s60, s59, 18")
    e("s_lshl_b32 s59, s54, 16")
    e("s_add_u32 s60, s60, s59")
    e("s_lshl_b32 s59, s26, 2")
    e("s_add_u32 s59, s59, s53")
    e("s_lshl_b32 s59, s59, 7")
    e("s_add_u32 s60, s60, s59")
    e("s_lshr_b32 s59, s31, 1")
    e("s_lshl_b32 s59, s59, 6")
    e("s_add_u32 s60, s60, s59")
    e(f"s_add_u32 s60, s60, {WS_RP}")
    e(f"v_lshlrev_b32 {vreg}, 12, {V_C}")
    e(f"v_lshl_add_u32 {vreg}, {V_G}, 4, {vreg}")
def op_addr():
    e("v_and_b32 v9, 7, v0")
    e("v_lshlrev_b32 v9, 11, v9")
    e(f"v_lshrrev_b32 v10, 3, {V_C}")
    e("v_lshl_add_u32 v9, v10, 10, v9")
    e(f"v_lshl_add_u32 v9, {V_G}, 4, v9")
    e("s_lshl_b32 s58, s30, 14")
    e("s_lshl_b32 s59, s53, 8")
    e("s_add_u32 s58, s58, s59")
    e("s_lshl_b32 s59, s31, 6")
    e("s_add_u32 s58, s58, s59")
    e(f"s_add_u32 s58, s58, {WS_OP}")
def stage2(WO, FO, DO, vrp, nwait):
    def wo_perms():
        e(f"s_waitcnt vmcnt({nwait})")
        perms_block(WO, FO)
        stamp_if_role(0, 14)
    pipe_poll(1, lambda b: e(f"buffer_load_dwordx4 v[{b}:{b+3}], v9, {SRD_WS}, s58 offen sc1"),
              16, [32 + 4*k for k in range(P["pipe"])], P["othr"], P["osleep"], pre=wo_perms)
    stamp_if_role(0, 15)
    e("s_nop 3")
    for j in range(8):
        e(f"v_mfma_f32_16x16x32_bf16 v[{DO+4*j}:{DO+4*j+3}], v[16:19], v[{FO+4*j}:{FO+4*j+3}], 0")
    e("s_lshl_b32 s55, s31, 13")
    e(f"v_add_u32 v7, s55, {V_L16}")
    e("s_lshr_b32 s55, s31, 1")
    e("s_lshl_b32 s55, s55, 12")
    e("s_and_b32 s56, s31, 1")
    e("s_lshl_b32 s56, s56, 8")
    e("s_add_u32 s55, s55, s56")
    e(f"v_lshlrev_b32 v8, 10, {V_G}")
    e(f"v_lshl_add_u32 v8, {V_C}, 4, v8")
    e("v_add_u32 v8, s55, v8")
    for j in range(8):
        e(f"ds_write_b128 v7, v[{DO+4*j}:{DO+4*j+3}] offset:{j*1024}")
    e("s_waitcnt lgkmcnt(0)")
    e("s_barrier")
    for k in range(8):
        a, sp = k >> 1, k & 1
        e(f"ds_read_b128 v[{64+4*k}:{67+4*k}], v8 offset:{a*8192 + sp*512}")
    e("s_waitcnt lgkmcnt(6)")
    for r in range(4): e(f"v_add_f32 v{64+r}, v{64+r}, v{68+r}")
    e("s_waitcnt lgkmcnt(4)")
    for r in range(4): e(f"v_add_f32 v{72+r}, v{72+r}, v{76+r}")
    e("s_waitcnt lgkmcnt(2)")
    for r in range(4): e(f"v_add_f32 v{80+r}, v{80+r}, v{84+r}")
    for r in range(4): e(f"v_add_f32 v{64+r}, v{64+r}, v{72+r}")
    e("s_waitcnt lgkmcnt(0)")
    for r in range(4): e(f"v_add_f32 v{88+r}, v{88+r}, v{92+r}")
    for r in range(4): e(f"v_add_f32 v{80+r}, v{80+r}, v{88+r}")
    for r in range(4): e(f"v_add_f32 v{64+r}, v{64+r}, v{80+r}")
    for r in range(4): e(f"v_min_u32 v{64+r}, -2, v{64+r}")
    e(f"buffer_store_dwordx4 v[64:67], {vrp}, {SRD_WS}, s60 offen sc1")
    stamp_if_role(0, 16)

hdr = f"""; fused sliding-window GQA decode attention (two branches), one persistent launch of 256 workgroups
; @launch grid=(256,1,1) block=(512,1,1) lds={LDS_BYTES}
.amdgcn_target "amdgcn-amd-amdhsa--gfx950"
.text
.globl {NAME}_kernel
.p2align 8
.type {NAME}_kernel,@function
{NAME}_kernel:"""

e("s_cmp_ge_u32 s2, 256")
e("s_cbranch_scc1 L_end")
if NST or P["dspan"]: e("s_memrealtime s[70:71]")
if NST: e(f"s_mul_i32 s68, s2, {NST*8}")
if P["remap"] == 1:
    e("s_and_b32 s4, s2, 7")
    e("s_lshl_b32 s4, s4, 5")
    e("s_bfe_u32 s5, s2, 0x10003")
    e("s_lshl_b32 s5, s5, 4")
    e("s_lshr_b32 s2, s2, 4")
    e("s_or_b32 s2, s2, s4")
    e("s_or_b32 s2, s2, s5")
e("s_lshr_b32 s4, s2, 7")
e("s_mul_i32 s5, s4, 40")
e("s_add_u32 s6, s0, s5")
e("s_addc_u32 s7, s1, 0")
e("s_load_dwordx8 s[8:15], s[6:7], 0")
e("s_load_dwordx2 s[16:17], s[6:7], 32")
e("s_load_dwordx4 s[20:23], s[0:1], 80")
e("s_load_dwordx2 s[24:25], s[0:1], 96")
e("v_lshrrev_b32 v1, 6, v0")
e("v_and_b32 v0, 63, v0")
e("s_bfe_u32 s26, s2, 0x30004")
e("v_readfirstlane_b32 s3, v1")
e("s_bfe_u32 s27, s2, 0x30001")
e("s_and_b32 s28, s2, 1")
e("s_and_b32 s29, s2, 15")
e("s_lshr_b32 s30, s2, 4")
e("s_lshr_b32 s53, s29, 2")
e("s_and_b32 s54, s29, 3")
e("s_and_b32 s31, s3, 3")
e("s_mov_b32 s48, 0x05040100")
e("s_mov_b32 s49, 0x07060302")
e(f"s_mov_b32 s52, {P['budget']}")
e(f"v_mov_b32 {V_CF}, {L_CF}")
e(f"v_lshrrev_b32 {V_G}, 4, v0")
e(f"v_and_b32 {V_C}, 15, v0")
e(f"v_mov_b32 {V_ONE}, 1")
e(f"v_lshlrev_b32 {V_L16}, 4, v0")
e("s_lshl_b32 s55, s31, 2")
e(f"v_add_u32 v6, s55, {V_CF}")
e("s_waitcnt lgkmcnt(0)")
e("s_mov_b32 s40, s24"); e("s_mov_b32 s41, s25"); e(f"s_mov_b32 s42, {WS_SIZE}"); e("s_mov_b32 s43, 0x20000")
if NST:
    e(f"s_add_u32 s72, s24, {STAMPOFF}")
    e("s_addc_u32 s73, s25, 0")
    e(f"s_mov_b32 s74, {256*NST*8}")
    e("s_mov_b32 s75, 0x20000")
e("s_cmp_lt_u32 s3, 4")
e("s_cbranch_scc1 L_aux")

if P["s2bulk"]: TMP.update(st=12, w=8, pp=11)
NWO = 8 if P["s2bulk"] else 0
WOB = 224
VB = 64
FB = 192
AC = 16
PB = 48
e("s_mov_b32 s32, s10"); e("s_mov_b32 s33, s11"); e("s_mov_b32 s34, 0x4000000"); e("s_mov_b32 s35, 0x20000")
e("s_mov_b32 s36, s12"); e("s_mov_b32 s37, s13"); e("s_mov_b32 s38, 0x4000000"); e("s_mov_b32 s39, 0x20000")
e("s_lshl_b32 s56, s27, 23")
e("s_lshl_b32 s57, s26, 20")
e("s_add_u32 s56, s56, s57")
e("s_lshl_b32 s57, s28, 17")
e("s_add_u32 s56, s56, s57")
e("s_lshl_b32 s57, s31, 15")
if P["ilv"]:
    e("s_lshl_b32 s58, s31, 10")
    e("s_add_u32 s56, s56, s58")
else:
    e("s_add_u32 s56, s56, s57")
e(f"s_add_u32 s56, s56, {3072*256}")
e(f"v_lshlrev_b32 v12, 2, {V_G}")
e(f"v_lshlrev_b32 v13, 8, {V_G}")
for ii in range(4):
    e(f"v_add_u32 v14, {ii}, v12")
    e(f"v_xor_b32 v14, v14, {V_C}") if not P["noswz"] else e(f"v_mov_b32 v14, {V_C}")
    e(f"v_lshl_add_u32 v{8+ii}, v14, 4, v13")
PACE = P["pace"]
n_issued = 0
def pre_issue():
    global n_issued
    if n_issued == min(PACE, 8) if PACE else n_issued == 8:
        e("s_barrier")
        if NST and (P["smask"] >> 20) & 1:
            e(f"s_waitcnt vmcnt({n_issued - 1})")
            stamp_if_role(0, 20)
    pc = PACE if n_issued < P["psw"] else P["pace2"]
    if pc and n_issued >= pc:
        e(f"s_waitcnt vmcnt({pc-1})")
    n_issued += 1
kl_done = False
e(f"s_mul_i32 s61, s2, {P['rmul']}")
if not P["ilv"]:
    e("s_lshl_b32 s62, s31, 3")
    e("s_add_u32 s61, s61, s62")
CSH = 12 if P["ilv"] else 10
e(f"s_lshl_b32 s61, s61, {CSH}")
if P["warm"]:
    e("v_mov_b32 v15, 0")
    e(f"buffer_load_dword v15, v15, {SRD_B}, s56 offen")
def rotaddr(n):
    e(f"s_add_u32 s58, s61, {n << CSH}")
    e(f"s_and_b32 s58, s58, {31 << CSH}")
    e("s_add_u32 s58, s58, s56")
for n in range(32):
    e(f"s_add_u32 m0, s57, {n*1024}")
    rotaddr(n)
    pre_issue()
    e(f"buffer_load_dwordx4 v{8+(n&3)}, {SRD_A}, s58 offen{pol} lds")
for n in range(32):
    rotaddr(n)
    pre_issue()
    pc = PACE if (n_issued - 1) < P["psw"] else P["pace2"]
    if pc and not kl_done and (n_issued - 1) - pc >= 31:
        lds_set("v6", CF_KL)
        kl_done = True
        stamp_if_role(0, 8)
    r = VB + 4 * n
    e(f"buffer_load_dwordx4 v[{r}:{r+3}], {V_L16}, {SRD_B}, s58 offen{pol}")
if P["wolate"] != 3: lds_set("v6", CF_VI)
if not kl_done:
    e("s_waitcnt vmcnt(32)")
    lds_set("v6", CF_KL)
if P["s2bulk"]:
    e("s_mov_b32 s32, s16"); e("s_mov_b32 s33, s17"); e("s_mov_b32 s34, 0x400000"); e("s_mov_b32 s35, 0x20000")
    wo_addr("v7")
    for i in range(8):
        dd, h = i >> 2, i & 3
        e(f"s_add_u32 s63, s62, {(h*128 + 8*dd)*1024}")
        if P["wopace"]: pre_issue()
        e(f"buffer_load_dwordx4 v[{WOB+4*i}:{WOB+4*i+3}], v7, {SRD_A}, s63 offen{wpol}")
nst_extra = 0
if NST:
    stamp_if_role(0, 9)
if not P["dbg"]: lds_wait1("v6", CF_P)
stamp_if_role(0, 10)
e("s_lshl_b32 s55, s31, 12")
e(f"v_add_u32 v7, s55, {V_L16}")
e(f"v_add_u32 v7, {L_PL}, v7")
for T in range(4):
    e(f"ds_read_b128 v[{PB+4*T}:{PB+4*T+3}], v7 offset:{T*1024}")
for T in range(4):
    src = VB + 32 * T
    if T < 3:
        e(f"s_waitcnt vmcnt({24 - 8*T + NWO})")
        if P["wolate"] == 3 and P["wothr"] == 24 - 8*T: lds_set("v6", CF_VI)
        perms_block(src, FB)
    else:
        for p in range(4):
            e(f"s_waitcnt vmcnt({6 - 2*p + NWO})")
            if P["wolate"] == 3 and P["wothr"] == 6 - 2*p: lds_set("v6", CF_VI)
            perms_block(src, FB, [p])
    if T == 0: e("s_waitcnt lgkmcnt(0)")
    e("s_nop 1")
    for j in range(8):
        c = "0" if T == 0 else f"v[{AC+4*j}:{AC+4*j+3}]"
        e(f"v_mfma_f32_16x16x32_bf16 v[{AC+4*j}:{AC+4*j+3}], v[{PB+4*T}:{PB+4*T+3}], v[{FB+4*j}:{FB+4*j+3}], {c}")
stamp_if_role(0, 11)
if P["dbg"]: e("s_branch L_end")
e("s_lshl_b32 s55, s31, 11")
e(f"v_add_u32 v7, s55, {V_L16}")
e(f"v_add_u32 v7, {L_OR}, v7")
e("s_mov_b64 exec, 0xffff")
e("s_nop 4")
for j in range(8):
    e(f"ds_write_b128 v7, v[{AC+4*j}:{AC+4*j+3}] offset:{j*256}")
e("s_mov_b64 exec, -1")
e("s_waitcnt lgkmcnt(0)")
e("s_barrier")
e("s_cmp_ge_u32 s31, 2")
e("s_cbranch_scc1 L_end" if not P["s2bulk"] else "s_cbranch_scc1 L_s2x")
e("s_lshl_b32 s55, s31, 10")
e(f"v_add_u32 v7, s55, {V_L16}")
e(f"v_add_u32 v8, {L_OR}, v7")
e(f"v_mov_b32 v9, {L_FW}")
for w in range(4):
    e(f"ds_read_b128 v[{16+4*w}:{19+4*w}], v8 offset:{w*2048}")
    e(f"ds_read_b128 v[{32+4*w}:{35+4*w}], v9 offset:{w*16}")
e("s_lshl_b32 s55, s2, 10")
e(f"s_add_u32 s55, s55, {WS_OP}")
e("v_lshrrev_b32 v7, 1, v7")
e("s_waitcnt lgkmcnt(6)")
for h in range(4): e(f"v_mul_f32 v{48+h}, v{16+h}, v{32+h}")
for w in range(1, 4):
    e(f"s_waitcnt lgkmcnt({6-2*w})")
    for h in range(4): e(f"v_fmac_f32 v{48+h}, v{16+4*w+h}, v{32+4*w+h}")
e("v_cvt_pk_bf16_f32 v48, v48, v49")
e("v_cvt_pk_bf16_f32 v49, v50, v51")
e("v_min_u32 v48, -2, v48")
e("v_min_u32 v49, -2, v49")
e(f"buffer_store_dwordx2 v[48:49], v7, {SRD_WS}, s55 offen sc1")
stamp_if_role(0, 12)
if P["s2bulk"]:
    e("s_branch L_s2")
    lab("L_s2x")
    e("v_mov_b32 v14, 0")
    e(f"buffer_load_dword v14, v14, {SRD_WS}, 0 offen")
    lab("L_s2")
    rp_addr("v15")
    op_addr()
    stage2(WOB, FB, 128, "v15", 2)
    TMP.update(st=250, w=244, pp=248)
e("s_branch L_end")

lab("L_aux")
e("s_setprio 3")
stamp_if_role(0, 19)
if P["cwarm"]:
    lcw = uid("Lcw")
    e(f"s_cmp_lg_u32 s31, {P['cwarm'] - 1}")
    e(f"s_cbranch_scc1 {lcw}")
    e("s_getpc_b64 s[56:57]")
    lab("L_pc")
    e(f"s_sub_u32 s56, s56, L_pc - {NAME}_kernel")
    e("s_subb_u32 s57, s57, 0")
    e("v_lshlrev_b32 v8, 7, v0")
    e(f"v_cmp_gt_u32 vcc, L_code_end - {NAME}_kernel, v8")
    e("s_and_saveexec_b64 s[58:59], vcc")
    e("global_load_dword v242, v8, s[56:57]")
    e("v_add_u32 v8, 8192, v8")
    e(f"v_cmp_gt_u32 vcc, L_code_end - {NAME}_kernel, v8")
    e("s_and_b64 exec, exec, vcc")
    lc2 = uid("Lcw")
    e(f"s_cbranch_execz {lc2}")
    e("global_load_dword v243, v8, s[56:57]")
    e("v_add_u32 v8, 8192, v8")
    e(f"v_cmp_gt_u32 vcc, L_code_end - {NAME}_kernel, v8")
    e("s_and_b64 exec, exec, vcc")
    e(f"s_cbranch_execz {lc2}")
    e("global_load_dword v239, v8, s[56:57]")
    lab(lc2)
    e("s_mov_b64 exec, -1")
    lab(lcw)
WQ = 64
FQ = 96
DQ = 128
XF = 16
e("s_mov_b32 s32, s14"); e("s_mov_b32 s33, s15"); e("s_mov_b32 s34, 0x400000"); e("s_mov_b32 s35, 0x20000")
e("s_mov_b32 s36, s16"); e("s_mov_b32 s37, s17"); e("s_mov_b32 s38, 0x400000"); e("s_mov_b32 s39, 0x20000")
e("s_mov_b32 s44, s8"); e("s_mov_b32 s45, s9"); e("s_mov_b32 s46, 8192"); e("s_mov_b32 s47, 0x20000")
e("s_lshl_b32 s56, s28, 8")
e("s_lshl_b32 s57, s31, 6")
e("s_add_u32 s56, s56, s57")
e("s_lshl_b32 s57, s56, 13")
e("s_lshl_b32 s58, s26, 10")
e("s_add_u32 s57, s57, s58")
e("s_lshl_b32 s58, s27, 7")
e("s_add_u32 s57, s57, s58")
e(f"v_lshrrev_b32 v10, 3, {V_C}")
e("v_and_b32 v11, 7, v0")
e(f"v_lshlrev_b32 v8, 16, {V_G}")
e("v_lshl_add_u32 v8, v10, 18, v8")
e("v_lshl_add_u32 v8, v11, 4, v8")
for i in range(8):
    e(f"s_add_u32 s58, s57, {i*8192}")
    e(f"buffer_load_dwordx4 v[{WQ+4*i}:{WQ+4*i+3}], v8, {SRD_A}, s58 offen{wpol}")
e("v_lshlrev_b32 v9, 10, v11")
e(f"v_lshl_add_u32 v9, {V_G}, 4, v9")
e("v_lshl_add_u32 v9, v10, 6, v9")
e("s_lshl_b32 s58, s56, 1")
e(f"buffer_load_dwordx4 v[{XF}:{XF+3}], v9, {SRD_X}, s58 offen")
e("s_lshl_b32 s58, s4, 7")
e("v_mov_b32 v10, 0")
e(f"buffer_load_dwordx2 v[20:21], v10, {SRD_WS}, s58 offen sc1")
e("v_mov_b32 v24, -1"); e("v_mov_b32 v25, -1"); e("v_mov_b32 v26, -1"); e("v_mov_b32 v27, -1")
lz = uid("Lz")
e("s_cmp_lg_u32 s31, 0")
e(f"s_cbranch_scc1 {lz}")
e(f"v_lshl_add_u32 v13, v0, 2, {V_CF}")
e("ds_write_b32 v13, v10")
e("s_waitcnt lgkmcnt(0)")
lab(lz)
e("s_and_b32 s58, s31, 1")
e("s_lshl_b32 s59, s4, 1")
e("s_add_u32 s59, s59, s58")
e("s_lshl_b32 s60, s59, 18")
e("s_lshl_b32 s59, s54, 16")
e("s_add_u32 s60, s60, s59")
e("s_lshl_b32 s59, s26, 2")
e("s_add_u32 s59, s59, s53")
e("s_lshl_b32 s59, s59, 7")
e("s_add_u32 s60, s60, s59")
e("s_lshr_b32 s59, s31, 1")
e("s_lshl_b32 s59, s59, 6")
e("s_add_u32 s60, s60, s59")
e(f"s_add_u32 s60, s60, {WS_RP}")
e(f"v_lshlrev_b32 v12, 12, {V_C}")
e(f"v_lshl_add_u32 v12, {V_G}, 4, v12")
if P["noclr"]: e("s_mov_b64 exec, 1")
e(f"buffer_store_dwordx4 v[24:27], v12, {SRD_WS}, s60 offen sc1")
e("s_lshl_b32 s58, s2, 10")
e("s_lshl_b32 s59, s31, 8")
e("s_add_u32 s58, s58, s59")
e(f"s_add_u32 s58, s58, {WS_OP}")
e("s_mov_b64 exec, 0xffff" if not P["noclr"] else "s_mov_b64 exec, 1")
e(f"buffer_store_dwordx4 v[24:27], {V_L16}, {SRD_WS}, s58 offen sc1")
e("s_mov_b64 exec, -1")
if P["warm"]:
    e("s_lshl_b32 s58, s26, 19")
    e("s_lshl_b32 s59, s31, 17")
    e("s_add_u32 s58, s58, s59")
    e(f"buffer_load_dword v240, v10, {SRD_B}, s58 offen")
    e("s_mov_b32 s80, s20"); e("s_mov_b32 s81, s21"); e("s_mov_b32 s82, 16384"); e("s_mov_b32 s83, 0x20000")
    e("buffer_load_dword v241, v10, s[80:83], 0 offen")
e("s_barrier")
if NST:
    l = uid("Lst")
    e("s_cmp_lg_u32 s31, 0")
    e(f"s_cbranch_scc1 {l}")
    e("v_mov_b32 v250, s70"); e("v_mov_b32 v251, s71"); e("v_mov_b32 v252, 0")
    e("s_mov_b64 exec, 1")
    e("buffer_store_dwordx2 v[250:251], v252, s[72:75], s68 offen")
    e("s_mov_b64 exec, -1")
    e(f"s_waitcnt vmcnt({3+NW_})")
    lab(l)
e(f"s_waitcnt vmcnt({2+NW_})" if not NST else f"s_waitcnt vmcnt({3+NW_})")
if NST:
    l = uid("Lst")
    e("s_cmp_eq_u32 s31, 0")
    e(f"s_cbranch_scc1 {l}")
    e(f"s_waitcnt vmcnt({2+NW_})")
    lab(l)
stamp_if_role(0, 1)
if P["dbg"] == 1: e("s_branch L_end")
perms_block(WQ, FQ)
e("v_readfirstlane_b32 s50, v20")
e("v_readfirstlane_b32 s51, v21")
for j in range(8):
    e(f"v_mfma_f32_16x16x32_bf16 v[{DQ+4*j}:{DQ+4*j+3}], v[{XF}:{XF+3}], v[{FQ+4*j}:{FQ+4*j+3}], 0")
e("s_add_u32 s50, s50, 1")
e("s_addc_u32 s51, s51, 0")
e("s_lshl_b32 s55, s31, 12")
e(f"s_add_u32 s55, s55, {L_QR}")
e(f"v_lshlrev_b32 v7, 7, {V_G}")
e("v_lshl_add_u32 v7, v11, 4, v7")
e("v_add_u32 v7, s55, v7")
e("s_mov_b32 exec_lo, 0x00ff00ff")
e("s_mov_b32 exec_hi, 0xff00ff00")
e("s_nop 1")
for j in range(8):
    e(f"ds_write_b128 v7, v[{DQ+4*j}:{DQ+4*j+3}] offset:{j*512}")
e("s_mov_b64 exec, -1")
e("s_waitcnt lgkmcnt(0)")
lds_set("v6", CF_QR)
e("s_lshl_b32 s55, s31, 10")
e(f"s_add_u32 s55, s55, {L_QR}")
e("v_lshlrev_b32 v7, 2, v0")
e("v_add_u32 v7, s55, v7")
e("v_and_b32 v8, 3, v0")
e("v_lshlrev_b32 v8, 13, v8")
e("v_lshrrev_b32 v9, 5, v0")
e("v_lshl_add_u32 v8, v9, 15, v8")
e("v_bfe_u32 v9, v0, 2, 3")
e("v_lshl_add_u32 v8, v9, 4, v8")
e("s_lshl_b32 s59, s30, 16")
e("s_lshl_b32 s61, s28, 12")
e("s_add_u32 s59, s59, s61")
e("s_lshl_b32 s61, s27, 9")
e("s_add_u32 s59, s59, s61")
e("s_lshl_b32 s61, s31, 7")
e("s_add_u32 s59, s59, s61")
e(f"s_add_u32 s59, s59, {WS_QP}")
e("v_mov_b32 v66, s50")
e("v_mov_b32 v67, s51")
lds_wait4(CF_QR)
for k in range(8):
    a_, s_ = k >> 1, k & 1
    e(f"ds_read2st64_b32 v[{68+2*k}:{69+2*k}], v7 offset0:{16*a_+s_} offset1:{16*a_+s_+2}")
e("s_waitcnt lgkmcnt(0)")
for k in range(4):
    e(f"v_add_f32 v{68+4*k}, v{68+4*k}, v{70+4*k}")
    e(f"v_add_f32 v{69+4*k}, v{69+4*k}, v{71+4*k}")
e("v_add_f32 v68, v68, v72"); e("v_add_f32 v69, v69, v73")
e("v_add_f32 v76, v76, v80"); e("v_add_f32 v77, v77, v81")
e("v_add_f32 v64, v68, v76"); e("v_add_f32 v65, v69, v77")
e(f"buffer_store_dwordx4 v[64:67], v8, {SRD_WS}, s59 offen sc1")
stamp_if_role(0, 2)
if P["dbg"] == 2: e("s_branch L_end")
e("s_lshl_b32 s58, s30, 16")
e("s_lshl_b32 s59, s27, 13")
e("s_add_u32 s58, s58, s59")
e("s_lshl_b32 s59, s31, 10")
e("s_add_u32 s58, s58, s59")
e(f"s_add_u32 s58, s58, {WS_QP}")
e("s_add_u32 s59, s58, 4096")
e("v_lshrrev_b32 v8, 5, v0")
e("v_lshlrev_b32 v8, 7, v8")
e("v_lshl_add_u32 v8, v11, 4, v8")
e("v_bfe_u32 v9, v0, 3, 2")
e("v_lshl_add_u32 v8, v9, 2, v8")
e("s_lshl_b32 s55, s31, 8")
e(f"s_add_u32 s55, s55, {L_QL}")
e("v_add_u32 v8, s55, v8")
if P["qdelay"]: e(f"s_sleep {P['qdelay']}")
if P["qprobe"]:
    e("v_and_b32 v9, 1, v0")
    e("v_lshlrev_b32 v9, 9, v9")
    e("v_lshrrev_b32 v10, 1, v0")
    e("v_lshl_add_u32 v9, v10, 12, v9")
    e("s_mov_b64 exec, 0xf")
    lp, ld = uid("Lp"), uid("Ld")
    lab(lp)
    e(f"buffer_load_dwordx4 v[68:71], v9, {SRD_WS}, s58 offen offset:496 sc1")
    e("s_waitcnt vmcnt(0)")
    e("v_cmp_ne_u64 vcc, v[70:71], v[66:67]")
    e("s_mov_b64 exec, vcc")
    e(f"s_cbranch_execz {ld}")
    budget_check()
    e(f"s_sleep {P['qsleep']}")
    e(f"s_branch {lp}")
    lab(ld)
    e("s_mov_b64 exec, -1")
lp, ld = uid("Lp"), uid("Ld")
lab(lp)
e(f"buffer_load_dwordx4 v[68:71], {V_L16}, {SRD_WS}, s58 offen sc1")
e(f"buffer_load_dwordx4 v[72:75], {V_L16}, {SRD_WS}, s59 offen sc1")
e("s_waitcnt vmcnt(0)")
e("v_cmp_ne_u64 vcc, v[70:71], v[66:67]")
e("v_cmp_ne_u64 s[56:57], v[74:75], v[66:67]")
e("s_or_b64 exec, vcc, s[56:57]")
e(f"s_cbranch_execz {ld}")
budget_check()
e(f"s_sleep {P['qsleep']}")
e(f"s_branch {lp}")
lab(ld)
e("s_mov_b64 exec, -1")
e("v_add_f32 v68, v68, v72"); e("v_add_f32 v69, v69, v73")
e("v_cvt_pk_bf16_f32 v68, v68, v69")
e("ds_write_b32 v8, v68")
lds_set("v6", CF_QST)
e("s_waitcnt lgkmcnt(0)")
lds_set("v6", CF_QL)
stamp_if_role(0, 3)
if P["dbg"] == 3: e("s_branch L_end")
lgo = uid("Lgo")
e("s_cmp_lg_u32 s31, 0")
e(f"s_cbranch_scc1 {lgo}")
lds_wait4(CF_QST)
e("s_lshl_b32 s58, s30, 7")
e(f"s_add_u32 s58, s58, {WS_FL}")
e("s_lshl_b32 s59, s29, 3")
e("v_mov_b32 v22, s59")
e("s_mov_b64 exec, 1")
e(f"buffer_store_dwordx2 v[66:67], v22, {SRD_WS}, s58 offen sc1")
e("s_mov_b64 exec, -1")
lab(lgo)
e(f"v_and_b32 v8, 3, {V_C}")
e("v_lshlrev_b32 v8, 2, v8")
e(f"v_lshrrev_b32 v9, 2, {V_C}")
e("v_add_u32 v8, v8, v9")
e("v_lshlrev_b32 v8, 8, v8")
e("s_lshl_b32 s55, s31, 15")
e("v_add_u32 v8, s55, v8")
for s in range(4):
    e(f"v_add_u32 v9, {4*s}, {V_G}")
    e(f"v_xor_b32 v9, v9, {V_C}")
    e(f"v_lshl_add_u32 v{28+s}, v9, 4, v8")
e(f"v_and_b32 v9, 3, {V_C}")
e("v_lshlrev_b32 v9, 8, v9")
e(f"v_lshl_add_u32 v9, {V_G}, 4, v9")
e(f"v_add_u32 v9, {L_QL}, v9")
lds_wait4(CF_QL)
stamp_if_role(0, 4)
QF = 32
for s in range(4):
    e(f"ds_read_b128 v[{QF+4*s}:{QF+4*s+3}], v9 offset:{s*64}")
lds_wait1("v6", CF_KL)
stamp_if_role(0, 5)
KF = 64
SC = 128
def kread(t):
    b = KF + 16 * (t & 3)
    for s in range(4):
        e(f"ds_read_b128 v[{b+4*s}:{b+4*s+3}], v{28+s} offset:{t*4096}")
kread(0); kread(1)
for t in range(8):
    if t + 2 < 8:
        kread(t + 2)
        e("s_waitcnt lgkmcnt(8)")
    else:
        e(f"s_waitcnt lgkmcnt({4*(7-t)})")
    b = KF + 16 * (t & 3)
    for s in range(4):
        c = "0" if s == 0 else f"v[{SC+4*t}:{SC+4*t+3}]"
        e(f"v_mfma_f32_16x16x32_bf16 v[{SC+4*t}:{SC+4*t+3}], v[{b+4*s}:{b+4*s+3}], v[{QF+4*s}:{QF+4*s+3}], {c}")
import math
CSC = (128 ** -0.5) * math.log2(math.e)
import struct
f2u = lambda x: struct.unpack('<I', struct.pack('<f', x))[0]
if P["mimic"]:
    e(f"s_mov_b32 s58, 0x{f2u(math.log2(math.e)):08x}")
    e(f"s_mov_b32 s59, 0x{f2u(128 ** -0.5):08x}")
    e("s_mov_b32 s57, 0xffff0000")
    e("s_nop 6")
    for k in range(16):
        e(f"v_cvt_pk_bf16_f32 v{64+k}, v{SC+2*k}, v{SC+2*k+1}")
    for k in range(16):
        e(f"v_lshlrev_b32 v{SC+2*k}, 16, v{64+k}")
        e(f"v_and_b32 v{SC+2*k+1}, s57, v{64+k}")
    for k in range(32):
        e(f"v_mul_f32 v{SC+k}, s59, v{SC+k}")
    for k in range(16):
        e(f"v_cvt_pk_bf16_f32 v{64+k}, v{SC+2*k}, v{SC+2*k+1}")
    for k in range(16):
        e(f"v_lshlrev_b32 v{SC+2*k}, 16, v{64+k}")
        e(f"v_and_b32 v{SC+2*k+1}, s57, v{64+k}")
else:
    e(f"s_mov_b32 s58, 0x{f2u(CSC):08x}")
    e("s_nop 7")
e(f"v_max3_f32 v10, v{SC}, v{SC+1}, v{SC+2}")
e(f"v_max3_f32 v11, v{SC+3}, v{SC+4}, v{SC+5}")
for k in range(6, 30, 4):
    e(f"v_max3_f32 v10, v10, v{SC+k}, v{SC+k+1}")
    e(f"v_max3_f32 v11, v11, v{SC+k+2}, v{SC+k+3}")
e(f"v_max3_f32 v10, v10, v{SC+30}, v{SC+31}")
e("v_max_f32 v10, v10, v11")
def xlane(op, v, t):
    e(f"v_mov_b32 {t}, {v}")
    e("s_nop 1")
    e(f"v_permlane32_swap_b32 {v}, {t}")
    e("s_nop 1")
    e(f"{op} {v}, {v}, {t}")
    e(f"v_mov_b32 {t}, {v}")
    e("s_nop 1")
    e(f"v_permlane16_swap_b32 {v}, {t}")
    e("s_nop 1")
    e(f"{op} {v}, {v}, {t}")
xlane("v_max_f32", "v10", "v11")
e("v_mul_f32 v10, s58, v10")
e("v_sub_f32 v13, 0, v10")
for k in range(32):
    e(f"v_fma_f32 v{SC+k}, v{SC+k}, s58, v13")
for k in range(32):
    e(f"v_exp_f32 v{SC+k}, v{SC+k}")
e("s_nop 0")
e(f"v_add_f32 v11, v{SC}, v{SC+1}")
e(f"v_add_f32 v14, v{SC+2}, v{SC+3}")
for k in range(4, 32, 2):
    e(f"v_add_f32 v11, v11, v{SC+k}")
    e(f"v_add_f32 v14, v14, v{SC+k+1}")
e("v_add_f32 v11, v11, v14")
for k in range(16):
    e(f"v_cvt_pk_bf16_f32 v{64+k}, v{SC+2*k}, v{SC+2*k+1}")
e("s_lshl_b32 s55, s31, 12")
e(f"v_add_u32 v7, s55, {V_L16}")
e(f"v_add_u32 v7, {L_PL}, v7")
for T in range(4):
    e(f"ds_write_b128 v7, v[{64+4*T}:{67+4*T}] offset:{T*1024}")
xlane("v_add_f32", "v11", "v14")
e("s_lshl_b32 s55, s31, 5")
e(f"s_add_u32 s55, s55, {L_SL}")
e("v_lshlrev_b32 v8, 3, v0")
e("v_add_u32 v8, s55, v8")
e("s_mov_b64 exec, 0xf")
e("ds_write_b64 v8, v[10:11]")
e("s_mov_b64 exec, -1")
e("s_waitcnt lgkmcnt(0)")
lds_set("v6", CF_P)
lds_set("v6", CF_SL)
stamp_if_role(0, 6)
if P["dbg"] == 4: e("s_branch L_end")
ls3, ls0, lsd = uid("Ls"), uid("Ls"), uid("Ls")
e("s_cmp_eq_u32 s31, 0")
e(f"s_cbranch_scc1 {ls0}")
e("s_cmp_lg_u32 s31, 3")
e(f"s_cbranch_scc1 {lsd}")
lds_wait4(CF_SL)
e("s_mov_b64 exec, 0xffff")
e("v_lshlrev_b32 v8, 3, v0")
e(f"v_add_u32 v8, {L_SL}, v8")
e("ds_read_b64 v[10:11], v8")
e("s_waitcnt lgkmcnt(0)")
e("v_max_f32_dpp v13, v10, v10 row_ror:4 row_mask:0xf bank_mask:0xf")
e("s_nop 1")
e("v_max_f32_dpp v13, v13, v13 row_ror:8 row_mask:0xf bank_mask:0xf")
e("v_sub_f32 v14, v10, v13")
e("v_exp_f32 v14, v14")
e("s_nop 0")
e("v_mul_f32 v14, v14, v11")
e("s_nop 1")
e("v_add_f32_dpp v15, v14, v14 row_ror:4 row_mask:0xf bank_mask:0xf")
e("s_nop 1")
e("v_add_f32_dpp v15, v15, v15 row_ror:8 row_mask:0xf bank_mask:0xf")
e("v_mov_b32 v20, v13")
e("v_mov_b32 v21, v15")
e("v_mov_b32 v22, s50")
e("v_mov_b32 v23, s51")
e("v_and_b32 v9, 3, v0")
e("v_lshlrev_b32 v9, 4, v9")
e("s_lshl_b32 s58, s2, 7")
e(f"s_add_u32 s58, s58, {WS_ST}")
e("s_xor_b32 s59, s58, 128")
e("s_mov_b64 exec, 0xf")
e(f"buffer_store_dwordx4 v[20:23], v9, {SRD_WS}, s58 offen sc1")
e("s_mov_b64 exec, 0xffff")
lp, ld = uid("Lp"), uid("Ld")
lab(lp)
e(f"buffer_load_dwordx4 v[24:27], v9, {SRD_WS}, s59 offen sc1")
e("s_waitcnt vmcnt(0)")
e("v_cmp_ne_u64 vcc, v[26:27], v[22:23]")
e(f"s_cbranch_vccz {ld}")
budget_check()
e("s_sleep 2")
e(f"s_branch {lp}")
lab(ld)
e("v_max_f32 v26, v13, v24")
e("v_sub_f32 v27, v13, v26")
e("v_sub_f32 v20, v24, v26")
e("v_sub_f32 v21, v10, v26")
e("v_exp_f32 v27, v27")
e("v_exp_f32 v20, v20")
e("v_exp_f32 v21, v21")
e("s_nop 0")
e("v_mul_f32 v27, v27, v15")
e("v_fmac_f32 v27, v20, v25")
e("v_rcp_f32 v27, v27")
e("s_nop 0")
e("v_mul_f32 v21, v21, v27")
e("v_lshlrev_b32 v8, 2, v0")
e(f"v_add_u32 v8, {L_FW}, v8")
e("ds_write_b32 v8, v21")
e("s_mov_b64 exec, -1")
e("s_waitcnt lgkmcnt(0)")
stamp(7)
e(f"s_branch {lsd}")
lab(ls0)
e("s_lshl_b32 s58, s4, 10")
e(f"s_add_u32 s58, s58, {WS_FL}")
e("v_mov_b32 v20, s50")
e("v_mov_b32 v21, s51")
lp, ld = uid("Lp"), uid("Ld")
lab(lp)
e(f"buffer_load_dwordx4 v[24:27], {V_L16}, {SRD_WS}, s58 offen sc1")
e("s_waitcnt vmcnt(0)")
e("v_cmp_ne_u64 vcc, v[24:25], v[20:21]")
e("v_cmp_ne_u64 s[56:57], v[26:27], v[20:21]")
e("s_or_b64 vcc, vcc, s[56:57]")
e(f"s_cbranch_vccz {ld}")
budget_check()
e("s_sleep 2")
e(f"s_branch {lp}")
lab(ld)
lab(lsd)
if P["s2bulk"]:
    e("s_barrier")
    e("s_cmp_lg_u32 s31, 0")
    e("s_cbranch_scc1 L_end")
    e("s_barrier")
else:
    if P["wolate"] in (1, 3):
        lds_wait1("v6", CF_VI)
    WO = 64; FO = 96; DO = 128
    e("s_lshl_b32 s56, s26, 9")
    e("s_and_b32 s57, s31, 1")
    e("s_lshl_b32 s57, s57, 6")
    e("s_add_u32 s56, s56, s57")
    e("s_lshl_b32 s57, s53, 1")
    e("s_add_u32 s56, s56, s57")
    e("s_lshr_b32 s57, s31, 1")
    e("s_add_u32 s56, s56, s57")
    e("s_lshl_b32 s56, s56, 10")
    e("s_lshl_b32 s57, s54, 8")
    e("s_add_u32 s56, s56, s57")
    e(f"v_lshlrev_b32 v8, 14, {V_G}")
    e(f"v_lshl_add_u32 v8, {V_C}, 4, v8")
    def wo_loads():
        if P["woprio"] != 3: e(f"s_setprio {P['woprio']}")
        for i in range(8):
            dd, h = i >> 2, i & 3
            e(f"s_add_u32 s57, s56, {(h*128 + 8*dd)*1024}")
            if P["wopace"] and i >= P["wopace"]: e(f"s_waitcnt vmcnt({P['wopace']-1})")
            e(f"buffer_load_dwordx4 v[{WO+4*i}:{WO+4*i+3}], v8, {SRD_B}, s57 offen{wpol}")
        if P["woprio"] != 3: e("s_setprio 3")
    if P["wolate"] != 2: wo_loads()
    e("v_and_b32 v9, 7, v0")
    e("v_lshlrev_b32 v9, 11, v9")
    e(f"v_lshrrev_b32 v10, 3, {V_C}")
    e("v_lshl_add_u32 v9, v10, 10, v9")
    e(f"v_lshl_add_u32 v9, {V_G}, 4, v9")
    e("s_lshl_b32 s58, s30, 14")
    e("s_lshl_b32 s59, s53, 8")
    e("s_add_u32 s58, s58, s59")
    e("s_lshl_b32 s59, s31, 6")
    e("s_add_u32 s58, s58, s59")
    e(f"s_add_u32 s58, s58, {WS_OP}")
    if P["dbg"] == 5:
        e("s_waitcnt vmcnt(0)")
        stamp_if_role(0, 13)
        e("s_branch L_end")
    e("s_barrier")
    if P["wolate"] == 2: wo_loads()
    stamp_if_role(0, 13)
    def wo_perms():
        e("s_waitcnt vmcnt(1)")
        perms_block(WO, FO)
        stamp_if_role(0, 14)
    if P["pipe"]:
        pipe_poll(1, lambda b: e(f"buffer_load_dwordx4 v[{b}:{b+3}], v9, {SRD_WS}, s58 offen sc1"),
                  16, [32 + 4*k for k in range(P["pipe"])], P["othr"], P["osleep"], pre=wo_perms)
    else:
        e("s_waitcnt vmcnt(0)")
        perms_block(WO, FO)
        lp, ld = uid("Lp"), uid("Ld")
        lab(lp)
        e(f"buffer_load_dwordx4 v[16:19], v9, {SRD_WS}, s58 offen sc1")
        e("s_waitcnt vmcnt(0)")
        e("v_max3_u32 v24, v16, v17, v18")
        e("v_max_u32 v24, v24, v19")
        e("v_cmp_eq_u32 vcc, -1, v24")
        e("s_mov_b64 exec, vcc")
        e(f"s_cbranch_execz {ld}")
        budget_check()
        if P["osleep"]: e(f"s_sleep {P['osleep']}")
        e(f"s_branch {lp}")
        lab(ld)
        e("s_mov_b64 exec, -1")
    stamp_if_role(0, 15)
    e("s_nop 3")
    for j in range(8):
        e(f"v_mfma_f32_16x16x32_bf16 v[{DO+4*j}:{DO+4*j+3}], v[16:19], v[{FO+4*j}:{FO+4*j+3}], 0")
    e("s_lshl_b32 s55, s31, 13")
    e(f"v_add_u32 v7, s55, {V_L16}")
    e("s_lshr_b32 s55, s31, 1")
    e("s_lshl_b32 s55, s55, 12")
    e("s_and_b32 s56, s31, 1")
    e("s_lshl_b32 s56, s56, 8")
    e("s_add_u32 s55, s55, s56")
    e(f"v_lshlrev_b32 v8, 10, {V_G}")
    e(f"v_lshl_add_u32 v8, {V_C}, 4, v8")
    e("v_add_u32 v8, s55, v8")
    for j in range(8):
        e(f"ds_write_b128 v7, v[{DO+4*j}:{DO+4*j+3}] offset:{j*1024}")
    e("s_waitcnt lgkmcnt(0)")
    e("s_barrier")
    for k in range(8):
        a, sp = k >> 1, k & 1
        e(f"ds_read_b128 v[{64+4*k}:{67+4*k}], v8 offset:{a*8192 + sp*512}")
    e("s_waitcnt lgkmcnt(6)")
    for r in range(4): e(f"v_add_f32 v{64+r}, v{64+r}, v{68+r}")
    e("s_waitcnt lgkmcnt(4)")
    for r in range(4): e(f"v_add_f32 v{72+r}, v{72+r}, v{76+r}")
    e("s_waitcnt lgkmcnt(2)")
    for r in range(4): e(f"v_add_f32 v{80+r}, v{80+r}, v{84+r}")
    for r in range(4): e(f"v_add_f32 v{64+r}, v{64+r}, v{72+r}")
    e("s_waitcnt lgkmcnt(0)")
    for r in range(4): e(f"v_add_f32 v{88+r}, v{88+r}, v{92+r}")
    for r in range(4): e(f"v_add_f32 v{80+r}, v{80+r}, v{88+r}")
    for r in range(4): e(f"v_add_f32 v{64+r}, v{64+r}, v{80+r}")
    for r in range(4): e(f"v_min_u32 v{64+r}, -2, v{64+r}")
    e(f"buffer_store_dwordx4 v[64:67], v12, {SRD_WS}, s60 offen sc1")
e("s_cmp_lg_u32 s31, 0")
e("s_cbranch_scc1 L_end")
if not P["s2bulk"]: stamp(16)
e("s_and_b32 s55, s2, 1")
e("s_lshl_b32 s56, s4, 1")
e("s_add_u32 s56, s56, s55")
e("s_lshl_b32 s56, s56, 18")
e("s_bfe_u32 s57, s2, 0x60001")
e("s_lshl_b32 s58, s57, 12")
e("s_add_u32 s56, s56, s58")
e(f"s_add_u32 s56, s56, {WS_RP}")
e("s_mov_b32 s44, s20"); e("s_mov_b32 s45, s21"); e("s_mov_b32 s46, 16384"); e("s_mov_b32 s47, 0x20000")
e("s_lshl_b32 s58, s55, 13")
e("s_lshl_b32 s59, s4, 10")
e("s_add_u32 s58, s58, s59")
e("s_lshl_b32 s59, s57, 4")
e("s_add_u32 s58, s58, s59")
e("v_lshlrev_b32 v8, 1, v0")
if P["pipe"]:
    def iss(b):
        for t in range(4):
            e(f"buffer_load_dwordx4 v[{b+4*t}:{b+4*t+3}], {V_L16}, {SRD_WS}, s56 offen offset:{t*1024} sc1")
    pipe_poll(4, iss, 16, [160 + 16*k for k in range(P["pipe"])], P["rthr"], P["osleep"])
else:
    lp, ld = uid("Lp"), uid("Ld")
    lab(lp)
    for t in range(4):
        e(f"buffer_load_dwordx4 v[{16+4*t}:{19+4*t}], {V_L16}, {SRD_WS}, s56 offen offset:{t*1024} sc1")
    e("s_waitcnt vmcnt(0)")
    e("v_max3_u32 v32, v16, v17, v18")
    e("v_max3_u32 v33, v19, v20, v21")
    e("v_max3_u32 v32, v32, v22, v23")
    e("v_max3_u32 v33, v33, v24, v25")
    e("v_max3_u32 v32, v32, v26, v27")
    e("v_max3_u32 v33, v33, v28, v29")
    e("v_max3_u32 v32, v32, v30, v31")
    e("v_max_u32 v32, v32, v33")
    e("v_cmp_eq_u32 vcc, -1, v32")
    e("s_mov_b64 exec, vcc")
    e(f"s_cbranch_execz {ld}")
    budget_check()
    if P["osleep"]: e(f"s_sleep {P['osleep']}")
    e(f"s_branch {lp}")
    lab(ld)
    e("s_mov_b64 exec, -1")
stamp(17)
for r in range(4): e(f"v_add_f32 v{16+r}, v{16+r}, v{20+r}")
for r in range(4): e(f"v_add_f32 v{24+r}, v{24+r}, v{28+r}")
for r in range(4): e(f"v_add_f32 v{16+r}, v{16+r}, v{24+r}")
e("s_nop 1")
for r in range(4): e(f"v_add_f32_dpp v{20+r}, v{16+r}, v{16+r} row_ror:8 row_mask:0xf bank_mask:0xf")
for r in range(4): e(f"v_mov_b32 v{24+r}, v{20+r}")
e("s_nop 1")
for r in range(4): e(f"v_permlane32_swap_b32 v{20+r}, v{24+r}")
e("s_nop 1")
for r in range(4): e(f"v_add_f32 v{20+r}, v{20+r}, v{24+r}")
for r in range(4): e(f"v_mov_b32 v{24+r}, v{20+r}")
e("s_nop 1")
for r in range(4): e(f"v_permlane16_swap_b32 v{20+r}, v{24+r}")
e("s_nop 1")
for r in range(4): e(f"v_add_f32 v{20+r}, v{20+r}, v{24+r}")
for r in range(4): e(f"v_cvt_pk_bf16_f32 v{20+r}, v{20+r}, v{20+r}")
e("s_mov_b64 exec, 0xff")
e("s_add_u32 s59, s58, 4096")
for r in range(4):
    e(f"buffer_store_short v{20+r}, v8, {SRD_X}, {'s58' if r < 2 else 's59'} offen offset:{(r&1)*2048}")
e("s_and_b32 s55, s2, 127")
e("s_cmp_lg_u32 s55, 0")
lfin = uid("Lf")
e(f"s_cbranch_scc1 {lfin}")
e("s_mov_b64 exec, 1")
e("v_mov_b32 v24, s50")
e("v_mov_b32 v25, s51")
e("v_mov_b32 v26, 0")
e("s_lshl_b32 s58, s4, 7")
e(f"buffer_store_dwordx2 v[24:25], v26, {SRD_WS}, s58 offen sc1")
lab(lfin)
if P["dspan"]:
    e("s_waitcnt vmcnt(0)")
    e("s_memrealtime s[64:65]")
    e("s_mov_b32 s44, s22"); e("s_mov_b32 s45, s23"); e("s_mov_b32 s46, 256"); e("s_mov_b32 s47, 0x20000")
    e("s_waitcnt lgkmcnt(0)")
    e("s_mov_b64 exec, 1")
    e("s_not_b32 s66, s70")
    e("v_mov_b32 v24, s64")
    e("v_mov_b32 v25, s66")
    e("v_mov_b32 v26, 0")
    e("buffer_atomic_umax v24, v26, s[44:47], 0 offen")
    e("buffer_atomic_umax v25, v26, s[44:47], 0 offen offset:4")
    e("v_mov_b32 v24, s70")
    e("buffer_atomic_umax v24, v26, s[44:47], 0 offen offset:8")
    e("s_not_b32 s66, s64")
    e("v_mov_b32 v25, s66")
    e("buffer_atomic_umax v25, v26, s[44:47], 0 offen offset:12")
if NST:
    e("s_mov_b64 exec, -1")
    e("s_waitcnt vmcnt(0)")
    stamp(18)
lab("L_end")
e("s_endpgm")
lab("L_code_end")

ftr = f""".section .rodata,"a"
.p2align 6
.amdhsa_kernel {NAME}_kernel
  .amdhsa_next_free_vgpr 256
  .amdhsa_next_free_sgpr 102
  .amdhsa_accum_offset 256
  .amdhsa_group_segment_fixed_size 0
  .amdhsa_kernarg_size 104
  .amdhsa_user_sgpr_count 2
  .amdhsa_user_sgpr_kernarg_segment_ptr 1
  .amdhsa_system_sgpr_workgroup_id_x 1
.end_amdhsa_kernel
"""
open(out, "w").write(hdr + "\n" + "\n".join(L) + "\n" + ftr)
```

```python
import sys

out = sys.argv[1]
P = dict(dclk=0, cwarm=0, s2bulk=1, woprio=3, wopace=0, noclr=0, ilv=0, mimic=1, remap=0, rmul=5, warm=1, dspan=0, wothr=4, pipe=4, othr=24, rthr=32, pgap=2, psw=64, pace2=0, dbg=0, noswz=0, qprobe=0, smask=0, qdelay=32, osleep=2, qsleep=12, pace=8, stamps=0, pol="nt", wpol="nt", budget=1 << 22, wolate=2)
for a in sys.argv[2:]:
    k, v = a.split("=")
    P[k] = v if k in ("pol", "wpol") else int(v, 0)
NAME = "concat_heads__sliding_block_cached__sliding_block_cached__decode"
pol = "".join(" " + x for x in P["pol"].split("+") if x != "none")
wpol = "".join(" " + x for x in P["wpol"].split("+") if x != "none")
NST = P["stamps"]
NW_ = 2 if P["warm"] else 0
STAMPOFF = 200 << 20

WS_E = 0x0
WS_FL = 0x1000
WS_ST = 0x2000
WS_OP = 0x10000
WS_QP = 0x100000
WS_RP = 0x200000
WS_SIZE = 0x300000

L_K = 0
L_RR = 0
L_QR = 131072
L_PL = 131072
L_OR = 147456
L_QL = 155648
L_SL = 156672
L_FW = 156800
L_CF = 156928
CF_QR, CF_QST, CF_QL, CF_KL, CF_VI, CF_P, CF_SL, CF_GO = [16 * i for i in range(8)]
LDS_BYTES = 157184 + 128

L = []
def e(s): L.append("    " + s)
def lab(s): L.append(s + ":")
def cmt(s): L.append("    ; " + s)
_uid = [0]
def uid(p="L"):
    _uid[0] += 1
    return f"{p}_{_uid[0]}"

S_WG, S_WAVE, S_BR = "s2", "s3", "s4"
S_HKV, S_B, S_SPLIT, S_C, S_GRP, S_ROLE = "s26", "s27", "s28", "s29", "s30", "s31"
SRD_A, SRD_B, SRD_WS, SRD_X = "s[32:35]", "s[36:39]", "s[40:43]", "s[44:47]"
S_SELLO, S_SELHI = "s48", "s49"
S_TAG0, S_TAG1 = "s50", "s51"
S_BUD = "s52"
S_HI, S_LO = "s53", "s54"

V_LANE = "v0"
V_CF = "v1"
V_G = "v2"
V_C = "v3"
V_ONE = "v4"
V_L16 = "v5"

TMP = dict(st=250, w=244, pp=248)
def stamp(idx):
    if not NST: return
    if P["smask"] and not (P["smask"] >> idx) & 1: return
    t = TMP["st"]
    e("s_memrealtime s[64:65]")
    e("s_waitcnt lgkmcnt(0)")
    e("s_mov_b64 s[66:67], exec")
    e("s_mov_b64 exec, 1")
    e(f"v_mov_b32 v{t}, s64")
    e(f"v_mov_b32 v{t+1}, s65")
    e(f"v_mov_b32 v{t+2}, {idx*8}")
    e(f"buffer_store_dwordx2 v[{t}:{t+1}], v{t+2}, s[72:75], s68 offen")
    e("s_mov_b64 exec, s[66:67]")

def stamp_if_role(role, idx):
    if not NST: return
    if P["smask"] and not (P["smask"] >> idx) & 1: return
    l = uid("Lst")
    e(f"s_cmp_lg_u32 {S_ROLE}, {role}")
    e(f"s_cbranch_scc1 {l}")
    stamp(idx)
    lab(l)

def budget_check():
    e(f"s_sub_u32 {S_BUD}, {S_BUD}, 1")
    e("s_cbranch_scc1 L_end")

def lds_wait4(off, t="v[244:247]"):
    l, d = uid("Lw"), uid("Ld")
    lab(l)
    e(f"ds_read_b128 v[244:247], {V_CF} offset:{off}")
    e("s_waitcnt lgkmcnt(0)")
    e("v_and_b32 v244, v244, v245")
    e("v_and_b32 v246, v246, v247")
    e("v_and_b32 v244, v244, v246")
    e("s_nop 0")
    e("v_readfirstlane_b32 s55, v244")
    e("s_cmp_eq_u32 s55, 1")
    e(f"s_cbranch_scc1 {d}")
    budget_check()
    e("s_sleep 1")
    e(f"s_branch {l}")
    lab(d)

def lds_wait1(vaddr, off):
    l, d = uid("Lw"), uid("Ld")
    lab(l)
    e(f"ds_read_b32 v{TMP['w']}, {vaddr} offset:{off}")
    e("s_waitcnt lgkmcnt(0)")
    e(f"v_readfirstlane_b32 s55, v{TMP['w']}")
    e("s_cmp_eq_u32 s55, 1")
    e(f"s_cbranch_scc1 {d}")
    budget_check()
    e("s_sleep 1")
    e(f"s_branch {l}")
    lab(d)

def lds_set(vaddr, off):
    e(f"ds_write_b32 {vaddr}, {V_ONE} offset:{off}")


def pipe_poll(nload, issue, final, sets, slow_thresh, slow_sleep, pre=None):
    N = len(sets)
    nreg = 4 * nload
    ld = uid("Ld")
    def check(base, mask):
        e(f"s_mov_b64 exec, {mask}")
        regs = [f"v{base+i}" for i in range(nreg)]
        e(f"v_max3_u32 v{TMP['pp']}, {regs[0]}, {regs[1]}, {regs[2]}")
        rest = regs[3:]
        while len(rest) >= 2:
            e(f"v_max3_u32 v{TMP['pp']}, v{TMP['pp']}, {rest[0]}, {rest[1]}"); rest = rest[2:]
        if rest: e(f"v_max_u32 v{TMP['pp']}, v{TMP['pp']}, {rest[0]}")
        e(f"v_cmp_ne_u32 vcc, -1, v{TMP['pp']}")
        e("s_and_b64 exec, vcc, s[76:77]")
        for i in range(nreg): e(f"v_mov_b32 v{final+i}, v{base+i}")
        e("s_andn2_b64 s[76:77], s[76:77], exec")
        e(f"s_cbranch_scc0 {ld}")
    e("s_mov_b64 s[76:77], -1")
    ls, lf, l1 = uid("Lsl"), uid("Lfa"), uid("L1")
    if pre is not None:
        e("s_mov_b64 s[78:79], -1")
        issue(sets[0])
        pre()
        e(f"s_branch {l1}")
    lab(ls)
    e("s_mov_b64 exec, s[76:77]")
    e("s_mov_b64 s[78:79], s[76:77]")
    issue(sets[0])
    lab(l1)
    e("s_waitcnt vmcnt(0)")
    check(sets[0], "s[78:79]")
    e("s_bcnt1_i32_b64 s55, s[76:77]")
    e(f"s_cmp_le_u32 s55, {slow_thresh}")
    e(f"s_cbranch_scc1 {lf}")
    budget_check()
    if slow_sleep: e(f"s_sleep {slow_sleep}")
    e(f"s_branch {ls}")
    lab(lf)
    for k in range(N - 1):
        e("s_mov_b64 exec, s[76:77]")
        e(f"s_mov_b64 s[{78+2*k}:{79+2*k}], s[76:77]")
        issue(sets[k])
        if P["pgap"]: e(f"s_sleep {P['pgap']}")
    lp = uid("Lp")
    lab(lp)
    for k in range(N):
        kk = (k + N - 1) % N
        e("s_mov_b64 exec, s[76:77]")
        e(f"s_mov_b64 s[{78+2*kk}:{79+2*kk}], s[76:77]")
        issue(sets[kk])
        e(f"s_waitcnt vmcnt({(N-1)*nload})")
        check(sets[k], f"s[{78+2*k}:{79+2*k}]")
    budget_check()
    e(f"s_branch {lp}")
    lab(ld)
    e("s_mov_b64 exec, -1")

def perms_block(src, dst, plist=range(4)):
    for p in plist:
        for jj in range(4):
            a = src + 4 * (2 * p) + jj
            b = src + 4 * (2 * p + 1) + jj
            e(f"v_perm_b32 v{dst + 4*(2*jj) + p}, v{b}, v{a}, {S_SELLO}")
            e(f"v_perm_b32 v{dst + 4*(2*jj+1) + p}, v{b}, v{a}, {S_SELHI}")


def wo_addr(vreg):
    e("s_lshl_b32 s62, s26, 9")
    e("s_and_b32 s63, s31, 1")
    e("s_lshl_b32 s63, s63, 6")
    e("s_add_u32 s62, s62, s63")
    e("s_lshl_b32 s63, s53, 1")
    e("s_add_u32 s62, s62, s63")
    e("s_lshr_b32 s63, s31, 1")
    e("s_add_u32 s62, s62, s63")
    e("s_lshl_b32 s62, s62, 10")
    e("s_lshl_b32 s63, s54, 8")
    e("s_add_u32 s62, s62, s63")
    e(f"v_lshlrev_b32 {vreg}, 14, {V_G}")
    e(f"v_lshl_add_u32 {vreg}, {V_C}, 4, {vreg}")
def rp_addr(vreg):
    e("s_and_b32 s58, s31, 1")
    e("s_lshl_b32 s59, s4, 1")
    e("s_add_u32 s59, s59, s58")
    e("s_lshl_b32 s60, s59, 18")
    e("s_lshl_b32 s59, s54, 16")
    e("s_add_u32 s60, s60, s59")
    e("s_lshl_b32 s59, s26, 2")
    e("s_add_u32 s59, s59, s53")
    e("s_lshl_b32 s59, s59, 7")
    e("s_add_u32 s60, s60, s59")
    e("s_lshr_b32 s59, s31, 1")
    e("s_lshl_b32 s59, s59, 6")
    e("s_add_u32 s60, s60, s59")
    e(f"s_add_u32 s60, s60, {WS_RP}")
    e(f"v_lshlrev_b32 {vreg}, 12, {V_C}")
    e(f"v_lshl_add_u32 {vreg}, {V_G}, 4, {vreg}")
def op_addr():
    e("v_and_b32 v9, 7, v0")
    e("v_lshlrev_b32 v9, 11, v9")
    e(f"v_lshrrev_b32 v10, 3, {V_C}")
    e("v_lshl_add_u32 v9, v10, 10, v9")
    e(f"v_lshl_add_u32 v9, {V_G}, 4, v9")
    e("s_lshl_b32 s58, s30, 14")
    e("s_lshl_b32 s59, s53, 8")
    e("s_add_u32 s58, s58, s59")
    e("s_lshl_b32 s59, s31, 6")
    e("s_add_u32 s58, s58, s59")
    e(f"s_add_u32 s58, s58, {WS_OP}")
def stage2(WO, FO, DO, vrp, nwait):
    def wo_perms():
        e(f"s_waitcnt vmcnt({nwait})")
        perms_block(WO, FO)
        stamp_if_role(0, 14)
    pipe_poll(1, lambda b: e(f"buffer_load_dwordx4 v[{b}:{b+3}], v9, {SRD_WS}, s58 offen sc1"),
              16, [32 + 4*k for k in range(P["pipe"])], P["othr"], P["osleep"], pre=wo_perms)
    stamp_if_role(0, 15)
    e("s_nop 3")
    for j in range(8):
        e(f"v_mfma_f32_16x16x32_bf16 v[{DO+4*j}:{DO+4*j+3}], v[16:19], v[{FO+4*j}:{FO+4*j+3}], 0")
    e("s_lshl_b32 s55, s31, 13")
    e(f"v_add_u32 v7, s55, {V_L16}")
    e("s_lshr_b32 s55, s31, 1")
    e("s_lshl_b32 s55, s55, 12")
    e("s_and_b32 s56, s31, 1")
    e("s_lshl_b32 s56, s56, 8")
    e("s_add_u32 s55, s55, s56")
    e(f"v_lshlrev_b32 v8, 10, {V_G}")
    e(f"v_lshl_add_u32 v8, {V_C}, 4, v8")
    e("v_add_u32 v8, s55, v8")
    for j in range(8):
        e(f"ds_write_b128 v7, v[{DO+4*j}:{DO+4*j+3}] offset:{j*1024}")
    e("s_waitcnt lgkmcnt(0)")
    e("s_barrier")
    for k in range(8):
        a, sp = k >> 1, k & 1
        e(f"ds_read_b128 v[{64+4*k}:{67+4*k}], v8 offset:{a*8192 + sp*512}")
    e("s_waitcnt lgkmcnt(6)")
    for r in range(4): e(f"v_add_f32 v{64+r}, v{64+r}, v{68+r}")
    e("s_waitcnt lgkmcnt(4)")
    for r in range(4): e(f"v_add_f32 v{72+r}, v{72+r}, v{76+r}")
    e("s_waitcnt lgkmcnt(2)")
    for r in range(4): e(f"v_add_f32 v{80+r}, v{80+r}, v{84+r}")
    for r in range(4): e(f"v_add_f32 v{64+r}, v{64+r}, v{72+r}")
    e("s_waitcnt lgkmcnt(0)")
    for r in range(4): e(f"v_add_f32 v{88+r}, v{88+r}, v{92+r}")
    for r in range(4): e(f"v_add_f32 v{80+r}, v{80+r}, v{88+r}")
    for r in range(4): e(f"v_add_f32 v{64+r}, v{64+r}, v{80+r}")
    for r in range(4): e(f"v_min_u32 v{64+r}, -2, v{64+r}")
    e(f"buffer_store_dwordx4 v[64:67], {vrp}, {SRD_WS}, s60 offen sc1")
    stamp_if_role(0, 16)

hdr = f"""; fused sliding-window GQA decode attention (two branches), one persistent launch of 256 workgroups
; @launch grid=(256,1,1) block=(512,1,1) lds={LDS_BYTES}
.amdgcn_target "amdgcn-amd-amdhsa--gfx950"
.text
.globl {NAME}_kernel
.p2align 8
.type {NAME}_kernel,@function
{NAME}_kernel:"""

e("s_cmp_ge_u32 s2, 256")
e("s_cbranch_scc1 L_end")
if NST or P["dspan"] or P["dclk"]: e("s_memrealtime s[70:71]")
if P["dclk"]: e("s_memtime s[86:87]")
if NST: e(f"s_mul_i32 s68, s2, {NST*8}")
if P["remap"] == 1:
    e("s_and_b32 s4, s2, 7")
    e("s_lshl_b32 s4, s4, 5")
    e("s_bfe_u32 s5, s2, 0x10003")
    e("s_lshl_b32 s5, s5, 4")
    e("s_lshr_b32 s2, s2, 4")
    e("s_or_b32 s2, s2, s4")
    e("s_or_b32 s2, s2, s5")
e("s_lshr_b32 s4, s2, 7")
e("s_mul_i32 s5, s4, 40")
e("s_add_u32 s6, s0, s5")
e("s_addc_u32 s7, s1, 0")
e("s_load_dwordx8 s[8:15], s[6:7], 0")
e("s_load_dwordx2 s[16:17], s[6:7], 32")
e("s_load_dwordx4 s[20:23], s[0:1], 80")
e("s_load_dwordx2 s[24:25], s[0:1], 96")
e("v_lshrrev_b32 v1, 6, v0")
e("v_and_b32 v0, 63, v0")
e("s_bfe_u32 s26, s2, 0x30004")
e("v_readfirstlane_b32 s3, v1")
e("s_bfe_u32 s27, s2, 0x30001")
e("s_and_b32 s28, s2, 1")
e("s_and_b32 s29, s2, 15")
e("s_lshr_b32 s30, s2, 4")
e("s_lshr_b32 s53, s29, 2")
e("s_and_b32 s54, s29, 3")
e("s_and_b32 s31, s3, 3")
e("s_mov_b32 s48, 0x05040100")
e("s_mov_b32 s49, 0x07060302")
e(f"s_mov_b32 s52, {P['budget']}")
e(f"v_mov_b32 {V_CF}, {L_CF}")
e(f"v_lshrrev_b32 {V_G}, 4, v0")
e(f"v_and_b32 {V_C}, 15, v0")
e(f"v_mov_b32 {V_ONE}, 1")
e(f"v_lshlrev_b32 {V_L16}, 4, v0")
e("s_lshl_b32 s55, s31, 2")
e(f"v_add_u32 v6, s55, {V_CF}")
e("s_waitcnt lgkmcnt(0)")
e("s_mov_b32 s40, s24"); e("s_mov_b32 s41, s25"); e(f"s_mov_b32 s42, {WS_SIZE}"); e("s_mov_b32 s43, 0x20000")
if NST:
    e(f"s_add_u32 s72, s24, {STAMPOFF}")
    e("s_addc_u32 s73, s25, 0")
    e(f"s_mov_b32 s74, {256*NST*8}")
    e("s_mov_b32 s75, 0x20000")
e("s_cmp_lt_u32 s3, 4")
e("s_cbranch_scc1 L_aux")

if P["s2bulk"]: TMP.update(st=12, w=8, pp=11)
NWO = 8 if P["s2bulk"] else 0
WOB = 224
VB = 64
FB = 192
AC = 16
PB = 48
e("s_mov_b32 s32, s10"); e("s_mov_b32 s33, s11"); e("s_mov_b32 s34, 0x4000000"); e("s_mov_b32 s35, 0x20000")
e("s_mov_b32 s36, s12"); e("s_mov_b32 s37, s13"); e("s_mov_b32 s38, 0x4000000"); e("s_mov_b32 s39, 0x20000")
e("s_lshl_b32 s56, s27, 23")
e("s_lshl_b32 s57, s26, 20")
e("s_add_u32 s56, s56, s57")
e("s_lshl_b32 s57, s28, 17")
e("s_add_u32 s56, s56, s57")
e("s_lshl_b32 s57, s31, 15")
if P["ilv"]:
    e("s_lshl_b32 s58, s31, 10")
    e("s_add_u32 s56, s56, s58")
else:
    e("s_add_u32 s56, s56, s57")
e(f"s_add_u32 s56, s56, {3072*256}")
e(f"v_lshlrev_b32 v12, 2, {V_G}")
e(f"v_lshlrev_b32 v13, 8, {V_G}")
for ii in range(4):
    e(f"v_add_u32 v14, {ii}, v12")
    e(f"v_xor_b32 v14, v14, {V_C}") if not P["noswz"] else e(f"v_mov_b32 v14, {V_C}")
    e(f"v_lshl_add_u32 v{8+ii}, v14, 4, v13")
PACE = P["pace"]
n_issued = 0
def pre_issue():
    global n_issued
    if n_issued == min(PACE, 8) if PACE else n_issued == 8:
        e("s_barrier")
        if NST and (P["smask"] >> 20) & 1:
            e(f"s_waitcnt vmcnt({n_issued - 1})")
            stamp_if_role(0, 20)
    pc = PACE if n_issued < P["psw"] else P["pace2"]
    if pc and n_issued >= pc:
        e(f"s_waitcnt vmcnt({pc-1})")
    n_issued += 1
kl_done = False
e(f"s_mul_i32 s61, s2, {P['rmul']}")
if not P["ilv"]:
    e("s_lshl_b32 s62, s31, 3")
    e("s_add_u32 s61, s61, s62")
CSH = 12 if P["ilv"] else 10
e(f"s_lshl_b32 s61, s61, {CSH}")
if P["warm"]:
    e("v_mov_b32 v15, 0")
    e(f"buffer_load_dword v15, v15, {SRD_B}, s56 offen")
def rotaddr(n):
    e(f"s_add_u32 s58, s61, {n << CSH}")
    e(f"s_and_b32 s58, s58, {31 << CSH}")
    e("s_add_u32 s58, s58, s56")
for n in range(32):
    e(f"s_add_u32 m0, s57, {n*1024}")
    rotaddr(n)
    pre_issue()
    e(f"buffer_load_dwordx4 v{8+(n&3)}, {SRD_A}, s58 offen{pol} lds")
for n in range(32):
    rotaddr(n)
    pre_issue()
    pc = PACE if (n_issued - 1) < P["psw"] else P["pace2"]
    if pc and not kl_done and (n_issued - 1) - pc >= 31:
        lds_set("v6", CF_KL)
        kl_done = True
        stamp_if_role(0, 8)
    r = VB + 4 * n
    e(f"buffer_load_dwordx4 v[{r}:{r+3}], {V_L16}, {SRD_B}, s58 offen{pol}")
if P["wolate"] != 3: lds_set("v6", CF_VI)
if not kl_done:
    e("s_waitcnt vmcnt(32)")
    lds_set("v6", CF_KL)
if P["s2bulk"]:
    e("s_mov_b32 s32, s16"); e("s_mov_b32 s33, s17"); e("s_mov_b32 s34, 0x400000"); e("s_mov_b32 s35, 0x20000")
    wo_addr("v7")
    for i in range(8):
        dd, h = i >> 2, i & 3
        e(f"s_add_u32 s63, s62, {(h*128 + 8*dd)*1024}")
        if P["wopace"]: pre_issue()
        e(f"buffer_load_dwordx4 v[{WOB+4*i}:{WOB+4*i+3}], v7, {SRD_A}, s63 offen{wpol}")
nst_extra = 0
if NST:
    stamp_if_role(0, 9)
if not P["dbg"]: lds_wait1("v6", CF_P)
stamp_if_role(0, 10)
e("s_lshl_b32 s55, s31, 12")
e(f"v_add_u32 v7, s55, {V_L16}")
e(f"v_add_u32 v7, {L_PL}, v7")
for T in range(4):
    e(f"ds_read_b128 v[{PB+4*T}:{PB+4*T+3}], v7 offset:{T*1024}")
for T in range(4):
    src = VB + 32 * T
    if T < 3:
        e(f"s_waitcnt vmcnt({24 - 8*T + NWO})")
        if P["wolate"] == 3 and P["wothr"] == 24 - 8*T: lds_set("v6", CF_VI)
        perms_block(src, FB)
    else:
        for p in range(4):
            e(f"s_waitcnt vmcnt({6 - 2*p + NWO})")
            if P["wolate"] == 3 and P["wothr"] == 6 - 2*p: lds_set("v6", CF_VI)
            perms_block(src, FB, [p])
    if T == 0: e("s_waitcnt lgkmcnt(0)")
    e("s_nop 1")
    for j in range(8):
        c = "0" if T == 0 else f"v[{AC+4*j}:{AC+4*j+3}]"
        e(f"v_mfma_f32_16x16x32_bf16 v[{AC+4*j}:{AC+4*j+3}], v[{PB+4*T}:{PB+4*T+3}], v[{FB+4*j}:{FB+4*j+3}], {c}")
stamp_if_role(0, 11)
if P["dbg"]: e("s_branch L_end")
e("s_lshl_b32 s55, s31, 11")
e(f"v_add_u32 v7, s55, {V_L16}")
e(f"v_add_u32 v7, {L_OR}, v7")
e("s_mov_b64 exec, 0xffff")
e("s_nop 4")
for j in range(8):
    e(f"ds_write_b128 v7, v[{AC+4*j}:{AC+4*j+3}] offset:{j*256}")
e("s_mov_b64 exec, -1")
e("s_waitcnt lgkmcnt(0)")
e("s_barrier")
e("s_cmp_ge_u32 s31, 2")
e("s_cbranch_scc1 L_end" if not P["s2bulk"] else "s_cbranch_scc1 L_s2x")
e("s_lshl_b32 s55, s31, 10")
e(f"v_add_u32 v7, s55, {V_L16}")
e(f"v_add_u32 v8, {L_OR}, v7")
e(f"v_mov_b32 v9, {L_FW}")
for w in range(4):
    e(f"ds_read_b128 v[{16+4*w}:{19+4*w}], v8 offset:{w*2048}")
    e(f"ds_read_b128 v[{32+4*w}:{35+4*w}], v9 offset:{w*16}")
e("s_lshl_b32 s55, s2, 10")
e(f"s_add_u32 s55, s55, {WS_OP}")
e("v_lshrrev_b32 v7, 1, v7")
e("s_waitcnt lgkmcnt(6)")
for h in range(4): e(f"v_mul_f32 v{48+h}, v{16+h}, v{32+h}")
for w in range(1, 4):
    e(f"s_waitcnt lgkmcnt({6-2*w})")
    for h in range(4): e(f"v_fmac_f32 v{48+h}, v{16+4*w+h}, v{32+4*w+h}")
e("v_cvt_pk_bf16_f32 v48, v48, v49")
e("v_cvt_pk_bf16_f32 v49, v50, v51")
e("v_min_u32 v48, -2, v48")
e("v_min_u32 v49, -2, v49")
e(f"buffer_store_dwordx2 v[48:49], v7, {SRD_WS}, s55 offen sc1")
stamp_if_role(0, 12)
if P["s2bulk"]:
    e("s_branch L_s2")
    lab("L_s2x")
    e("v_mov_b32 v14, 0")
    e(f"buffer_load_dword v14, v14, {SRD_WS}, 0 offen")
    lab("L_s2")
    rp_addr("v15")
    op_addr()
    stage2(WOB, FB, 128, "v15", 2)
    TMP.update(st=250, w=244, pp=248)
e("s_branch L_end")

lab("L_aux")
e("s_setprio 3")
stamp_if_role(0, 19)
if P["cwarm"]:
    lcw = uid("Lcw")
    e(f"s_cmp_lg_u32 s31, {P['cwarm'] - 1}")
    e(f"s_cbranch_scc1 {lcw}")
    e("s_getpc_b64 s[56:57]")
    lab("L_pc")
    e(f"s_sub_u32 s56, s56, L_pc - {NAME}_kernel")
    e("s_subb_u32 s57, s57, 0")
    e("v_lshlrev_b32 v8, 7, v0")
    e(f"v_cmp_gt_u32 vcc, L_code_end - {NAME}_kernel, v8")
    e("s_and_saveexec_b64 s[58:59], vcc")
    e("global_load_dword v242, v8, s[56:57]")
    e("v_add_u32 v8, 8192, v8")
    e(f"v_cmp_gt_u32 vcc, L_code_end - {NAME}_kernel, v8")
    e("s_and_b64 exec, exec, vcc")
    lc2 = uid("Lcw")
    e(f"s_cbranch_execz {lc2}")
    e("global_load_dword v243, v8, s[56:57]")
    e("v_add_u32 v8, 8192, v8")
    e(f"v_cmp_gt_u32 vcc, L_code_end - {NAME}_kernel, v8")
    e("s_and_b64 exec, exec, vcc")
    e(f"s_cbranch_execz {lc2}")
    e("global_load_dword v239, v8, s[56:57]")
    lab(lc2)
    e("s_mov_b64 exec, -1")
    lab(lcw)
WQ = 64
FQ = 96
DQ = 128
XF = 16
e("s_mov_b32 s32, s14"); e("s_mov_b32 s33, s15"); e("s_mov_b32 s34, 0x400000"); e("s_mov_b32 s35, 0x20000")
e("s_mov_b32 s36, s16"); e("s_mov_b32 s37, s17"); e("s_mov_b32 s38, 0x400000"); e("s_mov_b32 s39, 0x20000")
e("s_mov_b32 s44, s8"); e("s_mov_b32 s45, s9"); e("s_mov_b32 s46, 8192"); e("s_mov_b32 s47, 0x20000")
e("s_lshl_b32 s56, s28, 8")
e("s_lshl_b32 s57, s31, 6")
e("s_add_u32 s56, s56, s57")
e("s_lshl_b32 s57, s56, 13")
e("s_lshl_b32 s58, s26, 10")
e("s_add_u32 s57, s57, s58")
e("s_lshl_b32 s58, s27, 7")
e("s_add_u32 s57, s57, s58")
e(f"v_lshrrev_b32 v10, 3, {V_C}")
e("v_and_b32 v11, 7, v0")
e(f"v_lshlrev_b32 v8, 16, {V_G}")
e("v_lshl_add_u32 v8, v10, 18, v8")
e("v_lshl_add_u32 v8, v11, 4, v8")
for i in range(8):
    e(f"s_add_u32 s58, s57, {i*8192}")
    e(f"buffer_load_dwordx4 v[{WQ+4*i}:{WQ+4*i+3}], v8, {SRD_A}, s58 offen{wpol}")
e("v_lshlrev_b32 v9, 10, v11")
e(f"v_lshl_add_u32 v9, {V_G}, 4, v9")
e("v_lshl_add_u32 v9, v10, 6, v9")
e("s_lshl_b32 s58, s56, 1")
e(f"buffer_load_dwordx4 v[{XF}:{XF+3}], v9, {SRD_X}, s58 offen")
e("s_lshl_b32 s58, s4, 7")
e("v_mov_b32 v10, 0")
e(f"buffer_load_dwordx2 v[20:21], v10, {SRD_WS}, s58 offen sc1")
e("v_mov_b32 v24, -1"); e("v_mov_b32 v25, -1"); e("v_mov_b32 v26, -1"); e("v_mov_b32 v27, -1")
lz = uid("Lz")
e("s_cmp_lg_u32 s31, 0")
e(f"s_cbranch_scc1 {lz}")
e(f"v_lshl_add_u32 v13, v0, 2, {V_CF}")
e("ds_write_b32 v13, v10")
e("s_waitcnt lgkmcnt(0)")
lab(lz)
e("s_and_b32 s58, s31, 1")
e("s_lshl_b32 s59, s4, 1")
e("s_add_u32 s59, s59, s58")
e("s_lshl_b32 s60, s59, 18")
e("s_lshl_b32 s59, s54, 16")
e("s_add_u32 s60, s60, s59")
e("s_lshl_b32 s59, s26, 2")
e("s_add_u32 s59, s59, s53")
e("s_lshl_b32 s59, s59, 7")
e("s_add_u32 s60, s60, s59")
e("s_lshr_b32 s59, s31, 1")
e("s_lshl_b32 s59, s59, 6")
e("s_add_u32 s60, s60, s59")
e(f"s_add_u32 s60, s60, {WS_RP}")
e(f"v_lshlrev_b32 v12, 12, {V_C}")
e(f"v_lshl_add_u32 v12, {V_G}, 4, v12")
if P["noclr"]: e("s_mov_b64 exec, 1")
e(f"buffer_store_dwordx4 v[24:27], v12, {SRD_WS}, s60 offen sc1")
e("s_lshl_b32 s58, s2, 10")
e("s_lshl_b32 s59, s31, 8")
e("s_add_u32 s58, s58, s59")
e(f"s_add_u32 s58, s58, {WS_OP}")
e("s_mov_b64 exec, 0xffff" if not P["noclr"] else "s_mov_b64 exec, 1")
e(f"buffer_store_dwordx4 v[24:27], {V_L16}, {SRD_WS}, s58 offen sc1")
e("s_mov_b64 exec, -1")
if P["warm"]:
    e("s_lshl_b32 s58, s26, 19")
    e("s_lshl_b32 s59, s31, 17")
    e("s_add_u32 s58, s58, s59")
    e(f"buffer_load_dword v240, v10, {SRD_B}, s58 offen")
    e("s_mov_b32 s80, s20"); e("s_mov_b32 s81, s21"); e("s_mov_b32 s82, 16384"); e("s_mov_b32 s83, 0x20000")
    e("buffer_load_dword v241, v10, s[80:83], 0 offen")
e("s_barrier")
if NST:
    l = uid("Lst")
    e("s_cmp_lg_u32 s31, 0")
    e(f"s_cbranch_scc1 {l}")
    e("v_mov_b32 v250, s70"); e("v_mov_b32 v251, s71"); e("v_mov_b32 v252, 0")
    e("s_mov_b64 exec, 1")
    e("buffer_store_dwordx2 v[250:251], v252, s[72:75], s68 offen")
    e("s_mov_b64 exec, -1")
    e(f"s_waitcnt vmcnt({3+NW_})")
    lab(l)
e(f"s_waitcnt vmcnt({2+NW_})" if not NST else f"s_waitcnt vmcnt({3+NW_})")
if NST:
    l = uid("Lst")
    e("s_cmp_eq_u32 s31, 0")
    e(f"s_cbranch_scc1 {l}")
    e(f"s_waitcnt vmcnt({2+NW_})")
    lab(l)
stamp_if_role(0, 1)
if P["dbg"] == 1: e("s_branch L_end")
perms_block(WQ, FQ)
e("v_readfirstlane_b32 s50, v20")
e("v_readfirstlane_b32 s51, v21")
for j in range(8):
    e(f"v_mfma_f32_16x16x32_bf16 v[{DQ+4*j}:{DQ+4*j+3}], v[{XF}:{XF+3}], v[{FQ+4*j}:{FQ+4*j+3}], 0")
e("s_add_u32 s50, s50, 1")
e("s_addc_u32 s51, s51, 0")
e("s_lshl_b32 s55, s31, 12")
e(f"s_add_u32 s55, s55, {L_QR}")
e(f"v_lshlrev_b32 v7, 7, {V_G}")
e("v_lshl_add_u32 v7, v11, 4, v7")
e("v_add_u32 v7, s55, v7")
e("s_mov_b32 exec_lo, 0x00ff00ff")
e("s_mov_b32 exec_hi, 0xff00ff00")
e("s_nop 1")
for j in range(8):
    e(f"ds_write_b128 v7, v[{DQ+4*j}:{DQ+4*j+3}] offset:{j*512}")
e("s_mov_b64 exec, -1")
e("s_waitcnt lgkmcnt(0)")
lds_set("v6", CF_QR)
e("s_lshl_b32 s55, s31, 10")
e(f"s_add_u32 s55, s55, {L_QR}")
e("v_lshlrev_b32 v7, 2, v0")
e("v_add_u32 v7, s55, v7")
e("v_and_b32 v8, 3, v0")
e("v_lshlrev_b32 v8, 13, v8")
e("v_lshrrev_b32 v9, 5, v0")
e("v_lshl_add_u32 v8, v9, 15, v8")
e("v_bfe_u32 v9, v0, 2, 3")
e("v_lshl_add_u32 v8, v9, 4, v8")
e("s_lshl_b32 s59, s30, 16")
e("s_lshl_b32 s61, s28, 12")
e("s_add_u32 s59, s59, s61")
e("s_lshl_b32 s61, s27, 9")
e("s_add_u32 s59, s59, s61")
e("s_lshl_b32 s61, s31, 7")
e("s_add_u32 s59, s59, s61")
e(f"s_add_u32 s59, s59, {WS_QP}")
e("v_mov_b32 v66, s50")
e("v_mov_b32 v67, s51")
lds_wait4(CF_QR)
for k in range(8):
    a_, s_ = k >> 1, k & 1
    e(f"ds_read2st64_b32 v[{68+2*k}:{69+2*k}], v7 offset0:{16*a_+s_} offset1:{16*a_+s_+2}")
e("s_waitcnt lgkmcnt(0)")
for k in range(4):
    e(f"v_add_f32 v{68+4*k}, v{68+4*k}, v{70+4*k}")
    e(f"v_add_f32 v{69+4*k}, v{69+4*k}, v{71+4*k}")
e("v_add_f32 v68, v68, v72"); e("v_add_f32 v69, v69, v73")
e("v_add_f32 v76, v76, v80"); e("v_add_f32 v77, v77, v81")
e("v_add_f32 v64, v68, v76"); e("v_add_f32 v65, v69, v77")
e(f"buffer_store_dwordx4 v[64:67], v8, {SRD_WS}, s59 offen sc1")
stamp_if_role(0, 2)
if P["dbg"] == 2: e("s_branch L_end")
e("s_lshl_b32 s58, s30, 16")
e("s_lshl_b32 s59, s27, 13")
e("s_add_u32 s58, s58, s59")
e("s_lshl_b32 s59, s31, 10")
e("s_add_u32 s58, s58, s59")
e(f"s_add_u32 s58, s58, {WS_QP}")
e("s_add_u32 s59, s58, 4096")
e("v_lshrrev_b32 v8, 5, v0")
e("v_lshlrev_b32 v8, 7, v8")
e("v_lshl_add_u32 v8, v11, 4, v8")
e("v_bfe_u32 v9, v0, 3, 2")
e("v_lshl_add_u32 v8, v9, 2, v8")
e("s_lshl_b32 s55, s31, 8")
e(f"s_add_u32 s55, s55, {L_QL}")
e("v_add_u32 v8, s55, v8")
if P["qdelay"]: e(f"s_sleep {P['qdelay']}")
if P["qprobe"]:
    e("v_and_b32 v9, 1, v0")
    e("v_lshlrev_b32 v9, 9, v9")
    e("v_lshrrev_b32 v10, 1, v0")
    e("v_lshl_add_u32 v9, v10, 12, v9")
    e("s_mov_b64 exec, 0xf")
    lp, ld = uid("Lp"), uid("Ld")
    lab(lp)
    e(f"buffer_load_dwordx4 v[68:71], v9, {SRD_WS}, s58 offen offset:496 sc1")
    e("s_waitcnt vmcnt(0)")
    e("v_cmp_ne_u64 vcc, v[70:71], v[66:67]")
    e("s_mov_b64 exec, vcc")
    e(f"s_cbranch_execz {ld}")
    budget_check()
    e(f"s_sleep {P['qsleep']}")
    e(f"s_branch {lp}")
    lab(ld)
    e("s_mov_b64 exec, -1")
lp, ld = uid("Lp"), uid("Ld")
lab(lp)
e(f"buffer_load_dwordx4 v[68:71], {V_L16}, {SRD_WS}, s58 offen sc1")
e(f"buffer_load_dwordx4 v[72:75], {V_L16}, {SRD_WS}, s59 offen sc1")
e("s_waitcnt vmcnt(0)")
e("v_cmp_ne_u64 vcc, v[70:71], v[66:67]")
e("v_cmp_ne_u64 s[56:57], v[74:75], v[66:67]")
e("s_or_b64 exec, vcc, s[56:57]")
e(f"s_cbranch_execz {ld}")
budget_check()
e(f"s_sleep {P['qsleep']}")
e(f"s_branch {lp}")
lab(ld)
e("s_mov_b64 exec, -1")
e("v_add_f32 v68, v68, v72"); e("v_add_f32 v69, v69, v73")
e("v_cvt_pk_bf16_f32 v68, v68, v69")
e("ds_write_b32 v8, v68")
lds_set("v6", CF_QST)
e("s_waitcnt lgkmcnt(0)")
lds_set("v6", CF_QL)
stamp_if_role(0, 3)
if P["dbg"] == 3: e("s_branch L_end")
lgo = uid("Lgo")
e("s_cmp_lg_u32 s31, 0")
e(f"s_cbranch_scc1 {lgo}")
lds_wait4(CF_QST)
e("s_lshl_b32 s58, s30, 7")
e(f"s_add_u32 s58, s58, {WS_FL}")
e("s_lshl_b32 s59, s29, 3")
e("v_mov_b32 v22, s59")
e("s_mov_b64 exec, 1")
e(f"buffer_store_dwordx2 v[66:67], v22, {SRD_WS}, s58 offen sc1")
e("s_mov_b64 exec, -1")
lab(lgo)
e(f"v_and_b32 v8, 3, {V_C}")
e("v_lshlrev_b32 v8, 2, v8")
e(f"v_lshrrev_b32 v9, 2, {V_C}")
e("v_add_u32 v8, v8, v9")
e("v_lshlrev_b32 v8, 8, v8")
e("s_lshl_b32 s55, s31, 15")
e("v_add_u32 v8, s55, v8")
for s in range(4):
    e(f"v_add_u32 v9, {4*s}, {V_G}")
    e(f"v_xor_b32 v9, v9, {V_C}")
    e(f"v_lshl_add_u32 v{28+s}, v9, 4, v8")
e(f"v_and_b32 v9, 3, {V_C}")
e("v_lshlrev_b32 v9, 8, v9")
e(f"v_lshl_add_u32 v9, {V_G}, 4, v9")
e(f"v_add_u32 v9, {L_QL}, v9")
lds_wait4(CF_QL)
stamp_if_role(0, 4)
QF = 32
for s in range(4):
    e(f"ds_read_b128 v[{QF+4*s}:{QF+4*s+3}], v9 offset:{s*64}")
lds_wait1("v6", CF_KL)
stamp_if_role(0, 5)
KF = 64
SC = 128
def kread(t):
    b = KF + 16 * (t & 3)
    for s in range(4):
        e(f"ds_read_b128 v[{b+4*s}:{b+4*s+3}], v{28+s} offset:{t*4096}")
kread(0); kread(1)
for t in range(8):
    if t + 2 < 8:
        kread(t + 2)
        e("s_waitcnt lgkmcnt(8)")
    else:
        e(f"s_waitcnt lgkmcnt({4*(7-t)})")
    b = KF + 16 * (t & 3)
    for s in range(4):
        c = "0" if s == 0 else f"v[{SC+4*t}:{SC+4*t+3}]"
        e(f"v_mfma_f32_16x16x32_bf16 v[{SC+4*t}:{SC+4*t+3}], v[{b+4*s}:{b+4*s+3}], v[{QF+4*s}:{QF+4*s+3}], {c}")
import math
CSC = (128 ** -0.5) * math.log2(math.e)
import struct
f2u = lambda x: struct.unpack('<I', struct.pack('<f', x))[0]
if P["mimic"]:
    e(f"s_mov_b32 s58, 0x{f2u(math.log2(math.e)):08x}")
    e(f"s_mov_b32 s59, 0x{f2u(128 ** -0.5):08x}")
    e("s_mov_b32 s57, 0xffff0000")
    e("s_nop 6")
    for k in range(16):
        e(f"v_cvt_pk_bf16_f32 v{64+k}, v{SC+2*k}, v{SC+2*k+1}")
    for k in range(16):
        e(f"v_lshlrev_b32 v{SC+2*k}, 16, v{64+k}")
        e(f"v_and_b32 v{SC+2*k+1}, s57, v{64+k}")
    for k in range(32):
        e(f"v_mul_f32 v{SC+k}, s59, v{SC+k}")
    for k in range(16):
        e(f"v_cvt_pk_bf16_f32 v{64+k}, v{SC+2*k}, v{SC+2*k+1}")
    for k in range(16):
        e(f"v_lshlrev_b32 v{SC+2*k}, 16, v{64+k}")
        e(f"v_and_b32 v{SC+2*k+1}, s57, v{64+k}")
else:
    e(f"s_mov_b32 s58, 0x{f2u(CSC):08x}")
    e("s_nop 7")
e(f"v_max3_f32 v10, v{SC}, v{SC+1}, v{SC+2}")
e(f"v_max3_f32 v11, v{SC+3}, v{SC+4}, v{SC+5}")
for k in range(6, 30, 4):
    e(f"v_max3_f32 v10, v10, v{SC+k}, v{SC+k+1}")
    e(f"v_max3_f32 v11, v11, v{SC+k+2}, v{SC+k+3}")
e(f"v_max3_f32 v10, v10, v{SC+30}, v{SC+31}")
e("v_max_f32 v10, v10, v11")
def xlane(op, v, t):
    e(f"v_mov_b32 {t}, {v}")
    e("s_nop 1")
    e(f"v_permlane32_swap_b32 {v}, {t}")
    e("s_nop 1")
    e(f"{op} {v}, {v}, {t}")
    e(f"v_mov_b32 {t}, {v}")
    e("s_nop 1")
    e(f"v_permlane16_swap_b32 {v}, {t}")
    e("s_nop 1")
    e(f"{op} {v}, {v}, {t}")
xlane("v_max_f32", "v10", "v11")
e("v_mul_f32 v10, s58, v10")
e("v_sub_f32 v13, 0, v10")
for k in range(32):
    e(f"v_fma_f32 v{SC+k}, v{SC+k}, s58, v13")
for k in range(32):
    e(f"v_exp_f32 v{SC+k}, v{SC+k}")
e("s_nop 0")
e(f"v_add_f32 v11, v{SC}, v{SC+1}")
e(f"v_add_f32 v14, v{SC+2}, v{SC+3}")
for k in range(4, 32, 2):
    e(f"v_add_f32 v11, v11, v{SC+k}")
    e(f"v_add_f32 v14, v14, v{SC+k+1}")
e("v_add_f32 v11, v11, v14")
for k in range(16):
    e(f"v_cvt_pk_bf16_f32 v{64+k}, v{SC+2*k}, v{SC+2*k+1}")
e("s_lshl_b32 s55, s31, 12")
e(f"v_add_u32 v7, s55, {V_L16}")
e(f"v_add_u32 v7, {L_PL}, v7")
for T in range(4):
    e(f"ds_write_b128 v7, v[{64+4*T}:{67+4*T}] offset:{T*1024}")
xlane("v_add_f32", "v11", "v14")
e("s_lshl_b32 s55, s31, 5")
e(f"s_add_u32 s55, s55, {L_SL}")
e("v_lshlrev_b32 v8, 3, v0")
e("v_add_u32 v8, s55, v8")
e("s_mov_b64 exec, 0xf")
e("ds_write_b64 v8, v[10:11]")
e("s_mov_b64 exec, -1")
e("s_waitcnt lgkmcnt(0)")
lds_set("v6", CF_P)
lds_set("v6", CF_SL)
stamp_if_role(0, 6)
if P["dbg"] == 4: e("s_branch L_end")
ls3, ls0, lsd = uid("Ls"), uid("Ls"), uid("Ls")
e("s_cmp_eq_u32 s31, 0")
e(f"s_cbranch_scc1 {ls0}")
e("s_cmp_lg_u32 s31, 3")
e(f"s_cbranch_scc1 {lsd}")
lds_wait4(CF_SL)
e("s_mov_b64 exec, 0xffff")
e("v_lshlrev_b32 v8, 3, v0")
e(f"v_add_u32 v8, {L_SL}, v8")
e("ds_read_b64 v[10:11], v8")
e("s_waitcnt lgkmcnt(0)")
e("v_max_f32_dpp v13, v10, v10 row_ror:4 row_mask:0xf bank_mask:0xf")
e("s_nop 1")
e("v_max_f32_dpp v13, v13, v13 row_ror:8 row_mask:0xf bank_mask:0xf")
e("v_sub_f32 v14, v10, v13")
e("v_exp_f32 v14, v14")
e("s_nop 0")
e("v_mul_f32 v14, v14, v11")
e("s_nop 1")
e("v_add_f32_dpp v15, v14, v14 row_ror:4 row_mask:0xf bank_mask:0xf")
e("s_nop 1")
e("v_add_f32_dpp v15, v15, v15 row_ror:8 row_mask:0xf bank_mask:0xf")
e("v_mov_b32 v20, v13")
e("v_mov_b32 v21, v15")
e("v_mov_b32 v22, s50")
e("v_mov_b32 v23, s51")
e("v_and_b32 v9, 3, v0")
e("v_lshlrev_b32 v9, 4, v9")
e("s_lshl_b32 s58, s2, 7")
e(f"s_add_u32 s58, s58, {WS_ST}")
e("s_xor_b32 s59, s58, 128")
e("s_mov_b64 exec, 0xf")
e(f"buffer_store_dwordx4 v[20:23], v9, {SRD_WS}, s58 offen sc1")
e("s_mov_b64 exec, 0xffff")
lp, ld = uid("Lp"), uid("Ld")
lab(lp)
e(f"buffer_load_dwordx4 v[24:27], v9, {SRD_WS}, s59 offen sc1")
e("s_waitcnt vmcnt(0)")
e("v_cmp_ne_u64 vcc, v[26:27], v[22:23]")
e(f"s_cbranch_vccz {ld}")
budget_check()
e("s_sleep 2")
e(f"s_branch {lp}")
lab(ld)
e("v_max_f32 v26, v13, v24")
e("v_sub_f32 v27, v13, v26")
e("v_sub_f32 v20, v24, v26")
e("v_sub_f32 v21, v10, v26")
e("v_exp_f32 v27, v27")
e("v_exp_f32 v20, v20")
e("v_exp_f32 v21, v21")
e("s_nop 0")
e("v_mul_f32 v27, v27, v15")
e("v_fmac_f32 v27, v20, v25")
e("v_rcp_f32 v27, v27")
e("s_nop 0")
e("v_mul_f32 v21, v21, v27")
e("v_lshlrev_b32 v8, 2, v0")
e(f"v_add_u32 v8, {L_FW}, v8")
e("ds_write_b32 v8, v21")
e("s_mov_b64 exec, -1")
e("s_waitcnt lgkmcnt(0)")
stamp(7)
e(f"s_branch {lsd}")
lab(ls0)
e("s_lshl_b32 s58, s4, 10")
e(f"s_add_u32 s58, s58, {WS_FL}")
e("v_mov_b32 v20, s50")
e("v_mov_b32 v21, s51")
lp, ld = uid("Lp"), uid("Ld")
lab(lp)
e(f"buffer_load_dwordx4 v[24:27], {V_L16}, {SRD_WS}, s58 offen sc1")
e("s_waitcnt vmcnt(0)")
e("v_cmp_ne_u64 vcc, v[24:25], v[20:21]")
e("v_cmp_ne_u64 s[56:57], v[26:27], v[20:21]")
e("s_or_b64 vcc, vcc, s[56:57]")
e(f"s_cbranch_vccz {ld}")
budget_check()
e("s_sleep 2")
e(f"s_branch {lp}")
lab(ld)
lab(lsd)
if P["s2bulk"]:
    e("s_barrier")
    e("s_cmp_lg_u32 s31, 0")
    e("s_cbranch_scc1 L_end")
    e("s_barrier")
else:
    if P["wolate"] in (1, 3):
        lds_wait1("v6", CF_VI)
    WO = 64; FO = 96; DO = 128
    e("s_lshl_b32 s56, s26, 9")
    e("s_and_b32 s57, s31, 1")
    e("s_lshl_b32 s57, s57, 6")
    e("s_add_u32 s56, s56, s57")
    e("s_lshl_b32 s57, s53, 1")
    e("s_add_u32 s56, s56, s57")
    e("s_lshr_b32 s57, s31, 1")
    e("s_add_u32 s56, s56, s57")
    e("s_lshl_b32 s56, s56, 10")
    e("s_lshl_b32 s57, s54, 8")
    e("s_add_u32 s56, s56, s57")
    e(f"v_lshlrev_b32 v8, 14, {V_G}")
    e(f"v_lshl_add_u32 v8, {V_C}, 4, v8")
    def wo_loads():
        if P["woprio"] != 3: e(f"s_setprio {P['woprio']}")
        for i in range(8):
            dd, h = i >> 2, i & 3
            e(f"s_add_u32 s57, s56, {(h*128 + 8*dd)*1024}")
            if P["wopace"] and i >= P["wopace"]: e(f"s_waitcnt vmcnt({P['wopace']-1})")
            e(f"buffer_load_dwordx4 v[{WO+4*i}:{WO+4*i+3}], v8, {SRD_B}, s57 offen{wpol}")
        if P["woprio"] != 3: e("s_setprio 3")
    if P["wolate"] != 2: wo_loads()
    e("v_and_b32 v9, 7, v0")
    e("v_lshlrev_b32 v9, 11, v9")
    e(f"v_lshrrev_b32 v10, 3, {V_C}")
    e("v_lshl_add_u32 v9, v10, 10, v9")
    e(f"v_lshl_add_u32 v9, {V_G}, 4, v9")
    e("s_lshl_b32 s58, s30, 14")
    e("s_lshl_b32 s59, s53, 8")
    e("s_add_u32 s58, s58, s59")
    e("s_lshl_b32 s59, s31, 6")
    e("s_add_u32 s58, s58, s59")
    e(f"s_add_u32 s58, s58, {WS_OP}")
    if P["dbg"] == 5:
        e("s_waitcnt vmcnt(0)")
        stamp_if_role(0, 13)
        e("s_branch L_end")
    e("s_barrier")
    if P["wolate"] == 2: wo_loads()
    stamp_if_role(0, 13)
    def wo_perms():
        e("s_waitcnt vmcnt(1)")
        perms_block(WO, FO)
        stamp_if_role(0, 14)
    if P["pipe"]:
        pipe_poll(1, lambda b: e(f"buffer_load_dwordx4 v[{b}:{b+3}], v9, {SRD_WS}, s58 offen sc1"),
                  16, [32 + 4*k for k in range(P["pipe"])], P["othr"], P["osleep"], pre=wo_perms)
    else:
        e("s_waitcnt vmcnt(0)")
        perms_block(WO, FO)
        lp, ld = uid("Lp"), uid("Ld")
        lab(lp)
        e(f"buffer_load_dwordx4 v[16:19], v9, {SRD_WS}, s58 offen sc1")
        e("s_waitcnt vmcnt(0)")
        e("v_max3_u32 v24, v16, v17, v18")
        e("v_max_u32 v24, v24, v19")
        e("v_cmp_eq_u32 vcc, -1, v24")
        e("s_mov_b64 exec, vcc")
        e(f"s_cbranch_execz {ld}")
        budget_check()
        if P["osleep"]: e(f"s_sleep {P['osleep']}")
        e(f"s_branch {lp}")
        lab(ld)
        e("s_mov_b64 exec, -1")
    stamp_if_role(0, 15)
    e("s_nop 3")
    for j in range(8):
        e(f"v_mfma_f32_16x16x32_bf16 v[{DO+4*j}:{DO+4*j+3}], v[16:19], v[{FO+4*j}:{FO+4*j+3}], 0")
    e("s_lshl_b32 s55, s31, 13")
    e(f"v_add_u32 v7, s55, {V_L16}")
    e("s_lshr_b32 s55, s31, 1")
    e("s_lshl_b32 s55, s55, 12")
    e("s_and_b32 s56, s31, 1")
    e("s_lshl_b32 s56, s56, 8")
    e("s_add_u32 s55, s55, s56")
    e(f"v_lshlrev_b32 v8, 10, {V_G}")
    e(f"v_lshl_add_u32 v8, {V_C}, 4, v8")
    e("v_add_u32 v8, s55, v8")
    for j in range(8):
        e(f"ds_write_b128 v7, v[{DO+4*j}:{DO+4*j+3}] offset:{j*1024}")
    e("s_waitcnt lgkmcnt(0)")
    e("s_barrier")
    for k in range(8):
        a, sp = k >> 1, k & 1
        e(f"ds_read_b128 v[{64+4*k}:{67+4*k}], v8 offset:{a*8192 + sp*512}")
    e("s_waitcnt lgkmcnt(6)")
    for r in range(4): e(f"v_add_f32 v{64+r}, v{64+r}, v{68+r}")
    e("s_waitcnt lgkmcnt(4)")
    for r in range(4): e(f"v_add_f32 v{72+r}, v{72+r}, v{76+r}")
    e("s_waitcnt lgkmcnt(2)")
    for r in range(4): e(f"v_add_f32 v{80+r}, v{80+r}, v{84+r}")
    for r in range(4): e(f"v_add_f32 v{64+r}, v{64+r}, v{72+r}")
    e("s_waitcnt lgkmcnt(0)")
    for r in range(4): e(f"v_add_f32 v{88+r}, v{88+r}, v{92+r}")
    for r in range(4): e(f"v_add_f32 v{80+r}, v{80+r}, v{88+r}")
    for r in range(4): e(f"v_add_f32 v{64+r}, v{64+r}, v{80+r}")
    for r in range(4): e(f"v_min_u32 v{64+r}, -2, v{64+r}")
    e(f"buffer_store_dwordx4 v[64:67], v12, {SRD_WS}, s60 offen sc1")
e("s_cmp_lg_u32 s31, 0")
e("s_cbranch_scc1 L_end")
if not P["s2bulk"]: stamp(16)
e("s_and_b32 s55, s2, 1")
e("s_lshl_b32 s56, s4, 1")
e("s_add_u32 s56, s56, s55")
e("s_lshl_b32 s56, s56, 18")
e("s_bfe_u32 s57, s2, 0x60001")
e("s_lshl_b32 s58, s57, 12")
e("s_add_u32 s56, s56, s58")
e(f"s_add_u32 s56, s56, {WS_RP}")
e("s_mov_b32 s44, s20"); e("s_mov_b32 s45, s21"); e("s_mov_b32 s46, 16384"); e("s_mov_b32 s47, 0x20000")
e("s_lshl_b32 s58, s55, 13")
e("s_lshl_b32 s59, s4, 10")
e("s_add_u32 s58, s58, s59")
e("s_lshl_b32 s59, s57, 4")
e("s_add_u32 s58, s58, s59")
e("v_lshlrev_b32 v8, 1, v0")
if P["pipe"]:
    def iss(b):
        for t in range(4):
            e(f"buffer_load_dwordx4 v[{b+4*t}:{b+4*t+3}], {V_L16}, {SRD_WS}, s56 offen offset:{t*1024} sc1")
    pipe_poll(4, iss, 16, [160 + 16*k for k in range(P["pipe"])], P["rthr"], P["osleep"])
else:
    lp, ld = uid("Lp"), uid("Ld")
    lab(lp)
    for t in range(4):
        e(f"buffer_load_dwordx4 v[{16+4*t}:{19+4*t}], {V_L16}, {SRD_WS}, s56 offen offset:{t*1024} sc1")
    e("s_waitcnt vmcnt(0)")
    e("v_max3_u32 v32, v16, v17, v18")
    e("v_max3_u32 v33, v19, v20, v21")
    e("v_max3_u32 v32, v32, v22, v23")
    e("v_max3_u32 v33, v33, v24, v25")
    e("v_max3_u32 v32, v32, v26, v27")
    e("v_max3_u32 v33, v33, v28, v29")
    e("v_max3_u32 v32, v32, v30, v31")
    e("v_max_u32 v32, v32, v33")
    e("v_cmp_eq_u32 vcc, -1, v32")
    e("s_mov_b64 exec, vcc")
    e(f"s_cbranch_execz {ld}")
    budget_check()
    if P["osleep"]: e(f"s_sleep {P['osleep']}")
    e(f"s_branch {lp}")
    lab(ld)
    e("s_mov_b64 exec, -1")
stamp(17)
for r in range(4): e(f"v_add_f32 v{16+r}, v{16+r}, v{20+r}")
for r in range(4): e(f"v_add_f32 v{24+r}, v{24+r}, v{28+r}")
for r in range(4): e(f"v_add_f32 v{16+r}, v{16+r}, v{24+r}")
e("s_nop 1")
for r in range(4): e(f"v_add_f32_dpp v{20+r}, v{16+r}, v{16+r} row_ror:8 row_mask:0xf bank_mask:0xf")
for r in range(4): e(f"v_mov_b32 v{24+r}, v{20+r}")
e("s_nop 1")
for r in range(4): e(f"v_permlane32_swap_b32 v{20+r}, v{24+r}")
e("s_nop 1")
for r in range(4): e(f"v_add_f32 v{20+r}, v{20+r}, v{24+r}")
for r in range(4): e(f"v_mov_b32 v{24+r}, v{20+r}")
e("s_nop 1")
for r in range(4): e(f"v_permlane16_swap_b32 v{20+r}, v{24+r}")
e("s_nop 1")
for r in range(4): e(f"v_add_f32 v{20+r}, v{20+r}, v{24+r}")
for r in range(4): e(f"v_cvt_pk_bf16_f32 v{20+r}, v{20+r}, v{20+r}")
e("s_mov_b64 exec, 0xff")
e("s_add_u32 s59, s58, 4096")
for r in range(4):
    e(f"buffer_store_short v{20+r}, v8, {SRD_X}, {'s58' if r < 2 else 's59'} offen offset:{(r&1)*2048}")
e("s_and_b32 s55, s2, 127")
e("s_cmp_lg_u32 s55, 0")
lfin = uid("Lf")
e(f"s_cbranch_scc1 {lfin}")
e("s_mov_b64 exec, 1")
e("v_mov_b32 v24, s50")
e("v_mov_b32 v25, s51")
e("v_mov_b32 v26, 0")
e("s_lshl_b32 s58, s4, 7")
e(f"buffer_store_dwordx2 v[24:25], v26, {SRD_WS}, s58 offen sc1")
lab(lfin)
if P["dclk"]:
    ldc = uid("Ldc")
    e("s_cmp_lg_u32 s2, 5")
    e(f"s_cbranch_scc1 {ldc}")
    e("s_memrealtime s[64:65]")
    e("s_memtime s[88:89]")
    e("s_mov_b32 s44, s22"); e("s_mov_b32 s45, s23"); e("s_mov_b32 s46, 256"); e("s_mov_b32 s47, 0x20000")
    e("s_waitcnt lgkmcnt(0)")
    e("s_sub_u32 s64, s64, s70")
    e("s_sub_u32 s88, s88, s86")
    e("s_mov_b64 exec, 1")
    e("v_mov_b32 v24, s64")
    e("v_mov_b32 v25, s88")
    e("v_mov_b32 v26, 0")
    e("buffer_store_dwordx2 v[24:25], v26, s[44:47], 0 offen")
    lab(ldc)
if P["dspan"]:
    e("s_waitcnt vmcnt(0)")
    e("s_memrealtime s[64:65]")
    e("s_mov_b32 s44, s22"); e("s_mov_b32 s45, s23"); e("s_mov_b32 s46, 256"); e("s_mov_b32 s47, 0x20000")
    e("s_waitcnt lgkmcnt(0)")
    e("s_mov_b64 exec, 1")
    e("s_not_b32 s66, s70")
    e("v_mov_b32 v24, s64")
    e("v_mov_b32 v25, s66")
    e("v_mov_b32 v26, 0")
    e("buffer_atomic_umax v24, v26, s[44:47], 0 offen")
    e("buffer_atomic_umax v25, v26, s[44:47], 0 offen offset:4")
    e("v_mov_b32 v24, s70")
    e("buffer_atomic_umax v24, v26, s[44:47], 0 offen offset:8")
    e("s_not_b32 s66, s64")
    e("v_mov_b32 v25, s66")
    e("buffer_atomic_umax v25, v26, s[44:47], 0 offen offset:12")
if NST:
    e("s_mov_b64 exec, -1")
    e("s_waitcnt vmcnt(0)")
    stamp(18)
lab("L_end")
e("s_endpgm")
lab("L_code_end")

ftr = f""".section .rodata,"a"
.p2align 6
.amdhsa_kernel {NAME}_kernel
  .amdhsa_next_free_vgpr 256
  .amdhsa_next_free_sgpr 102
  .amdhsa_accum_offset 256
  .amdhsa_group_segment_fixed_size 0
  .amdhsa_kernarg_size 104
  .amdhsa_user_sgpr_count 2
  .amdhsa_user_sgpr_kernarg_segment_ptr 1
  .amdhsa_system_sgpr_workgroup_id_x 1
.end_amdhsa_kernel
"""
open(out, "w").write(hdr + "\n" + "\n".join(L) + "\n" + ftr)
```

```python
import sys

out = sys.argv[1]
P = dict(padtop=0, padtail=0, dclk=0, cwarm=0, s2bulk=1, woprio=3, wopace=0, noclr=0, ilv=0, mimic=1, remap=0, rmul=5, warm=1, dspan=0, wothr=4, pipe=4, othr=24, rthr=32, pgap=2, psw=64, pace2=0, dbg=0, noswz=0, qprobe=0, smask=0, qdelay=32, osleep=2, qsleep=12, pace=8, stamps=0, pol="nt", wpol="nt", budget=1 << 22, wolate=2)
for a in sys.argv[2:]:
    k, v = a.split("=")
    P[k] = v if k in ("pol", "wpol") else int(v, 0)
NAME = "concat_heads__sliding_block_cached__sliding_block_cached__decode"
pol = "".join(" " + x for x in P["pol"].split("+") if x != "none")
wpol = "".join(" " + x for x in P["wpol"].split("+") if x != "none")
NST = P["stamps"]
NW_ = 2 if P["warm"] else 0
STAMPOFF = 200 << 20

WS_E = 0x0
WS_FL = 0x1000
WS_ST = 0x2000
WS_OP = 0x10000
WS_QP = 0x100000
WS_RP = 0x200000
WS_SIZE = 0x300000

L_K = 0
L_RR = 0
L_QR = 131072
L_PL = 131072
L_OR = 147456
L_QL = 155648
L_SL = 156672
L_FW = 156800
L_CF = 156928
CF_QR, CF_QST, CF_QL, CF_KL, CF_VI, CF_P, CF_SL, CF_GO = [16 * i for i in range(8)]
LDS_BYTES = 157184 + 128

L = []
def e(s): L.append("    " + s)
def lab(s): L.append(s + ":")
def cmt(s): L.append("    ; " + s)
_uid = [0]
def uid(p="L"):
    _uid[0] += 1
    return f"{p}_{_uid[0]}"

S_WG, S_WAVE, S_BR = "s2", "s3", "s4"
S_HKV, S_B, S_SPLIT, S_C, S_GRP, S_ROLE = "s26", "s27", "s28", "s29", "s30", "s31"
SRD_A, SRD_B, SRD_WS, SRD_X = "s[32:35]", "s[36:39]", "s[40:43]", "s[44:47]"
S_SELLO, S_SELHI = "s48", "s49"
S_TAG0, S_TAG1 = "s50", "s51"
S_BUD = "s52"
S_HI, S_LO = "s53", "s54"

V_LANE = "v0"
V_CF = "v1"
V_G = "v2"
V_C = "v3"
V_ONE = "v4"
V_L16 = "v5"

TMP = dict(st=250, w=244, pp=248)
def stamp(idx):
    if not NST: return
    if P["smask"] and not (P["smask"] >> idx) & 1: return
    t = TMP["st"]
    e("s_memrealtime s[64:65]")
    e("s_waitcnt lgkmcnt(0)")
    e("s_mov_b64 s[66:67], exec")
    e("s_mov_b64 exec, 1")
    e(f"v_mov_b32 v{t}, s64")
    e(f"v_mov_b32 v{t+1}, s65")
    e(f"v_mov_b32 v{t+2}, {idx*8}")
    e(f"buffer_store_dwordx2 v[{t}:{t+1}], v{t+2}, s[72:75], s68 offen")
    e("s_mov_b64 exec, s[66:67]")

def stamp_if_role(role, idx):
    if not NST: return
    if P["smask"] and not (P["smask"] >> idx) & 1: return
    l = uid("Lst")
    e(f"s_cmp_lg_u32 {S_ROLE}, {role}")
    e(f"s_cbranch_scc1 {l}")
    stamp(idx)
    lab(l)

def budget_check():
    e(f"s_sub_u32 {S_BUD}, {S_BUD}, 1")
    e("s_cbranch_scc1 L_end")

def lds_wait4(off, t="v[244:247]"):
    l, d = uid("Lw"), uid("Ld")
    lab(l)
    e(f"ds_read_b128 v[244:247], {V_CF} offset:{off}")
    e("s_waitcnt lgkmcnt(0)")
    e("v_and_b32 v244, v244, v245")
    e("v_and_b32 v246, v246, v247")
    e("v_and_b32 v244, v244, v246")
    e("s_nop 0")
    e("v_readfirstlane_b32 s55, v244")
    e("s_cmp_eq_u32 s55, 1")
    e(f"s_cbranch_scc1 {d}")
    budget_check()
    e("s_sleep 1")
    e(f"s_branch {l}")
    lab(d)

def lds_wait1(vaddr, off):
    l, d = uid("Lw"), uid("Ld")
    lab(l)
    e(f"ds_read_b32 v{TMP['w']}, {vaddr} offset:{off}")
    e("s_waitcnt lgkmcnt(0)")
    e(f"v_readfirstlane_b32 s55, v{TMP['w']}")
    e("s_cmp_eq_u32 s55, 1")
    e(f"s_cbranch_scc1 {d}")
    budget_check()
    e("s_sleep 1")
    e(f"s_branch {l}")
    lab(d)

def lds_set(vaddr, off):
    e(f"ds_write_b32 {vaddr}, {V_ONE} offset:{off}")


def pipe_poll(nload, issue, final, sets, slow_thresh, slow_sleep, pre=None):
    N = len(sets)
    nreg = 4 * nload
    ld = uid("Ld")
    def check(base, mask):
        e(f"s_mov_b64 exec, {mask}")
        regs = [f"v{base+i}" for i in range(nreg)]
        e(f"v_max3_u32 v{TMP['pp']}, {regs[0]}, {regs[1]}, {regs[2]}")
        rest = regs[3:]
        while len(rest) >= 2:
            e(f"v_max3_u32 v{TMP['pp']}, v{TMP['pp']}, {rest[0]}, {rest[1]}"); rest = rest[2:]
        if rest: e(f"v_max_u32 v{TMP['pp']}, v{TMP['pp']}, {rest[0]}")
        e(f"v_cmp_ne_u32 vcc, -1, v{TMP['pp']}")
        e("s_and_b64 exec, vcc, s[76:77]")
        for i in range(nreg): e(f"v_mov_b32 v{final+i}, v{base+i}")
        e("s_andn2_b64 s[76:77], s[76:77], exec")
        e(f"s_cbranch_scc0 {ld}")
    e("s_mov_b64 s[76:77], -1")
    ls, lf, l1 = uid("Lsl"), uid("Lfa"), uid("L1")
    if pre is not None:
        e("s_mov_b64 s[78:79], -1")
        issue(sets[0])
        pre()
        e(f"s_branch {l1}")
    lab(ls)
    e("s_mov_b64 exec, s[76:77]")
    e("s_mov_b64 s[78:79], s[76:77]")
    issue(sets[0])
    lab(l1)
    e("s_waitcnt vmcnt(0)")
    check(sets[0], "s[78:79]")
    e("s_bcnt1_i32_b64 s55, s[76:77]")
    e(f"s_cmp_le_u32 s55, {slow_thresh}")
    e(f"s_cbranch_scc1 {lf}")
    budget_check()
    if slow_sleep: e(f"s_sleep {slow_sleep}")
    e(f"s_branch {ls}")
    lab(lf)
    for k in range(N - 1):
        e("s_mov_b64 exec, s[76:77]")
        e(f"s_mov_b64 s[{78+2*k}:{79+2*k}], s[76:77]")
        issue(sets[k])
        if P["pgap"]: e(f"s_sleep {P['pgap']}")
    lp = uid("Lp")
    lab(lp)
    for k in range(N):
        kk = (k + N - 1) % N
        e("s_mov_b64 exec, s[76:77]")
        e(f"s_mov_b64 s[{78+2*kk}:{79+2*kk}], s[76:77]")
        issue(sets[kk])
        e(f"s_waitcnt vmcnt({(N-1)*nload})")
        check(sets[k], f"s[{78+2*k}:{79+2*k}]")
    budget_check()
    e(f"s_branch {lp}")
    lab(ld)
    e("s_mov_b64 exec, -1")

def perms_block(src, dst, plist=range(4)):
    for p in plist:
        for jj in range(4):
            a = src + 4 * (2 * p) + jj
            b = src + 4 * (2 * p + 1) + jj
            e(f"v_perm_b32 v{dst + 4*(2*jj) + p}, v{b}, v{a}, {S_SELLO}")
            e(f"v_perm_b32 v{dst + 4*(2*jj+1) + p}, v{b}, v{a}, {S_SELHI}")


def wo_addr(vreg):
    e("s_lshl_b32 s62, s26, 9")
    e("s_and_b32 s63, s31, 1")
    e("s_lshl_b32 s63, s63, 6")
    e("s_add_u32 s62, s62, s63")
    e("s_lshl_b32 s63, s53, 1")
    e("s_add_u32 s62, s62, s63")
    e("s_lshr_b32 s63, s31, 1")
    e("s_add_u32 s62, s62, s63")
    e("s_lshl_b32 s62, s62, 10")
    e("s_lshl_b32 s63, s54, 8")
    e("s_add_u32 s62, s62, s63")
    e(f"v_lshlrev_b32 {vreg}, 14, {V_G}")
    e(f"v_lshl_add_u32 {vreg}, {V_C}, 4, {vreg}")
def rp_addr(vreg):
    e("s_and_b32 s58, s31, 1")
    e("s_lshl_b32 s59, s4, 1")
    e("s_add_u32 s59, s59, s58")
    e("s_lshl_b32 s60, s59, 18")
    e("s_lshl_b32 s59, s54, 16")
    e("s_add_u32 s60, s60, s59")
    e("s_lshl_b32 s59, s26, 2")
    e("s_add_u32 s59, s59, s53")
    e("s_lshl_b32 s59, s59, 7")
    e("s_add_u32 s60, s60, s59")
    e("s_lshr_b32 s59, s31, 1")
    e("s_lshl_b32 s59, s59, 6")
    e("s_add_u32 s60, s60, s59")
    e(f"s_add_u32 s60, s60, {WS_RP}")
    e(f"v_lshlrev_b32 {vreg}, 12, {V_C}")
    e(f"v_lshl_add_u32 {vreg}, {V_G}, 4, {vreg}")
def op_addr():
    e("v_and_b32 v9, 7, v0")
    e("v_lshlrev_b32 v9, 11, v9")
    e(f"v_lshrrev_b32 v10, 3, {V_C}")
    e("v_lshl_add_u32 v9, v10, 10, v9")
    e(f"v_lshl_add_u32 v9, {V_G}, 4, v9")
    e("s_lshl_b32 s58, s30, 14")
    e("s_lshl_b32 s59, s53, 8")
    e("s_add_u32 s58, s58, s59")
    e("s_lshl_b32 s59, s31, 6")
    e("s_add_u32 s58, s58, s59")
    e(f"s_add_u32 s58, s58, {WS_OP}")
def stage2(WO, FO, DO, vrp, nwait):
    def wo_perms():
        e(f"s_waitcnt vmcnt({nwait})")
        perms_block(WO, FO)
        stamp_if_role(0, 14)
    pipe_poll(1, lambda b: e(f"buffer_load_dwordx4 v[{b}:{b+3}], v9, {SRD_WS}, s58 offen sc1"),
              16, [32 + 4*k for k in range(P["pipe"])], P["othr"], P["osleep"], pre=wo_perms)
    stamp_if_role(0, 15)
    e("s_nop 3")
    for j in range(8):
        e(f"v_mfma_f32_16x16x32_bf16 v[{DO+4*j}:{DO+4*j+3}], v[16:19], v[{FO+4*j}:{FO+4*j+3}], 0")
    e("s_lshl_b32 s55, s31, 13")
    e(f"v_add_u32 v7, s55, {V_L16}")
    e("s_lshr_b32 s55, s31, 1")
    e("s_lshl_b32 s55, s55, 12")
    e("s_and_b32 s56, s31, 1")
    e("s_lshl_b32 s56, s56, 8")
    e("s_add_u32 s55, s55, s56")
    e(f"v_lshlrev_b32 v8, 10, {V_G}")
    e(f"v_lshl_add_u32 v8, {V_C}, 4, v8")
    e("v_add_u32 v8, s55, v8")
    for j in range(8):
        e(f"ds_write_b128 v7, v[{DO+4*j}:{DO+4*j+3}] offset:{j*1024}")
    e("s_waitcnt lgkmcnt(0)")
    e("s_barrier")
    for k in range(8):
        a, sp = k >> 1, k & 1
        e(f"ds_read_b128 v[{64+4*k}:{67+4*k}], v8 offset:{a*8192 + sp*512}")
    e("s_waitcnt lgkmcnt(6)")
    for r in range(4): e(f"v_add_f32 v{64+r}, v{64+r}, v{68+r}")
    e("s_waitcnt lgkmcnt(4)")
    for r in range(4): e(f"v_add_f32 v{72+r}, v{72+r}, v{76+r}")
    e("s_waitcnt lgkmcnt(2)")
    for r in range(4): e(f"v_add_f32 v{80+r}, v{80+r}, v{84+r}")
    for r in range(4): e(f"v_add_f32 v{64+r}, v{64+r}, v{72+r}")
    e("s_waitcnt lgkmcnt(0)")
    for r in range(4): e(f"v_add_f32 v{88+r}, v{88+r}, v{92+r}")
    for r in range(4): e(f"v_add_f32 v{80+r}, v{80+r}, v{88+r}")
    for r in range(4): e(f"v_add_f32 v{64+r}, v{64+r}, v{80+r}")
    for r in range(4): e(f"v_min_u32 v{64+r}, -2, v{64+r}")
    e(f"buffer_store_dwordx4 v[64:67], {vrp}, {SRD_WS}, s60 offen sc1")
    stamp_if_role(0, 16)

hdr = f"""; fused sliding-window GQA decode attention (two branches), one persistent launch of 256 workgroups
; @launch grid=(256,1,1) block=(512,1,1) lds={LDS_BYTES}
.amdgcn_target "amdgcn-amd-amdhsa--gfx950"
.text
.globl {NAME}_kernel
.p2align 8
.type {NAME}_kernel,@function
{NAME}_kernel:"""

e("s_cmp_ge_u32 s2, 256")
e("s_cbranch_scc1 L_end")
for _ in range(P["padtop"]): e("s_nop 0")
if NST or P["dspan"] or P["dclk"]: e("s_memrealtime s[70:71]")
if P["dclk"]: e("s_memtime s[86:87]")
if NST: e(f"s_mul_i32 s68, s2, {NST*8}")
if P["remap"] == 1:
    e("s_and_b32 s4, s2, 7")
    e("s_lshl_b32 s4, s4, 5")
    e("s_bfe_u32 s5, s2, 0x10003")
    e("s_lshl_b32 s5, s5, 4")
    e("s_lshr_b32 s2, s2, 4")
    e("s_or_b32 s2, s2, s4")
    e("s_or_b32 s2, s2, s5")
e("s_lshr_b32 s4, s2, 7")
e("s_mul_i32 s5, s4, 40")
e("s_add_u32 s6, s0, s5")
e("s_addc_u32 s7, s1, 0")
e("s_load_dwordx8 s[8:15], s[6:7], 0")
e("s_load_dwordx2 s[16:17], s[6:7], 32")
e("s_load_dwordx4 s[20:23], s[0:1], 80")
e("s_load_dwordx2 s[24:25], s[0:1], 96")
if P["cwarm"] >= 10:
    e("s_getpc_b64 s[56:57]")
    lab("L_pc")
    e(f"s_sub_u32 s56, s56, L_pc - {NAME}_kernel")
    e("s_subb_u32 s57, s57, 0")
    e("v_lshlrev_b32 v8, 6, v0")
    e(f"v_cmp_gt_u32 vcc, L_code_end - {NAME}_kernel, v8")
    e("s_and_saveexec_b64 s[58:59], vcc")
    lct = uid("Lct")
    e(f"s_cbranch_execz {lct}")
    e("global_load_dword v15, v8, s[56:57]")
    lab(lct)
    e("s_mov_b64 exec, -1")
e("v_lshrrev_b32 v1, 6, v0")
e("v_and_b32 v0, 63, v0")
e("s_bfe_u32 s26, s2, 0x30004")
e("v_readfirstlane_b32 s3, v1")
e("s_bfe_u32 s27, s2, 0x30001")
e("s_and_b32 s28, s2, 1")
e("s_and_b32 s29, s2, 15")
e("s_lshr_b32 s30, s2, 4")
e("s_lshr_b32 s53, s29, 2")
e("s_and_b32 s54, s29, 3")
e("s_and_b32 s31, s3, 3")
e("s_mov_b32 s48, 0x05040100")
e("s_mov_b32 s49, 0x07060302")
e(f"s_mov_b32 s52, {P['budget']}")
e(f"v_mov_b32 {V_CF}, {L_CF}")
e(f"v_lshrrev_b32 {V_G}, 4, v0")
e(f"v_and_b32 {V_C}, 15, v0")
e(f"v_mov_b32 {V_ONE}, 1")
e(f"v_lshlrev_b32 {V_L16}, 4, v0")
e("s_lshl_b32 s55, s31, 2")
e(f"v_add_u32 v6, s55, {V_CF}")
e("s_waitcnt lgkmcnt(0)")
e("s_mov_b32 s40, s24"); e("s_mov_b32 s41, s25"); e(f"s_mov_b32 s42, {WS_SIZE}"); e("s_mov_b32 s43, 0x20000")
if NST:
    e(f"s_add_u32 s72, s24, {STAMPOFF}")
    e("s_addc_u32 s73, s25, 0")
    e(f"s_mov_b32 s74, {256*NST*8}")
    e("s_mov_b32 s75, 0x20000")
e("s_cmp_lt_u32 s3, 4")
e("s_cbranch_scc1 L_aux")

if P["s2bulk"]: TMP.update(st=12, w=8, pp=11)
NWO = 8 if P["s2bulk"] else 0
WOB = 224
VB = 64
FB = 192
AC = 16
PB = 48
e("s_mov_b32 s32, s10"); e("s_mov_b32 s33, s11"); e("s_mov_b32 s34, 0x4000000"); e("s_mov_b32 s35, 0x20000")
e("s_mov_b32 s36, s12"); e("s_mov_b32 s37, s13"); e("s_mov_b32 s38, 0x4000000"); e("s_mov_b32 s39, 0x20000")
e("s_lshl_b32 s56, s27, 23")
e("s_lshl_b32 s57, s26, 20")
e("s_add_u32 s56, s56, s57")
e("s_lshl_b32 s57, s28, 17")
e("s_add_u32 s56, s56, s57")
e("s_lshl_b32 s57, s31, 15")
if P["ilv"]:
    e("s_lshl_b32 s58, s31, 10")
    e("s_add_u32 s56, s56, s58")
else:
    e("s_add_u32 s56, s56, s57")
e(f"s_add_u32 s56, s56, {3072*256}")
e(f"v_lshlrev_b32 v12, 2, {V_G}")
e(f"v_lshlrev_b32 v13, 8, {V_G}")
for ii in range(4):
    e(f"v_add_u32 v14, {ii}, v12")
    e(f"v_xor_b32 v14, v14, {V_C}") if not P["noswz"] else e(f"v_mov_b32 v14, {V_C}")
    e(f"v_lshl_add_u32 v{8+ii}, v14, 4, v13")
PACE = P["pace"]
n_issued = 0
def pre_issue():
    global n_issued
    if n_issued == min(PACE, 8) if PACE else n_issued == 8:
        e("s_barrier")
        if NST and (P["smask"] >> 20) & 1:
            e(f"s_waitcnt vmcnt({n_issued - 1})")
            stamp_if_role(0, 20)
    pc = PACE if n_issued < P["psw"] else P["pace2"]
    if pc and n_issued >= pc:
        e(f"s_waitcnt vmcnt({pc-1})")
    n_issued += 1
kl_done = False
e(f"s_mul_i32 s61, s2, {P['rmul']}")
if not P["ilv"]:
    e("s_lshl_b32 s62, s31, 3")
    e("s_add_u32 s61, s61, s62")
CSH = 12 if P["ilv"] else 10
e(f"s_lshl_b32 s61, s61, {CSH}")
if P["warm"]:
    e("v_mov_b32 v15, 0")
    e(f"buffer_load_dword v15, v15, {SRD_B}, s56 offen")
def rotaddr(n):
    e(f"s_add_u32 s58, s61, {n << CSH}")
    e(f"s_and_b32 s58, s58, {31 << CSH}")
    e("s_add_u32 s58, s58, s56")
for n in range(32):
    e(f"s_add_u32 m0, s57, {n*1024}")
    rotaddr(n)
    pre_issue()
    e(f"buffer_load_dwordx4 v{8+(n&3)}, {SRD_A}, s58 offen{pol} lds")
for n in range(32):
    rotaddr(n)
    pre_issue()
    pc = PACE if (n_issued - 1) < P["psw"] else P["pace2"]
    if pc and not kl_done and (n_issued - 1) - pc >= 31:
        lds_set("v6", CF_KL)
        kl_done = True
        stamp_if_role(0, 8)
    r = VB + 4 * n
    e(f"buffer_load_dwordx4 v[{r}:{r+3}], {V_L16}, {SRD_B}, s58 offen{pol}")
if P["wolate"] != 3: lds_set("v6", CF_VI)
if not kl_done:
    e("s_waitcnt vmcnt(32)")
    lds_set("v6", CF_KL)
if P["s2bulk"]:
    e("s_mov_b32 s32, s16"); e("s_mov_b32 s33, s17"); e("s_mov_b32 s34, 0x400000"); e("s_mov_b32 s35, 0x20000")
    wo_addr("v7")
    for i in range(8):
        dd, h = i >> 2, i & 3
        e(f"s_add_u32 s63, s62, {(h*128 + 8*dd)*1024}")
        if P["wopace"]: pre_issue()
        e(f"buffer_load_dwordx4 v[{WOB+4*i}:{WOB+4*i+3}], v7, {SRD_A}, s63 offen{wpol}")
nst_extra = 0
if NST:
    stamp_if_role(0, 9)
if not P["dbg"]: lds_wait1("v6", CF_P)
stamp_if_role(0, 10)
e("s_lshl_b32 s55, s31, 12")
e(f"v_add_u32 v7, s55, {V_L16}")
e(f"v_add_u32 v7, {L_PL}, v7")
for T in range(4):
    e(f"ds_read_b128 v[{PB+4*T}:{PB+4*T+3}], v7 offset:{T*1024}")
for T in range(4):
    src = VB + 32 * T
    if T < 3:
        e(f"s_waitcnt vmcnt({24 - 8*T + NWO})")
        if P["wolate"] == 3 and P["wothr"] == 24 - 8*T: lds_set("v6", CF_VI)
        perms_block(src, FB)
    else:
        for p in range(4):
            e(f"s_waitcnt vmcnt({6 - 2*p + NWO})")
            if P["wolate"] == 3 and P["wothr"] == 6 - 2*p: lds_set("v6", CF_VI)
            perms_block(src, FB, [p])
    if T == 0: e("s_waitcnt lgkmcnt(0)")
    e("s_nop 1")
    for j in range(8):
        c = "0" if T == 0 else f"v[{AC+4*j}:{AC+4*j+3}]"
        e(f"v_mfma_f32_16x16x32_bf16 v[{AC+4*j}:{AC+4*j+3}], v[{PB+4*T}:{PB+4*T+3}], v[{FB+4*j}:{FB+4*j+3}], {c}")
stamp_if_role(0, 11)
if P["dbg"]: e("s_branch L_end")
e("s_lshl_b32 s55, s31, 11")
e(f"v_add_u32 v7, s55, {V_L16}")
e(f"v_add_u32 v7, {L_OR}, v7")
e("s_mov_b64 exec, 0xffff")
e("s_nop 4")
for j in range(8):
    e(f"ds_write_b128 v7, v[{AC+4*j}:{AC+4*j+3}] offset:{j*256}")
e("s_mov_b64 exec, -1")
e("s_waitcnt lgkmcnt(0)")
e("s_barrier")
e("s_cmp_ge_u32 s31, 2")
e("s_cbranch_scc1 L_end" if not P["s2bulk"] else "s_cbranch_scc1 L_s2x")
e("s_lshl_b32 s55, s31, 10")
e(f"v_add_u32 v7, s55, {V_L16}")
e(f"v_add_u32 v8, {L_OR}, v7")
e(f"v_mov_b32 v9, {L_FW}")
for w in range(4):
    e(f"ds_read_b128 v[{16+4*w}:{19+4*w}], v8 offset:{w*2048}")
    e(f"ds_read_b128 v[{32+4*w}:{35+4*w}], v9 offset:{w*16}")
e("s_lshl_b32 s55, s2, 10")
e(f"s_add_u32 s55, s55, {WS_OP}")
e("v_lshrrev_b32 v7, 1, v7")
e("s_waitcnt lgkmcnt(6)")
for h in range(4): e(f"v_mul_f32 v{48+h}, v{16+h}, v{32+h}")
for w in range(1, 4):
    e(f"s_waitcnt lgkmcnt({6-2*w})")
    for h in range(4): e(f"v_fmac_f32 v{48+h}, v{16+4*w+h}, v{32+4*w+h}")
e("v_cvt_pk_bf16_f32 v48, v48, v49")
e("v_cvt_pk_bf16_f32 v49, v50, v51")
e("v_min_u32 v48, -2, v48")
e("v_min_u32 v49, -2, v49")
e(f"buffer_store_dwordx2 v[48:49], v7, {SRD_WS}, s55 offen sc1")
stamp_if_role(0, 12)
if P["s2bulk"]:
    e("s_branch L_s2")
    lab("L_s2x")
    e("v_mov_b32 v14, 0")
    e(f"buffer_load_dword v14, v14, {SRD_WS}, 0 offen")
    lab("L_s2")
    rp_addr("v15")
    op_addr()
    stage2(WOB, FB, 128, "v15", 2)
    TMP.update(st=250, w=244, pp=248)
e("s_branch L_end")

lab("L_aux")
e("s_setprio 3")
stamp_if_role(0, 19)
if 0 < P["cwarm"] < 10:
    lcw = uid("Lcw")
    e(f"s_cmp_lg_u32 s31, {P['cwarm'] - 1}")
    e(f"s_cbranch_scc1 {lcw}")
    e("s_getpc_b64 s[56:57]")
    lab("L_pc")
    e(f"s_sub_u32 s56, s56, L_pc - {NAME}_kernel")
    e("s_subb_u32 s57, s57, 0")
    e("v_lshlrev_b32 v8, 7, v0")
    e(f"v_cmp_gt_u32 vcc, L_code_end - {NAME}_kernel, v8")
    e("s_and_saveexec_b64 s[58:59], vcc")
    e("global_load_dword v242, v8, s[56:57]")
    e("v_add_u32 v8, 8192, v8")
    e(f"v_cmp_gt_u32 vcc, L_code_end - {NAME}_kernel, v8")
    e("s_and_b64 exec, exec, vcc")
    lc2 = uid("Lcw")
    e(f"s_cbranch_execz {lc2}")
    e("global_load_dword v243, v8, s[56:57]")
    e("v_add_u32 v8, 8192, v8")
    e(f"v_cmp_gt_u32 vcc, L_code_end - {NAME}_kernel, v8")
    e("s_and_b64 exec, exec, vcc")
    e(f"s_cbranch_execz {lc2}")
    e("global_load_dword v239, v8, s[56:57]")
    lab(lc2)
    e("s_mov_b64 exec, -1")
    lab(lcw)
WQ = 64
FQ = 96
DQ = 128
XF = 16
e("s_mov_b32 s32, s14"); e("s_mov_b32 s33, s15"); e("s_mov_b32 s34, 0x400000"); e("s_mov_b32 s35, 0x20000")
e("s_mov_b32 s36, s16"); e("s_mov_b32 s37, s17"); e("s_mov_b32 s38, 0x400000"); e("s_mov_b32 s39, 0x20000")
e("s_mov_b32 s44, s8"); e("s_mov_b32 s45, s9"); e("s_mov_b32 s46, 8192"); e("s_mov_b32 s47, 0x20000")
e("s_lshl_b32 s56, s28, 8")
e("s_lshl_b32 s57, s31, 6")
e("s_add_u32 s56, s56, s57")
e("s_lshl_b32 s57, s56, 13")
e("s_lshl_b32 s58, s26, 10")
e("s_add_u32 s57, s57, s58")
e("s_lshl_b32 s58, s27, 7")
e("s_add_u32 s57, s57, s58")
e(f"v_lshrrev_b32 v10, 3, {V_C}")
e("v_and_b32 v11, 7, v0")
e(f"v_lshlrev_b32 v8, 16, {V_G}")
e("v_lshl_add_u32 v8, v10, 18, v8")
e("v_lshl_add_u32 v8, v11, 4, v8")
for i in range(8):
    e(f"s_add_u32 s58, s57, {i*8192}")
    e(f"buffer_load_dwordx4 v[{WQ+4*i}:{WQ+4*i+3}], v8, {SRD_A}, s58 offen{wpol}")
e("v_lshlrev_b32 v9, 10, v11")
e(f"v_lshl_add_u32 v9, {V_G}, 4, v9")
e("v_lshl_add_u32 v9, v10, 6, v9")
e("s_lshl_b32 s58, s56, 1")
e(f"buffer_load_dwordx4 v[{XF}:{XF+3}], v9, {SRD_X}, s58 offen")
e("s_lshl_b32 s58, s4, 7")
e("v_mov_b32 v10, 0")
e(f"buffer_load_dwordx2 v[20:21], v10, {SRD_WS}, s58 offen sc1")
e("v_mov_b32 v24, -1"); e("v_mov_b32 v25, -1"); e("v_mov_b32 v26, -1"); e("v_mov_b32 v27, -1")
lz = uid("Lz")
e("s_cmp_lg_u32 s31, 0")
e(f"s_cbranch_scc1 {lz}")
e(f"v_lshl_add_u32 v13, v0, 2, {V_CF}")
e("ds_write_b32 v13, v10")
e("s_waitcnt lgkmcnt(0)")
lab(lz)
e("s_and_b32 s58, s31, 1")
e("s_lshl_b32 s59, s4, 1")
e("s_add_u32 s59, s59, s58")
e("s_lshl_b32 s60, s59, 18")
e("s_lshl_b32 s59, s54, 16")
e("s_add_u32 s60, s60, s59")
e("s_lshl_b32 s59, s26, 2")
e("s_add_u32 s59, s59, s53")
e("s_lshl_b32 s59, s59, 7")
e("s_add_u32 s60, s60, s59")
e("s_lshr_b32 s59, s31, 1")
e("s_lshl_b32 s59, s59, 6")
e("s_add_u32 s60, s60, s59")
e(f"s_add_u32 s60, s60, {WS_RP}")
e(f"v_lshlrev_b32 v12, 12, {V_C}")
e(f"v_lshl_add_u32 v12, {V_G}, 4, v12")
if P["noclr"]: e("s_mov_b64 exec, 1")
e(f"buffer_store_dwordx4 v[24:27], v12, {SRD_WS}, s60 offen sc1")
e("s_lshl_b32 s58, s2, 10")
e("s_lshl_b32 s59, s31, 8")
e("s_add_u32 s58, s58, s59")
e(f"s_add_u32 s58, s58, {WS_OP}")
e("s_mov_b64 exec, 0xffff" if not P["noclr"] else "s_mov_b64 exec, 1")
e(f"buffer_store_dwordx4 v[24:27], {V_L16}, {SRD_WS}, s58 offen sc1")
e("s_mov_b64 exec, -1")
if P["warm"]:
    e("s_lshl_b32 s58, s26, 19")
    e("s_lshl_b32 s59, s31, 17")
    e("s_add_u32 s58, s58, s59")
    e(f"buffer_load_dword v240, v10, {SRD_B}, s58 offen")
    e("s_mov_b32 s80, s20"); e("s_mov_b32 s81, s21"); e("s_mov_b32 s82, 16384"); e("s_mov_b32 s83, 0x20000")
    e("buffer_load_dword v241, v10, s[80:83], 0 offen")
e("s_barrier")
if NST:
    l = uid("Lst")
    e("s_cmp_lg_u32 s31, 0")
    e(f"s_cbranch_scc1 {l}")
    e("v_mov_b32 v250, s70"); e("v_mov_b32 v251, s71"); e("v_mov_b32 v252, 0")
    e("s_mov_b64 exec, 1")
    e("buffer_store_dwordx2 v[250:251], v252, s[72:75], s68 offen")
    e("s_mov_b64 exec, -1")
    e(f"s_waitcnt vmcnt({3+NW_})")
    lab(l)
e(f"s_waitcnt vmcnt({2+NW_})" if not NST else f"s_waitcnt vmcnt({3+NW_})")
if NST:
    l = uid("Lst")
    e("s_cmp_eq_u32 s31, 0")
    e(f"s_cbranch_scc1 {l}")
    e(f"s_waitcnt vmcnt({2+NW_})")
    lab(l)
stamp_if_role(0, 1)
if P["dbg"] == 1: e("s_branch L_end")
perms_block(WQ, FQ)
e("v_readfirstlane_b32 s50, v20")
e("v_readfirstlane_b32 s51, v21")
for j in range(8):
    e(f"v_mfma_f32_16x16x32_bf16 v[{DQ+4*j}:{DQ+4*j+3}], v[{XF}:{XF+3}], v[{FQ+4*j}:{FQ+4*j+3}], 0")
e("s_add_u32 s50, s50, 1")
e("s_addc_u32 s51, s51, 0")
e("s_lshl_b32 s55, s31, 12")
e(f"s_add_u32 s55, s55, {L_QR}")
e(f"v_lshlrev_b32 v7, 7, {V_G}")
e("v_lshl_add_u32 v7, v11, 4, v7")
e("v_add_u32 v7, s55, v7")
e("s_mov_b32 exec_lo, 0x00ff00ff")
e("s_mov_b32 exec_hi, 0xff00ff00")
e("s_nop 1")
for j in range(8):
    e(f"ds_write_b128 v7, v[{DQ+4*j}:{DQ+4*j+3}] offset:{j*512}")
e("s_mov_b64 exec, -1")
e("s_waitcnt lgkmcnt(0)")
lds_set("v6", CF_QR)
e("s_lshl_b32 s55, s31, 10")
e(f"s_add_u32 s55, s55, {L_QR}")
e("v_lshlrev_b32 v7, 2, v0")
e("v_add_u32 v7, s55, v7")
e("v_and_b32 v8, 3, v0")
e("v_lshlrev_b32 v8, 13, v8")
e("v_lshrrev_b32 v9, 5, v0")
e("v_lshl_add_u32 v8, v9, 15, v8")
e("v_bfe_u32 v9, v0, 2, 3")
e("v_lshl_add_u32 v8, v9, 4, v8")
e("s_lshl_b32 s59, s30, 16")
e("s_lshl_b32 s61, s28, 12")
e("s_add_u32 s59, s59, s61")
e("s_lshl_b32 s61, s27, 9")
e("s_add_u32 s59, s59, s61")
e("s_lshl_b32 s61, s31, 7")
e("s_add_u32 s59, s59, s61")
e(f"s_add_u32 s59, s59, {WS_QP}")
e("v_mov_b32 v66, s50")
e("v_mov_b32 v67, s51")
lds_wait4(CF_QR)
for k in range(8):
    a_, s_ = k >> 1, k & 1
    e(f"ds_read2st64_b32 v[{68+2*k}:{69+2*k}], v7 offset0:{16*a_+s_} offset1:{16*a_+s_+2}")
e("s_waitcnt lgkmcnt(0)")
for k in range(4):
    e(f"v_add_f32 v{68+4*k}, v{68+4*k}, v{70+4*k}")
    e(f"v_add_f32 v{69+4*k}, v{69+4*k}, v{71+4*k}")
e("v_add_f32 v68, v68, v72"); e("v_add_f32 v69, v69, v73")
e("v_add_f32 v76, v76, v80"); e("v_add_f32 v77, v77, v81")
e("v_add_f32 v64, v68, v76"); e("v_add_f32 v65, v69, v77")
e(f"buffer_store_dwordx4 v[64:67], v8, {SRD_WS}, s59 offen sc1")
stamp_if_role(0, 2)
if P["dbg"] == 2: e("s_branch L_end")
e("s_lshl_b32 s58, s30, 16")
e("s_lshl_b32 s59, s27, 13")
e("s_add_u32 s58, s58, s59")
e("s_lshl_b32 s59, s31, 10")
e("s_add_u32 s58, s58, s59")
e(f"s_add_u32 s58, s58, {WS_QP}")
e("s_add_u32 s59, s58, 4096")
e("v_lshrrev_b32 v8, 5, v0")
e("v_lshlrev_b32 v8, 7, v8")
e("v_lshl_add_u32 v8, v11, 4, v8")
e("v_bfe_u32 v9, v0, 3, 2")
e("v_lshl_add_u32 v8, v9, 2, v8")
e("s_lshl_b32 s55, s31, 8")
e(f"s_add_u32 s55, s55, {L_QL}")
e("v_add_u32 v8, s55, v8")
if P["qdelay"]: e(f"s_sleep {P['qdelay']}")
if P["qprobe"]:
    e("v_and_b32 v9, 1, v0")
    e("v_lshlrev_b32 v9, 9, v9")
    e("v_lshrrev_b32 v10, 1, v0")
    e("v_lshl_add_u32 v9, v10, 12, v9")
    e("s_mov_b64 exec, 0xf")
    lp, ld = uid("Lp"), uid("Ld")
    lab(lp)
    e(f"buffer_load_dwordx4 v[68:71], v9, {SRD_WS}, s58 offen offset:496 sc1")
    e("s_waitcnt vmcnt(0)")
    e("v_cmp_ne_u64 vcc, v[70:71], v[66:67]")
    e("s_mov_b64 exec, vcc")
    e(f"s_cbranch_execz {ld}")
    budget_check()
    e(f"s_sleep {P['qsleep']}")
    e(f"s_branch {lp}")
    lab(ld)
    e("s_mov_b64 exec, -1")
lp, ld = uid("Lp"), uid("Ld")
lab(lp)
e(f"buffer_load_dwordx4 v[68:71], {V_L16}, {SRD_WS}, s58 offen sc1")
e(f"buffer_load_dwordx4 v[72:75], {V_L16}, {SRD_WS}, s59 offen sc1")
e("s_waitcnt vmcnt(0)")
e("v_cmp_ne_u64 vcc, v[70:71], v[66:67]")
e("v_cmp_ne_u64 s[56:57], v[74:75], v[66:67]")
e("s_or_b64 exec, vcc, s[56:57]")
e(f"s_cbranch_execz {ld}")
budget_check()
e(f"s_sleep {P['qsleep']}")
e(f"s_branch {lp}")
lab(ld)
e("s_mov_b64 exec, -1")
e("v_add_f32 v68, v68, v72"); e("v_add_f32 v69, v69, v73")
e("v_cvt_pk_bf16_f32 v68, v68, v69")
e("ds_write_b32 v8, v68")
lds_set("v6", CF_QST)
e("s_waitcnt lgkmcnt(0)")
lds_set("v6", CF_QL)
stamp_if_role(0, 3)
if P["dbg"] == 3: e("s_branch L_end")
lgo = uid("Lgo")
e("s_cmp_lg_u32 s31, 0")
e(f"s_cbranch_scc1 {lgo}")
lds_wait4(CF_QST)
e("s_lshl_b32 s58, s30, 7")
e(f"s_add_u32 s58, s58, {WS_FL}")
e("s_lshl_b32 s59, s29, 3")
e("v_mov_b32 v22, s59")
e("s_mov_b64 exec, 1")
e(f"buffer_store_dwordx2 v[66:67], v22, {SRD_WS}, s58 offen sc1")
e("s_mov_b64 exec, -1")
lab(lgo)
e(f"v_and_b32 v8, 3, {V_C}")
e("v_lshlrev_b32 v8, 2, v8")
e(f"v_lshrrev_b32 v9, 2, {V_C}")
e("v_add_u32 v8, v8, v9")
e("v_lshlrev_b32 v8, 8, v8")
e("s_lshl_b32 s55, s31, 15")
e("v_add_u32 v8, s55, v8")
for s in range(4):
    e(f"v_add_u32 v9, {4*s}, {V_G}")
    e(f"v_xor_b32 v9, v9, {V_C}")
    e(f"v_lshl_add_u32 v{28+s}, v9, 4, v8")
e(f"v_and_b32 v9, 3, {V_C}")
e("v_lshlrev_b32 v9, 8, v9")
e(f"v_lshl_add_u32 v9, {V_G}, 4, v9")
e(f"v_add_u32 v9, {L_QL}, v9")
lds_wait4(CF_QL)
stamp_if_role(0, 4)
QF = 32
for s in range(4):
    e(f"ds_read_b128 v[{QF+4*s}:{QF+4*s+3}], v9 offset:{s*64}")
lds_wait1("v6", CF_KL)
stamp_if_role(0, 5)
KF = 64
SC = 128
def kread(t):
    b = KF + 16 * (t & 3)
    for s in range(4):
        e(f"ds_read_b128 v[{b+4*s}:{b+4*s+3}], v{28+s} offset:{t*4096}")
kread(0); kread(1)
for t in range(8):
    if t + 2 < 8:
        kread(t + 2)
        e("s_waitcnt lgkmcnt(8)")
    else:
        e(f"s_waitcnt lgkmcnt({4*(7-t)})")
    b = KF + 16 * (t & 3)
    for s in range(4):
        c = "0" if s == 0 else f"v[{SC+4*t}:{SC+4*t+3}]"
        e(f"v_mfma_f32_16x16x32_bf16 v[{SC+4*t}:{SC+4*t+3}], v[{b+4*s}:{b+4*s+3}], v[{QF+4*s}:{QF+4*s+3}], {c}")
import math
CSC = (128 ** -0.5) * math.log2(math.e)
import struct
f2u = lambda x: struct.unpack('<I', struct.pack('<f', x))[0]
if P["mimic"]:
    e(f"s_mov_b32 s58, 0x{f2u(math.log2(math.e)):08x}")
    e(f"s_mov_b32 s59, 0x{f2u(128 ** -0.5):08x}")
    e("s_mov_b32 s57, 0xffff0000")
    e("s_nop 6")
    for k in range(16):
        e(f"v_cvt_pk_bf16_f32 v{64+k}, v{SC+2*k}, v{SC+2*k+1}")
    for k in range(16):
        e(f"v_lshlrev_b32 v{SC+2*k}, 16, v{64+k}")
        e(f"v_and_b32 v{SC+2*k+1}, s57, v{64+k}")
    for k in range(32):
        e(f"v_mul_f32 v{SC+k}, s59, v{SC+k}")
    for k in range(16):
        e(f"v_cvt_pk_bf16_f32 v{64+k}, v{SC+2*k}, v{SC+2*k+1}")
    for k in range(16):
        e(f"v_lshlrev_b32 v{SC+2*k}, 16, v{64+k}")
        e(f"v_and_b32 v{SC+2*k+1}, s57, v{64+k}")
else:
    e(f"s_mov_b32 s58, 0x{f2u(CSC):08x}")
    e("s_nop 7")
e(f"v_max3_f32 v10, v{SC}, v{SC+1}, v{SC+2}")
e(f"v_max3_f32 v11, v{SC+3}, v{SC+4}, v{SC+5}")
for k in range(6, 30, 4):
    e(f"v_max3_f32 v10, v10, v{SC+k}, v{SC+k+1}")
    e(f"v_max3_f32 v11, v11, v{SC+k+2}, v{SC+k+3}")
e(f"v_max3_f32 v10, v10, v{SC+30}, v{SC+31}")
e("v_max_f32 v10, v10, v11")
def xlane(op, v, t):
    e(f"v_mov_b32 {t}, {v}")
    e("s_nop 1")
    e(f"v_permlane32_swap_b32 {v}, {t}")
    e("s_nop 1")
    e(f"{op} {v}, {v}, {t}")
    e(f"v_mov_b32 {t}, {v}")
    e("s_nop 1")
    e(f"v_permlane16_swap_b32 {v}, {t}")
    e("s_nop 1")
    e(f"{op} {v}, {v}, {t}")
xlane("v_max_f32", "v10", "v11")
e("v_mul_f32 v10, s58, v10")
e("v_sub_f32 v13, 0, v10")
for k in range(32):
    e(f"v_fma_f32 v{SC+k}, v{SC+k}, s58, v13")
for k in range(32):
    e(f"v_exp_f32 v{SC+k}, v{SC+k}")
e("s_nop 0")
e(f"v_add_f32 v11, v{SC}, v{SC+1}")
e(f"v_add_f32 v14, v{SC+2}, v{SC+3}")
for k in range(4, 32, 2):
    e(f"v_add_f32 v11, v11, v{SC+k}")
    e(f"v_add_f32 v14, v14, v{SC+k+1}")
e("v_add_f32 v11, v11, v14")
for k in range(16):
    e(f"v_cvt_pk_bf16_f32 v{64+k}, v{SC+2*k}, v{SC+2*k+1}")
e("s_lshl_b32 s55, s31, 12")
e(f"v_add_u32 v7, s55, {V_L16}")
e(f"v_add_u32 v7, {L_PL}, v7")
for T in range(4):
    e(f"ds_write_b128 v7, v[{64+4*T}:{67+4*T}] offset:{T*1024}")
xlane("v_add_f32", "v11", "v14")
e("s_lshl_b32 s55, s31, 5")
e(f"s_add_u32 s55, s55, {L_SL}")
e("v_lshlrev_b32 v8, 3, v0")
e("v_add_u32 v8, s55, v8")
e("s_mov_b64 exec, 0xf")
e("ds_write_b64 v8, v[10:11]")
e("s_mov_b64 exec, -1")
e("s_waitcnt lgkmcnt(0)")
lds_set("v6", CF_P)
lds_set("v6", CF_SL)
stamp_if_role(0, 6)
if P["dbg"] == 4: e("s_branch L_end")
ls3, ls0, lsd = uid("Ls"), uid("Ls"), uid("Ls")
e("s_cmp_eq_u32 s31, 0")
e(f"s_cbranch_scc1 {ls0}")
e("s_cmp_lg_u32 s31, 3")
e(f"s_cbranch_scc1 {lsd}")
lds_wait4(CF_SL)
e("s_mov_b64 exec, 0xffff")
e("v_lshlrev_b32 v8, 3, v0")
e(f"v_add_u32 v8, {L_SL}, v8")
e("ds_read_b64 v[10:11], v8")
e("s_waitcnt lgkmcnt(0)")
e("v_max_f32_dpp v13, v10, v10 row_ror:4 row_mask:0xf bank_mask:0xf")
e("s_nop 1")
e("v_max_f32_dpp v13, v13, v13 row_ror:8 row_mask:0xf bank_mask:0xf")
e("v_sub_f32 v14, v10, v13")
e("v_exp_f32 v14, v14")
e("s_nop 0")
e("v_mul_f32 v14, v14, v11")
e("s_nop 1")
e("v_add_f32_dpp v15, v14, v14 row_ror:4 row_mask:0xf bank_mask:0xf")
e("s_nop 1")
e("v_add_f32_dpp v15, v15, v15 row_ror:8 row_mask:0xf bank_mask:0xf")
e("v_mov_b32 v20, v13")
e("v_mov_b32 v21, v15")
e("v_mov_b32 v22, s50")
e("v_mov_b32 v23, s51")
e("v_and_b32 v9, 3, v0")
e("v_lshlrev_b32 v9, 4, v9")
e("s_lshl_b32 s58, s2, 7")
e(f"s_add_u32 s58, s58, {WS_ST}")
e("s_xor_b32 s59, s58, 128")
e("s_mov_b64 exec, 0xf")
e(f"buffer_store_dwordx4 v[20:23], v9, {SRD_WS}, s58 offen sc1")
e("s_mov_b64 exec, 0xffff")
lp, ld = uid("Lp"), uid("Ld")
lab(lp)
e(f"buffer_load_dwordx4 v[24:27], v9, {SRD_WS}, s59 offen sc1")
e("s_waitcnt vmcnt(0)")
e("v_cmp_ne_u64 vcc, v[26:27], v[22:23]")
e(f"s_cbranch_vccz {ld}")
budget_check()
e("s_sleep 2")
e(f"s_branch {lp}")
lab(ld)
e("v_max_f32 v26, v13, v24")
e("v_sub_f32 v27, v13, v26")
e("v_sub_f32 v20, v24, v26")
e("v_sub_f32 v21, v10, v26")
e("v_exp_f32 v27, v27")
e("v_exp_f32 v20, v20")
e("v_exp_f32 v21, v21")
e("s_nop 0")
e("v_mul_f32 v27, v27, v15")
e("v_fmac_f32 v27, v20, v25")
e("v_rcp_f32 v27, v27")
e("s_nop 0")
e("v_mul_f32 v21, v21, v27")
e("v_lshlrev_b32 v8, 2, v0")
e(f"v_add_u32 v8, {L_FW}, v8")
e("ds_write_b32 v8, v21")
e("s_mov_b64 exec, -1")
e("s_waitcnt lgkmcnt(0)")
stamp(7)
e(f"s_branch {lsd}")
lab(ls0)
e("s_lshl_b32 s58, s4, 10")
e(f"s_add_u32 s58, s58, {WS_FL}")
e("v_mov_b32 v20, s50")
e("v_mov_b32 v21, s51")
lp, ld = uid("Lp"), uid("Ld")
lab(lp)
e(f"buffer_load_dwordx4 v[24:27], {V_L16}, {SRD_WS}, s58 offen sc1")
e("s_waitcnt vmcnt(0)")
e("v_cmp_ne_u64 vcc, v[24:25], v[20:21]")
e("v_cmp_ne_u64 s[56:57], v[26:27], v[20:21]")
e("s_or_b64 vcc, vcc, s[56:57]")
e(f"s_cbranch_vccz {ld}")
budget_check()
e("s_sleep 2")
e(f"s_branch {lp}")
lab(ld)
lab(lsd)
if P["s2bulk"]:
    e("s_barrier")
    e("s_cmp_lg_u32 s31, 0")
    e("s_cbranch_scc1 L_end")
    e("s_barrier")
else:
    if P["wolate"] in (1, 3):
        lds_wait1("v6", CF_VI)
    WO = 64; FO = 96; DO = 128
    e("s_lshl_b32 s56, s26, 9")
    e("s_and_b32 s57, s31, 1")
    e("s_lshl_b32 s57, s57, 6")
    e("s_add_u32 s56, s56, s57")
    e("s_lshl_b32 s57, s53, 1")
    e("s_add_u32 s56, s56, s57")
    e("s_lshr_b32 s57, s31, 1")
    e("s_add_u32 s56, s56, s57")
    e("s_lshl_b32 s56, s56, 10")
    e("s_lshl_b32 s57, s54, 8")
    e("s_add_u32 s56, s56, s57")
    e(f"v_lshlrev_b32 v8, 14, {V_G}")
    e(f"v_lshl_add_u32 v8, {V_C}, 4, v8")
    def wo_loads():
        if P["woprio"] != 3: e(f"s_setprio {P['woprio']}")
        for i in range(8):
            dd, h = i >> 2, i & 3
            e(f"s_add_u32 s57, s56, {(h*128 + 8*dd)*1024}")
            if P["wopace"] and i >= P["wopace"]: e(f"s_waitcnt vmcnt({P['wopace']-1})")
            e(f"buffer_load_dwordx4 v[{WO+4*i}:{WO+4*i+3}], v8, {SRD_B}, s57 offen{wpol}")
        if P["woprio"] != 3: e("s_setprio 3")
    if P["wolate"] != 2: wo_loads()
    e("v_and_b32 v9, 7, v0")
    e("v_lshlrev_b32 v9, 11, v9")
    e(f"v_lshrrev_b32 v10, 3, {V_C}")
    e("v_lshl_add_u32 v9, v10, 10, v9")
    e(f"v_lshl_add_u32 v9, {V_G}, 4, v9")
    e("s_lshl_b32 s58, s30, 14")
    e("s_lshl_b32 s59, s53, 8")
    e("s_add_u32 s58, s58, s59")
    e("s_lshl_b32 s59, s31, 6")
    e("s_add_u32 s58, s58, s59")
    e(f"s_add_u32 s58, s58, {WS_OP}")
    if P["dbg"] == 5:
        e("s_waitcnt vmcnt(0)")
        stamp_if_role(0, 13)
        e("s_branch L_end")
    e("s_barrier")
    if P["wolate"] == 2: wo_loads()
    stamp_if_role(0, 13)
    def wo_perms():
        e("s_waitcnt vmcnt(1)")
        perms_block(WO, FO)
        stamp_if_role(0, 14)
    if P["pipe"]:
        pipe_poll(1, lambda b: e(f"buffer_load_dwordx4 v[{b}:{b+3}], v9, {SRD_WS}, s58 offen sc1"),
                  16, [32 + 4*k for k in range(P["pipe"])], P["othr"], P["osleep"], pre=wo_perms)
    else:
        e("s_waitcnt vmcnt(0)")
        perms_block(WO, FO)
        lp, ld = uid("Lp"), uid("Ld")
        lab(lp)
        e(f"buffer_load_dwordx4 v[16:19], v9, {SRD_WS}, s58 offen sc1")
        e("s_waitcnt vmcnt(0)")
        e("v_max3_u32 v24, v16, v17, v18")
        e("v_max_u32 v24, v24, v19")
        e("v_cmp_eq_u32 vcc, -1, v24")
        e("s_mov_b64 exec, vcc")
        e(f"s_cbranch_execz {ld}")
        budget_check()
        if P["osleep"]: e(f"s_sleep {P['osleep']}")
        e(f"s_branch {lp}")
        lab(ld)
        e("s_mov_b64 exec, -1")
    stamp_if_role(0, 15)
    e("s_nop 3")
    for j in range(8):
        e(f"v_mfma_f32_16x16x32_bf16 v[{DO+4*j}:{DO+4*j+3}], v[16:19], v[{FO+4*j}:{FO+4*j+3}], 0")
    e("s_lshl_b32 s55, s31, 13")
    e(f"v_add_u32 v7, s55, {V_L16}")
    e("s_lshr_b32 s55, s31, 1")
    e("s_lshl_b32 s55, s55, 12")
    e("s_and_b32 s56, s31, 1")
    e("s_lshl_b32 s56, s56, 8")
    e("s_add_u32 s55, s55, s56")
    e(f"v_lshlrev_b32 v8, 10, {V_G}")
    e(f"v_lshl_add_u32 v8, {V_C}, 4, v8")
    e("v_add_u32 v8, s55, v8")
    for j in range(8):
        e(f"ds_write_b128 v7, v[{DO+4*j}:{DO+4*j+3}] offset:{j*1024}")
    e("s_waitcnt lgkmcnt(0)")
    e("s_barrier")
    for k in range(8):
        a, sp = k >> 1, k & 1
        e(f"ds_read_b128 v[{64+4*k}:{67+4*k}], v8 offset:{a*8192 + sp*512}")
    e("s_waitcnt lgkmcnt(6)")
    for r in range(4): e(f"v_add_f32 v{64+r}, v{64+r}, v{68+r}")
    e("s_waitcnt lgkmcnt(4)")
    for r in range(4): e(f"v_add_f32 v{72+r}, v{72+r}, v{76+r}")
    e("s_waitcnt lgkmcnt(2)")
    for r in range(4): e(f"v_add_f32 v{80+r}, v{80+r}, v{84+r}")
    for r in range(4): e(f"v_add_f32 v{64+r}, v{64+r}, v{72+r}")
    e("s_waitcnt lgkmcnt(0)")
    for r in range(4): e(f"v_add_f32 v{88+r}, v{88+r}, v{92+r}")
    for r in range(4): e(f"v_add_f32 v{80+r}, v{80+r}, v{88+r}")
    for r in range(4): e(f"v_add_f32 v{64+r}, v{64+r}, v{80+r}")
    for r in range(4): e(f"v_min_u32 v{64+r}, -2, v{64+r}")
    e(f"buffer_store_dwordx4 v[64:67], v12, {SRD_WS}, s60 offen sc1")
e("s_cmp_lg_u32 s31, 0")
e("s_cbranch_scc1 L_end")
if not P["s2bulk"]: stamp(16)
for _ in range(P["padtail"]): e("s_nop 0")
e("s_and_b32 s55, s2, 1")
e("s_lshl_b32 s56, s4, 1")
e("s_add_u32 s56, s56, s55")
e("s_lshl_b32 s56, s56, 18")
e("s_bfe_u32 s57, s2, 0x60001")
e("s_lshl_b32 s58, s57, 12")
e("s_add_u32 s56, s56, s58")
e(f"s_add_u32 s56, s56, {WS_RP}")
e("s_mov_b32 s44, s20"); e("s_mov_b32 s45, s21"); e("s_mov_b32 s46, 16384"); e("s_mov_b32 s47, 0x20000")
e("s_lshl_b32 s58, s55, 13")
e("s_lshl_b32 s59, s4, 10")
e("s_add_u32 s58, s58, s59")
e("s_lshl_b32 s59, s57, 4")
e("s_add_u32 s58, s58, s59")
e("v_lshlrev_b32 v8, 1, v0")
if P["pipe"]:
    def iss(b):
        for t in range(4):
            e(f"buffer_load_dwordx4 v[{b+4*t}:{b+4*t+3}], {V_L16}, {SRD_WS}, s56 offen offset:{t*1024} sc1")
    pipe_poll(4, iss, 16, [160 + 16*k for k in range(P["pipe"])], P["rthr"], P["osleep"])
else:
    lp, ld = uid("Lp"), uid("Ld")
    lab(lp)
    for t in range(4):
        e(f"buffer_load_dwordx4 v[{16+4*t}:{19+4*t}], {V_L16}, {SRD_WS}, s56 offen offset:{t*1024} sc1")
    e("s_waitcnt vmcnt(0)")
    e("v_max3_u32 v32, v16, v17, v18")
    e("v_max3_u32 v33, v19, v20, v21")
    e("v_max3_u32 v32, v32, v22, v23")
    e("v_max3_u32 v33, v33, v24, v25")
    e("v_max3_u32 v32, v32, v26, v27")
    e("v_max3_u32 v33, v33, v28, v29")
    e("v_max3_u32 v32, v32, v30, v31")
    e("v_max_u32 v32, v32, v33")
    e("v_cmp_eq_u32 vcc, -1, v32")
    e("s_mov_b64 exec, vcc")
    e(f"s_cbranch_execz {ld}")
    budget_check()
    if P["osleep"]: e(f"s_sleep {P['osleep']}")
    e(f"s_branch {lp}")
    lab(ld)
    e("s_mov_b64 exec, -1")
stamp(17)
for r in range(4): e(f"v_add_f32 v{16+r}, v{16+r}, v{20+r}")
for r in range(4): e(f"v_add_f32 v{24+r}, v{24+r}, v{28+r}")
for r in range(4): e(f"v_add_f32 v{16+r}, v{16+r}, v{24+r}")
e("s_nop 1")
for r in range(4): e(f"v_add_f32_dpp v{20+r}, v{16+r}, v{16+r} row_ror:8 row_mask:0xf bank_mask:0xf")
for r in range(4): e(f"v_mov_b32 v{24+r}, v{20+r}")
e("s_nop 1")
for r in range(4): e(f"v_permlane32_swap_b32 v{20+r}, v{24+r}")
e("s_nop 1")
for r in range(4): e(f"v_add_f32 v{20+r}, v{20+r}, v{24+r}")
for r in range(4): e(f"v_mov_b32 v{24+r}, v{20+r}")
e("s_nop 1")
for r in range(4): e(f"v_permlane16_swap_b32 v{20+r}, v{24+r}")
e("s_nop 1")
for r in range(4): e(f"v_add_f32 v{20+r}, v{20+r}, v{24+r}")
for r in range(4): e(f"v_cvt_pk_bf16_f32 v{20+r}, v{20+r}, v{20+r}")
e("s_mov_b64 exec, 0xff")
e("s_add_u32 s59, s58, 4096")
for r in range(4):
    e(f"buffer_store_short v{20+r}, v8, {SRD_X}, {'s58' if r < 2 else 's59'} offen offset:{(r&1)*2048}")
e("s_and_b32 s55, s2, 127")
e("s_cmp_lg_u32 s55, 0")
lfin = uid("Lf")
e(f"s_cbranch_scc1 {lfin}")
e("s_mov_b64 exec, 1")
e("v_mov_b32 v24, s50")
e("v_mov_b32 v25, s51")
e("v_mov_b32 v26, 0")
e("s_lshl_b32 s58, s4, 7")
e(f"buffer_store_dwordx2 v[24:25], v26, {SRD_WS}, s58 offen sc1")
lab(lfin)
if P["dclk"]:
    ldc = uid("Ldc")
    e("s_cmp_lg_u32 s2, 5")
    e(f"s_cbranch_scc1 {ldc}")
    e("s_memrealtime s[64:65]")
    e("s_memtime s[88:89]")
    e("s_mov_b32 s44, s22"); e("s_mov_b32 s45, s23"); e("s_mov_b32 s46, 256"); e("s_mov_b32 s47, 0x20000")
    e("s_waitcnt lgkmcnt(0)")
    e("s_sub_u32 s64, s64, s70")
    e("s_sub_u32 s88, s88, s86")
    e("s_mov_b64 exec, 1")
    e("v_mov_b32 v24, s64")
    e("v_mov_b32 v25, s88")
    e("v_mov_b32 v26, 0")
    e("buffer_store_dwordx2 v[24:25], v26, s[44:47], 0 offen")
    lab(ldc)
if P["dspan"]:
    e("s_waitcnt vmcnt(0)")
    e("s_memrealtime s[64:65]")
    e("s_mov_b32 s44, s22"); e("s_mov_b32 s45, s23"); e("s_mov_b32 s46, 256"); e("s_mov_b32 s47, 0x20000")
    e("s_waitcnt lgkmcnt(0)")
    e("s_mov_b64 exec, 1")
    e("s_not_b32 s66, s70")
    e("v_mov_b32 v24, s64")
    e("v_mov_b32 v25, s66")
    e("v_mov_b32 v26, 0")
    e("buffer_atomic_umax v24, v26, s[44:47], 0 offen")
    e("buffer_atomic_umax v25, v26, s[44:47], 0 offen offset:4")
    e("v_mov_b32 v24, s70")
    e("buffer_atomic_umax v24, v26, s[44:47], 0 offen offset:8")
    e("s_not_b32 s66, s64")
    e("v_mov_b32 v25, s66")
    e("buffer_atomic_umax v25, v26, s[44:47], 0 offen offset:12")
if NST:
    e("s_mov_b64 exec, -1")
    e("s_waitcnt vmcnt(0)")
    stamp(18)
lab("L_end")
e("s_endpgm")
lab("L_code_end")

ftr = f""".section .rodata,"a"
.p2align 6
.amdhsa_kernel {NAME}_kernel
  .amdhsa_next_free_vgpr 256
  .amdhsa_next_free_sgpr 102
  .amdhsa_accum_offset 256
  .amdhsa_group_segment_fixed_size 0
  .amdhsa_kernarg_size 104
  .amdhsa_user_sgpr_count 2
  .amdhsa_user_sgpr_kernarg_segment_ptr 1
  .amdhsa_system_sgpr_workgroup_id_x 1
.end_amdhsa_kernel
"""
open(out, "w").write(hdr + "\n" + "\n".join(L) + "\n" + ftr)
```

```python
import sys

out = sys.argv[1]
P = dict(fastpro=1, padtop=0, padtail=0, dclk=0, cwarm=0, s2bulk=1, woprio=3, wopace=0, noclr=0, ilv=0, mimic=1, remap=0, rmul=5, warm=1, dspan=0, wothr=4, pipe=4, othr=24, rthr=32, pgap=2, psw=64, pace2=0, dbg=0, noswz=0, qprobe=0, smask=0, qdelay=32, osleep=2, qsleep=12, pace=8, stamps=0, pol="nt", wpol="nt", budget=1 << 22, wolate=2)
for a in sys.argv[2:]:
    k, v = a.split("=")
    P[k] = v if k in ("pol", "wpol") else int(v, 0)
NAME = "concat_heads__sliding_block_cached__sliding_block_cached__decode"
pol = "".join(" " + x for x in P["pol"].split("+") if x != "none")
wpol = "".join(" " + x for x in P["wpol"].split("+") if x != "none")
NST = P["stamps"]
NW_ = 2 if P["warm"] else 0
STAMPOFF = 200 << 20

WS_E = 0x0
WS_FL = 0x1000
WS_ST = 0x2000
WS_OP = 0x10000
WS_QP = 0x100000
WS_RP = 0x200000
WS_SIZE = 0x300000

L_K = 0
L_RR = 0
L_QR = 131072
L_PL = 131072
L_OR = 147456
L_QL = 155648
L_SL = 156672
L_FW = 156800
L_CF = 156928
CF_QR, CF_QST, CF_QL, CF_KL, CF_VI, CF_P, CF_SL, CF_GO = [16 * i for i in range(8)]
LDS_BYTES = 157184 + 128

L = []
def e(s): L.append("    " + s)
def lab(s): L.append(s + ":")
def cmt(s): L.append("    ; " + s)
_uid = [0]
def uid(p="L"):
    _uid[0] += 1
    return f"{p}_{_uid[0]}"

S_WG, S_WAVE, S_BR = "s2", "s3", "s4"
S_HKV, S_B, S_SPLIT, S_C, S_GRP, S_ROLE = "s26", "s27", "s28", "s29", "s30", "s31"
SRD_A, SRD_B, SRD_WS, SRD_X = "s[32:35]", "s[36:39]", "s[40:43]", "s[44:47]"
S_SELLO, S_SELHI = "s48", "s49"
S_TAG0, S_TAG1 = "s50", "s51"
S_BUD = "s52"
S_HI, S_LO = "s53", "s54"

V_LANE = "v0"
V_CF = "v1"
V_G = "v2"
V_C = "v3"
V_ONE = "v4"
V_L16 = "v5"

TMP = dict(st=250, w=244, pp=248)
def stamp(idx):
    if not NST: return
    if P["smask"] and not (P["smask"] >> idx) & 1: return
    t = TMP["st"]
    e("s_memrealtime s[64:65]")
    e("s_waitcnt lgkmcnt(0)")
    e("s_mov_b64 s[66:67], exec")
    e("s_mov_b64 exec, 1")
    e(f"v_mov_b32 v{t}, s64")
    e(f"v_mov_b32 v{t+1}, s65")
    e(f"v_mov_b32 v{t+2}, {idx*8}")
    e(f"buffer_store_dwordx2 v[{t}:{t+1}], v{t+2}, s[72:75], s68 offen")
    e("s_mov_b64 exec, s[66:67]")

def stamp_if_role(role, idx):
    if not NST: return
    if P["smask"] and not (P["smask"] >> idx) & 1: return
    l = uid("Lst")
    e(f"s_cmp_lg_u32 {S_ROLE}, {role}")
    e(f"s_cbranch_scc1 {l}")
    stamp(idx)
    lab(l)

def budget_check():
    e(f"s_sub_u32 {S_BUD}, {S_BUD}, 1")
    e("s_cbranch_scc1 L_end")

def lds_wait4(off, t="v[244:247]"):
    l, d = uid("Lw"), uid("Ld")
    lab(l)
    e(f"ds_read_b128 v[244:247], {V_CF} offset:{off}")
    e("s_waitcnt lgkmcnt(0)")
    e("v_and_b32 v244, v244, v245")
    e("v_and_b32 v246, v246, v247")
    e("v_and_b32 v244, v244, v246")
    e("s_nop 0")
    e("v_readfirstlane_b32 s55, v244")
    e("s_cmp_eq_u32 s55, 1")
    e(f"s_cbranch_scc1 {d}")
    budget_check()
    e("s_sleep 1")
    e(f"s_branch {l}")
    lab(d)

def lds_wait1(vaddr, off):
    l, d = uid("Lw"), uid("Ld")
    lab(l)
    e(f"ds_read_b32 v{TMP['w']}, {vaddr} offset:{off}")
    e("s_waitcnt lgkmcnt(0)")
    e(f"v_readfirstlane_b32 s55, v{TMP['w']}")
    e("s_cmp_eq_u32 s55, 1")
    e(f"s_cbranch_scc1 {d}")
    budget_check()
    e("s_sleep 1")
    e(f"s_branch {l}")
    lab(d)

def lds_set(vaddr, off):
    e(f"ds_write_b32 {vaddr}, {V_ONE} offset:{off}")


def pipe_poll(nload, issue, final, sets, slow_thresh, slow_sleep, pre=None):
    N = len(sets)
    nreg = 4 * nload
    ld = uid("Ld")
    def check(base, mask):
        e(f"s_mov_b64 exec, {mask}")
        regs = [f"v{base+i}" for i in range(nreg)]
        e(f"v_max3_u32 v{TMP['pp']}, {regs[0]}, {regs[1]}, {regs[2]}")
        rest = regs[3:]
        while len(rest) >= 2:
            e(f"v_max3_u32 v{TMP['pp']}, v{TMP['pp']}, {rest[0]}, {rest[1]}"); rest = rest[2:]
        if rest: e(f"v_max_u32 v{TMP['pp']}, v{TMP['pp']}, {rest[0]}")
        e(f"v_cmp_ne_u32 vcc, -1, v{TMP['pp']}")
        e("s_and_b64 exec, vcc, s[76:77]")
        for i in range(nreg): e(f"v_mov_b32 v{final+i}, v{base+i}")
        e("s_andn2_b64 s[76:77], s[76:77], exec")
        e(f"s_cbranch_scc0 {ld}")
    e("s_mov_b64 s[76:77], -1")
    ls, lf, l1 = uid("Lsl"), uid("Lfa"), uid("L1")
    if pre is not None:
        e("s_mov_b64 s[78:79], -1")
        issue(sets[0])
        pre()
        e(f"s_branch {l1}")
    lab(ls)
    e("s_mov_b64 exec, s[76:77]")
    e("s_mov_b64 s[78:79], s[76:77]")
    issue(sets[0])
    lab(l1)
    e("s_waitcnt vmcnt(0)")
    check(sets[0], "s[78:79]")
    e("s_bcnt1_i32_b64 s55, s[76:77]")
    e(f"s_cmp_le_u32 s55, {slow_thresh}")
    e(f"s_cbranch_scc1 {lf}")
    budget_check()
    if slow_sleep: e(f"s_sleep {slow_sleep}")
    e(f"s_branch {ls}")
    lab(lf)
    for k in range(N - 1):
        e("s_mov_b64 exec, s[76:77]")
        e(f"s_mov_b64 s[{78+2*k}:{79+2*k}], s[76:77]")
        issue(sets[k])
        if P["pgap"]: e(f"s_sleep {P['pgap']}")
    lp = uid("Lp")
    lab(lp)
    for k in range(N):
        kk = (k + N - 1) % N
        e("s_mov_b64 exec, s[76:77]")
        e(f"s_mov_b64 s[{78+2*kk}:{79+2*kk}], s[76:77]")
        issue(sets[kk])
        e(f"s_waitcnt vmcnt({(N-1)*nload})")
        check(sets[k], f"s[{78+2*k}:{79+2*k}]")
    budget_check()
    e(f"s_branch {lp}")
    lab(ld)
    e("s_mov_b64 exec, -1")

def perms_block(src, dst, plist=range(4)):
    for p in plist:
        for jj in range(4):
            a = src + 4 * (2 * p) + jj
            b = src + 4 * (2 * p + 1) + jj
            e(f"v_perm_b32 v{dst + 4*(2*jj) + p}, v{b}, v{a}, {S_SELLO}")
            e(f"v_perm_b32 v{dst + 4*(2*jj+1) + p}, v{b}, v{a}, {S_SELHI}")


def wo_addr(vreg):
    e("s_lshl_b32 s62, s26, 9")
    e("s_and_b32 s63, s31, 1")
    e("s_lshl_b32 s63, s63, 6")
    e("s_add_u32 s62, s62, s63")
    e("s_lshl_b32 s63, s53, 1")
    e("s_add_u32 s62, s62, s63")
    e("s_lshr_b32 s63, s31, 1")
    e("s_add_u32 s62, s62, s63")
    e("s_lshl_b32 s62, s62, 10")
    e("s_lshl_b32 s63, s54, 8")
    e("s_add_u32 s62, s62, s63")
    e(f"v_lshlrev_b32 {vreg}, 14, {V_G}")
    e(f"v_lshl_add_u32 {vreg}, {V_C}, 4, {vreg}")
def rp_addr(vreg):
    e("s_and_b32 s58, s31, 1")
    e("s_lshl_b32 s59, s4, 1")
    e("s_add_u32 s59, s59, s58")
    e("s_lshl_b32 s60, s59, 18")
    e("s_lshl_b32 s59, s54, 16")
    e("s_add_u32 s60, s60, s59")
    e("s_lshl_b32 s59, s26, 2")
    e("s_add_u32 s59, s59, s53")
    e("s_lshl_b32 s59, s59, 7")
    e("s_add_u32 s60, s60, s59")
    e("s_lshr_b32 s59, s31, 1")
    e("s_lshl_b32 s59, s59, 6")
    e("s_add_u32 s60, s60, s59")
    e(f"s_add_u32 s60, s60, {WS_RP}")
    e(f"v_lshlrev_b32 {vreg}, 12, {V_C}")
    e(f"v_lshl_add_u32 {vreg}, {V_G}, 4, {vreg}")
def op_addr():
    e("v_and_b32 v9, 7, v0")
    e("v_lshlrev_b32 v9, 11, v9")
    e(f"v_lshrrev_b32 v10, 3, {V_C}")
    e("v_lshl_add_u32 v9, v10, 10, v9")
    e(f"v_lshl_add_u32 v9, {V_G}, 4, v9")
    e("s_lshl_b32 s58, s30, 14")
    e("s_lshl_b32 s59, s53, 8")
    e("s_add_u32 s58, s58, s59")
    e("s_lshl_b32 s59, s31, 6")
    e("s_add_u32 s58, s58, s59")
    e(f"s_add_u32 s58, s58, {WS_OP}")
def stage2(WO, FO, DO, vrp, nwait):
    def wo_perms():
        e(f"s_waitcnt vmcnt({nwait})")
        perms_block(WO, FO)
        stamp_if_role(0, 14)
    pipe_poll(1, lambda b: e(f"buffer_load_dwordx4 v[{b}:{b+3}], v9, {SRD_WS}, s58 offen sc1"),
              16, [32 + 4*k for k in range(P["pipe"])], P["othr"], P["osleep"], pre=wo_perms)
    stamp_if_role(0, 15)
    e("s_nop 3")
    for j in range(8):
        e(f"v_mfma_f32_16x16x32_bf16 v[{DO+4*j}:{DO+4*j+3}], v[16:19], v[{FO+4*j}:{FO+4*j+3}], 0")
    e("s_lshl_b32 s55, s31, 13")
    e(f"v_add_u32 v7, s55, {V_L16}")
    e("s_lshr_b32 s55, s31, 1")
    e("s_lshl_b32 s55, s55, 12")
    e("s_and_b32 s56, s31, 1")
    e("s_lshl_b32 s56, s56, 8")
    e("s_add_u32 s55, s55, s56")
    e(f"v_lshlrev_b32 v8, 10, {V_G}")
    e(f"v_lshl_add_u32 v8, {V_C}, 4, v8")
    e("v_add_u32 v8, s55, v8")
    for j in range(8):
        e(f"ds_write_b128 v7, v[{DO+4*j}:{DO+4*j+3}] offset:{j*1024}")
    e("s_waitcnt lgkmcnt(0)")
    e("s_barrier")
    for k in range(8):
        a, sp = k >> 1, k & 1
        e(f"ds_read_b128 v[{64+4*k}:{67+4*k}], v8 offset:{a*8192 + sp*512}")
    e("s_waitcnt lgkmcnt(6)")
    for r in range(4): e(f"v_add_f32 v{64+r}, v{64+r}, v{68+r}")
    e("s_waitcnt lgkmcnt(4)")
    for r in range(4): e(f"v_add_f32 v{72+r}, v{72+r}, v{76+r}")
    e("s_waitcnt lgkmcnt(2)")
    for r in range(4): e(f"v_add_f32 v{80+r}, v{80+r}, v{84+r}")
    for r in range(4): e(f"v_add_f32 v{64+r}, v{64+r}, v{72+r}")
    e("s_waitcnt lgkmcnt(0)")
    for r in range(4): e(f"v_add_f32 v{88+r}, v{88+r}, v{92+r}")
    for r in range(4): e(f"v_add_f32 v{80+r}, v{80+r}, v{88+r}")
    for r in range(4): e(f"v_add_f32 v{64+r}, v{64+r}, v{80+r}")
    for r in range(4): e(f"v_min_u32 v{64+r}, -2, v{64+r}")
    e(f"buffer_store_dwordx4 v[64:67], {vrp}, {SRD_WS}, s60 offen sc1")
    stamp_if_role(0, 16)

hdr = f"""; fused sliding-window GQA decode attention (two branches), one persistent launch of 256 workgroups
; @launch grid=(256,1,1) block=(512,1,1) lds={LDS_BYTES}
.amdgcn_target "amdgcn-amd-amdhsa--gfx950"
.text
.globl {NAME}_kernel
.p2align 8
.type {NAME}_kernel,@function
{NAME}_kernel:"""

e("s_cmp_ge_u32 s2, 256")
e("s_cbranch_scc1 L_end")
for _ in range(P["padtop"]): e("s_nop 0")
if NST or P["dspan"] or P["dclk"]: e("s_memrealtime s[70:71]")
if P["dclk"]: e("s_memtime s[86:87]")
if NST: e(f"s_mul_i32 s68, s2, {NST*8}")
if P["remap"] == 1:
    e("s_and_b32 s4, s2, 7")
    e("s_lshl_b32 s4, s4, 5")
    e("s_bfe_u32 s5, s2, 0x10003")
    e("s_lshl_b32 s5, s5, 4")
    e("s_lshr_b32 s2, s2, 4")
    e("s_or_b32 s2, s2, s4")
    e("s_or_b32 s2, s2, s5")
e("s_lshr_b32 s4, s2, 7")
e("s_mul_i32 s5, s4, 40")
e("s_add_u32 s6, s0, s5")
e("s_addc_u32 s7, s1, 0")
def common_late():
    e("s_and_b32 s29, s2, 15")
    e("s_lshr_b32 s30, s2, 4")
    e("s_lshr_b32 s53, s29, 2")
    e("s_and_b32 s54, s29, 3")
    e("s_mov_b32 s48, 0x05040100")
    e("s_mov_b32 s49, 0x07060302")
    e(f"s_mov_b32 s52, {P['budget']}")
    e(f"v_mov_b32 {V_CF}, {L_CF}")
    e(f"v_mov_b32 {V_ONE}, 1")
    e(f"v_lshlrev_b32 {V_L16}, 4, v0")
    e("s_lshl_b32 s55, s31, 2")
    e(f"v_add_u32 v6, s55, {V_CF}")
    e(f"s_mov_b32 s42, {WS_SIZE}"); e("s_mov_b32 s43, 0x20000")
    if NST:
        e(f"s_add_u32 s72, s40, {STAMPOFF}")
        e("s_addc_u32 s73, s41, 0")
        e(f"s_mov_b32 s74, {256*NST*8}")
        e("s_mov_b32 s75, 0x20000")
if P["fastpro"]:
    e("s_load_dwordx4 s[8:11], s[6:7], 8")
    e("s_load_dwordx4 s[12:15], s[6:7], 24")
    e("v_lshrrev_b32 v1, 6, v0")
    e("v_and_b32 v0, 63, v0")
    e("s_bfe_u32 s26, s2, 0x30004")
    e("v_readfirstlane_b32 s3, v1")
    e("s_bfe_u32 s27, s2, 0x30001")
    e("s_and_b32 s28, s2, 1")
    e(f"v_lshrrev_b32 {V_G}, 4, v0")
    e(f"v_and_b32 {V_C}, 15, v0")
    e("s_and_b32 s31, s3, 3")
    e("s_cmp_lt_u32 s3, 4")
    e("s_cbranch_scc1 L_aux")
else:
    e("s_load_dwordx8 s[8:15], s[6:7], 0")
    e("s_load_dwordx2 s[16:17], s[6:7], 32")
    e("s_load_dwordx4 s[20:23], s[0:1], 80")
    e("s_load_dwordx2 s[24:25], s[0:1], 96")
    if P["cwarm"] >= 10:
        e("s_getpc_b64 s[56:57]")
        lab("L_pc")
        e(f"s_sub_u32 s56, s56, L_pc - {NAME}_kernel")
        e("s_subb_u32 s57, s57, 0")
        e("v_lshlrev_b32 v8, 6, v0")
        e(f"v_cmp_gt_u32 vcc, L_code_end - {NAME}_kernel, v8")
        e("s_and_saveexec_b64 s[58:59], vcc")
        lct = uid("Lct")
        e(f"s_cbranch_execz {lct}")
        e("global_load_dword v15, v8, s[56:57]")
        lab(lct)
        e("s_mov_b64 exec, -1")
    e("v_lshrrev_b32 v1, 6, v0")
    e("v_and_b32 v0, 63, v0")
    e("s_bfe_u32 s26, s2, 0x30004")
    e("v_readfirstlane_b32 s3, v1")
    e("s_bfe_u32 s27, s2, 0x30001")
    e("s_and_b32 s28, s2, 1")
    e("s_and_b32 s29, s2, 15")
    e("s_lshr_b32 s30, s2, 4")
    e("s_lshr_b32 s53, s29, 2")
    e("s_and_b32 s54, s29, 3")
    e("s_and_b32 s31, s3, 3")
    e("s_mov_b32 s48, 0x05040100")
    e("s_mov_b32 s49, 0x07060302")
    e(f"s_mov_b32 s52, {P['budget']}")
    e(f"v_mov_b32 {V_CF}, {L_CF}")
    e(f"v_lshrrev_b32 {V_G}, 4, v0")
    e(f"v_and_b32 {V_C}, 15, v0")
    e(f"v_mov_b32 {V_ONE}, 1")
    e(f"v_lshlrev_b32 {V_L16}, 4, v0")
    e("s_lshl_b32 s55, s31, 2")
    e(f"v_add_u32 v6, s55, {V_CF}")
    e("s_waitcnt lgkmcnt(0)")
    e("s_mov_b32 s40, s24"); e("s_mov_b32 s41, s25"); e(f"s_mov_b32 s42, {WS_SIZE}"); e("s_mov_b32 s43, 0x20000")
    if NST:
        e(f"s_add_u32 s72, s24, {STAMPOFF}")
        e("s_addc_u32 s73, s25, 0")
        e(f"s_mov_b32 s74, {256*NST*8}")
        e("s_mov_b32 s75, 0x20000")
    e("s_cmp_lt_u32 s3, 4")
    e("s_cbranch_scc1 L_aux")


if P["s2bulk"]: TMP.update(st=12, w=8, pp=11)
NWO = 8 if P["s2bulk"] else 0
WOB = 224
VB = 64
FB = 192
AC = 16
PB = 48
if P["fastpro"]:
    e("s_load_dwordx2 s[40:41], s[0:1], 96")
    e("s_mov_b32 s34, 0x4000000"); e("s_mov_b32 s35, 0x20000")
else:
    e("s_mov_b32 s32, s10"); e("s_mov_b32 s33, s11"); e("s_mov_b32 s34, 0x4000000"); e("s_mov_b32 s35, 0x20000")
    e("s_mov_b32 s36, s12"); e("s_mov_b32 s37, s13"); e("s_mov_b32 s38, 0x4000000"); e("s_mov_b32 s39, 0x20000")
e("s_lshl_b32 s56, s27, 23")
e("s_lshl_b32 s57, s26, 20")
e("s_add_u32 s56, s56, s57")
e("s_lshl_b32 s57, s28, 17")
e("s_add_u32 s56, s56, s57")
e("s_lshl_b32 s57, s31, 15")
if P["ilv"]:
    e("s_lshl_b32 s58, s31, 10")
    e("s_add_u32 s56, s56, s58")
else:
    e("s_add_u32 s56, s56, s57")
e(f"s_add_u32 s56, s56, {3072*256}")
e(f"v_lshlrev_b32 v12, 2, {V_G}")
e(f"v_lshlrev_b32 v13, 8, {V_G}")
for ii in range(4):
    e(f"v_add_u32 v14, {ii}, v12")
    e(f"v_xor_b32 v14, v14, {V_C}") if not P["noswz"] else e(f"v_mov_b32 v14, {V_C}")
    e(f"v_lshl_add_u32 v{8+ii}, v14, 4, v13")
PACE = P["pace"]
n_issued = 0
def pre_issue():
    global n_issued
    if n_issued == min(PACE, 8) if PACE else n_issued == 8:
        if P["fastpro"]:
            common_late()
            e("s_mov_b32 s36, s10"); e("s_mov_b32 s37, s11")
            e("s_mov_b32 s38, 0x4000000"); e("s_mov_b32 s39, 0x20000")
            if P["s2bulk"]: e("s_mov_b32 s16, s14"); e("s_mov_b32 s17, s15")
        e("s_barrier")
        if NST and (P["smask"] >> 20) & 1:
            e(f"s_waitcnt vmcnt({n_issued - 1})")
            stamp_if_role(0, 20)
    pc = PACE if n_issued < P["psw"] else P["pace2"]
    if pc and n_issued >= pc:
        e(f"s_waitcnt vmcnt({pc-1})")
    n_issued += 1
kl_done = False
e(f"s_mul_i32 s61, s2, {P['rmul']}")
if not P["ilv"]:
    e("s_lshl_b32 s62, s31, 3")
    e("s_add_u32 s61, s61, s62")
CSH = 12 if P["ilv"] else 10
e(f"s_lshl_b32 s61, s61, {CSH}")
if P["warm"] and not P["fastpro"]:
    e("v_mov_b32 v15, 0")
    e(f"buffer_load_dword v15, v15, {SRD_B}, s56 offen")
if P["fastpro"]:
    e("s_waitcnt lgkmcnt(0)")
    e("s_mov_b32 s32, s8"); e("s_mov_b32 s33, s9")
def rotaddr(n):
    e(f"s_add_u32 s58, s61, {n << CSH}")
    e(f"s_and_b32 s58, s58, {31 << CSH}")
    e("s_add_u32 s58, s58, s56")
for n in range(32):
    e(f"s_add_u32 m0, s57, {n*1024}")
    rotaddr(n)
    pre_issue()
    e(f"buffer_load_dwordx4 v{8+(n&3)}, {SRD_A}, s58 offen{pol} lds")
for n in range(32):
    rotaddr(n)
    pre_issue()
    pc = PACE if (n_issued - 1) < P["psw"] else P["pace2"]
    if pc and not kl_done and (n_issued - 1) - pc >= 31:
        lds_set("v6", CF_KL)
        kl_done = True
        stamp_if_role(0, 8)
    r = VB + 4 * n
    e(f"buffer_load_dwordx4 v[{r}:{r+3}], {V_L16}, {SRD_B}, s58 offen{pol}")
if P["wolate"] != 3: lds_set("v6", CF_VI)
if not kl_done:
    e("s_waitcnt vmcnt(32)")
    lds_set("v6", CF_KL)
if P["s2bulk"]:
    e("s_mov_b32 s32, s16"); e("s_mov_b32 s33, s17"); e("s_mov_b32 s34, 0x400000"); e("s_mov_b32 s35, 0x20000")
    wo_addr("v7")
    for i in range(8):
        dd, h = i >> 2, i & 3
        e(f"s_add_u32 s63, s62, {(h*128 + 8*dd)*1024}")
        if P["wopace"]: pre_issue()
        e(f"buffer_load_dwordx4 v[{WOB+4*i}:{WOB+4*i+3}], v7, {SRD_A}, s63 offen{wpol}")
nst_extra = 0
if NST:
    stamp_if_role(0, 9)
if not P["dbg"]: lds_wait1("v6", CF_P)
stamp_if_role(0, 10)
e("s_lshl_b32 s55, s31, 12")
e(f"v_add_u32 v7, s55, {V_L16}")
e(f"v_add_u32 v7, {L_PL}, v7")
for T in range(4):
    e(f"ds_read_b128 v[{PB+4*T}:{PB+4*T+3}], v7 offset:{T*1024}")
for T in range(4):
    src = VB + 32 * T
    if T < 3:
        e(f"s_waitcnt vmcnt({24 - 8*T + NWO})")
        if P["wolate"] == 3 and P["wothr"] == 24 - 8*T: lds_set("v6", CF_VI)
        perms_block(src, FB)
    else:
        for p in range(4):
            e(f"s_waitcnt vmcnt({6 - 2*p + NWO})")
            if P["wolate"] == 3 and P["wothr"] == 6 - 2*p: lds_set("v6", CF_VI)
            perms_block(src, FB, [p])
    if T == 0: e("s_waitcnt lgkmcnt(0)")
    e("s_nop 1")
    for j in range(8):
        c = "0" if T == 0 else f"v[{AC+4*j}:{AC+4*j+3}]"
        e(f"v_mfma_f32_16x16x32_bf16 v[{AC+4*j}:{AC+4*j+3}], v[{PB+4*T}:{PB+4*T+3}], v[{FB+4*j}:{FB+4*j+3}], {c}")
stamp_if_role(0, 11)
if P["dbg"]: e("s_branch L_end")
e("s_lshl_b32 s55, s31, 11")
e(f"v_add_u32 v7, s55, {V_L16}")
e(f"v_add_u32 v7, {L_OR}, v7")
e("s_mov_b64 exec, 0xffff")
e("s_nop 4")
for j in range(8):
    e(f"ds_write_b128 v7, v[{AC+4*j}:{AC+4*j+3}] offset:{j*256}")
e("s_mov_b64 exec, -1")
e("s_waitcnt lgkmcnt(0)")
e("s_barrier")
e("s_cmp_ge_u32 s31, 2")
e("s_cbranch_scc1 L_end" if not P["s2bulk"] else "s_cbranch_scc1 L_s2x")
e("s_lshl_b32 s55, s31, 10")
e(f"v_add_u32 v7, s55, {V_L16}")
e(f"v_add_u32 v8, {L_OR}, v7")
e(f"v_mov_b32 v9, {L_FW}")
for w in range(4):
    e(f"ds_read_b128 v[{16+4*w}:{19+4*w}], v8 offset:{w*2048}")
    e(f"ds_read_b128 v[{32+4*w}:{35+4*w}], v9 offset:{w*16}")
e("s_lshl_b32 s55, s2, 10")
e(f"s_add_u32 s55, s55, {WS_OP}")
e("v_lshrrev_b32 v7, 1, v7")
e("s_waitcnt lgkmcnt(6)")
for h in range(4): e(f"v_mul_f32 v{48+h}, v{16+h}, v{32+h}")
for w in range(1, 4):
    e(f"s_waitcnt lgkmcnt({6-2*w})")
    for h in range(4): e(f"v_fmac_f32 v{48+h}, v{16+4*w+h}, v{32+4*w+h}")
e("v_cvt_pk_bf16_f32 v48, v48, v49")
e("v_cvt_pk_bf16_f32 v49, v50, v51")
e("v_min_u32 v48, -2, v48")
e("v_min_u32 v49, -2, v49")
e(f"buffer_store_dwordx2 v[48:49], v7, {SRD_WS}, s55 offen sc1")
stamp_if_role(0, 12)
if P["s2bulk"]:
    e("s_branch L_s2")
    lab("L_s2x")
    e("v_mov_b32 v14, 0")
    e(f"buffer_load_dword v14, v14, {SRD_WS}, 0 offen")
    lab("L_s2")
    rp_addr("v15")
    op_addr()
    stage2(WOB, FB, 128, "v15", 2)
    TMP.update(st=250, w=244, pp=248)
e("s_branch L_end")

lab("L_aux")
e("s_setprio 3")
if P["fastpro"]:
    e("s_load_dwordx2 s[44:45], s[6:7], 0")
    e("s_load_dwordx2 s[40:41], s[0:1], 96")
    e("s_load_dwordx4 s[20:23], s[0:1], 80")
else:
    stamp_if_role(0, 19)
if 0 < P["cwarm"] < 10:
    lcw = uid("Lcw")
    e(f"s_cmp_lg_u32 s31, {P['cwarm'] - 1}")
    e(f"s_cbranch_scc1 {lcw}")
    e("s_getpc_b64 s[56:57]")
    lab("L_pc")
    e(f"s_sub_u32 s56, s56, L_pc - {NAME}_kernel")
    e("s_subb_u32 s57, s57, 0")
    e("v_lshlrev_b32 v8, 7, v0")
    e(f"v_cmp_gt_u32 vcc, L_code_end - {NAME}_kernel, v8")
    e("s_and_saveexec_b64 s[58:59], vcc")
    e("global_load_dword v242, v8, s[56:57]")
    e("v_add_u32 v8, 8192, v8")
    e(f"v_cmp_gt_u32 vcc, L_code_end - {NAME}_kernel, v8")
    e("s_and_b64 exec, exec, vcc")
    lc2 = uid("Lcw")
    e(f"s_cbranch_execz {lc2}")
    e("global_load_dword v243, v8, s[56:57]")
    e("v_add_u32 v8, 8192, v8")
    e(f"v_cmp_gt_u32 vcc, L_code_end - {NAME}_kernel, v8")
    e("s_and_b64 exec, exec, vcc")
    e(f"s_cbranch_execz {lc2}")
    e("global_load_dword v239, v8, s[56:57]")
    lab(lc2)
    e("s_mov_b64 exec, -1")
    lab(lcw)
WQ = 64
FQ = 96
DQ = 128
XF = 16
if P["fastpro"]:
    e("s_mov_b32 s34, 0x400000"); e("s_mov_b32 s35, 0x20000")
else:
    e("s_mov_b32 s32, s14"); e("s_mov_b32 s33, s15"); e("s_mov_b32 s34, 0x400000"); e("s_mov_b32 s35, 0x20000")
    e("s_mov_b32 s36, s16"); e("s_mov_b32 s37, s17"); e("s_mov_b32 s38, 0x400000"); e("s_mov_b32 s39, 0x20000")
    e("s_mov_b32 s44, s8"); e("s_mov_b32 s45, s9"); e("s_mov_b32 s46, 8192"); e("s_mov_b32 s47, 0x20000")
e("s_lshl_b32 s56, s28, 8")
e("s_lshl_b32 s57, s31, 6")
e("s_add_u32 s56, s56, s57")
e("s_lshl_b32 s57, s56, 13")
e("s_lshl_b32 s58, s26, 10")
e("s_add_u32 s57, s57, s58")
e("s_lshl_b32 s58, s27, 7")
e("s_add_u32 s57, s57, s58")
e(f"v_lshrrev_b32 v10, 3, {V_C}")
e("v_and_b32 v11, 7, v0")
e(f"v_lshlrev_b32 v8, 16, {V_G}")
e("v_lshl_add_u32 v8, v10, 18, v8")
e("v_lshl_add_u32 v8, v11, 4, v8")
if P["fastpro"]:
    e("s_waitcnt lgkmcnt(0)")
    e("s_mov_b32 s32, s12"); e("s_mov_b32 s33, s13")
for i in range(8):
    e(f"s_add_u32 s58, s57, {i*8192}")
    e(f"buffer_load_dwordx4 v[{WQ+4*i}:{WQ+4*i+3}], v8, {SRD_A}, s58 offen{wpol}")
if P["fastpro"]:
    common_late()
    e("s_mov_b32 s36, s14"); e("s_mov_b32 s37, s15")
    e("s_mov_b32 s38, 0x400000"); e("s_mov_b32 s39, 0x20000")
    e("s_mov_b32 s46, 8192"); e("s_mov_b32 s47, 0x20000")
e("v_lshlrev_b32 v9, 10, v11")
e(f"v_lshl_add_u32 v9, {V_G}, 4, v9")
e("v_lshl_add_u32 v9, v10, 6, v9")
e("s_lshl_b32 s58, s56, 1")
e(f"buffer_load_dwordx4 v[{XF}:{XF+3}], v9, {SRD_X}, s58 offen")
e("s_lshl_b32 s58, s4, 7")
e("v_mov_b32 v10, 0")
e(f"buffer_load_dwordx2 v[20:21], v10, {SRD_WS}, s58 offen sc1")
e("v_mov_b32 v24, -1"); e("v_mov_b32 v25, -1"); e("v_mov_b32 v26, -1"); e("v_mov_b32 v27, -1")
lz = uid("Lz")
e("s_cmp_lg_u32 s31, 0")
e(f"s_cbranch_scc1 {lz}")
e(f"v_lshl_add_u32 v13, v0, 2, {V_CF}")
e("ds_write_b32 v13, v10")
e("s_waitcnt lgkmcnt(0)")
lab(lz)
e("s_and_b32 s58, s31, 1")
e("s_lshl_b32 s59, s4, 1")
e("s_add_u32 s59, s59, s58")
e("s_lshl_b32 s60, s59, 18")
e("s_lshl_b32 s59, s54, 16")
e("s_add_u32 s60, s60, s59")
e("s_lshl_b32 s59, s26, 2")
e("s_add_u32 s59, s59, s53")
e("s_lshl_b32 s59, s59, 7")
e("s_add_u32 s60, s60, s59")
e("s_lshr_b32 s59, s31, 1")
e("s_lshl_b32 s59, s59, 6")
e("s_add_u32 s60, s60, s59")
e(f"s_add_u32 s60, s60, {WS_RP}")
e(f"v_lshlrev_b32 v12, 12, {V_C}")
e(f"v_lshl_add_u32 v12, {V_G}, 4, v12")
if P["noclr"]: e("s_mov_b64 exec, 1")
e(f"buffer_store_dwordx4 v[24:27], v12, {SRD_WS}, s60 offen sc1")
e("s_lshl_b32 s58, s2, 10")
e("s_lshl_b32 s59, s31, 8")
e("s_add_u32 s58, s58, s59")
e(f"s_add_u32 s58, s58, {WS_OP}")
e("s_mov_b64 exec, 0xffff" if not P["noclr"] else "s_mov_b64 exec, 1")
e(f"buffer_store_dwordx4 v[24:27], {V_L16}, {SRD_WS}, s58 offen sc1")
e("s_mov_b64 exec, -1")
if P["warm"]:
    e("s_lshl_b32 s58, s26, 19")
    e("s_lshl_b32 s59, s31, 17")
    e("s_add_u32 s58, s58, s59")
    e(f"buffer_load_dword v240, v10, {SRD_B}, s58 offen")
    e("s_mov_b32 s80, s20"); e("s_mov_b32 s81, s21"); e("s_mov_b32 s82, 16384"); e("s_mov_b32 s83, 0x20000")
    e("buffer_load_dword v241, v10, s[80:83], 0 offen")
e("s_barrier")
if NST:
    l = uid("Lst")
    e("s_cmp_lg_u32 s31, 0")
    e(f"s_cbranch_scc1 {l}")
    e("v_mov_b32 v250, s70"); e("v_mov_b32 v251, s71"); e("v_mov_b32 v252, 0")
    e("s_mov_b64 exec, 1")
    e("buffer_store_dwordx2 v[250:251], v252, s[72:75], s68 offen")
    e("s_mov_b64 exec, -1")
    e(f"s_waitcnt vmcnt({3+NW_})")
    lab(l)
e(f"s_waitcnt vmcnt({2+NW_})" if not NST else f"s_waitcnt vmcnt({3+NW_})")
if NST:
    l = uid("Lst")
    e("s_cmp_eq_u32 s31, 0")
    e(f"s_cbranch_scc1 {l}")
    e(f"s_waitcnt vmcnt({2+NW_})")
    lab(l)
stamp_if_role(0, 1)
if P["dbg"] == 1: e("s_branch L_end")
perms_block(WQ, FQ)
e("v_readfirstlane_b32 s50, v20")
e("v_readfirstlane_b32 s51, v21")
for j in range(8):
    e(f"v_mfma_f32_16x16x32_bf16 v[{DQ+4*j}:{DQ+4*j+3}], v[{XF}:{XF+3}], v[{FQ+4*j}:{FQ+4*j+3}], 0")
e("s_add_u32 s50, s50, 1")
e("s_addc_u32 s51, s51, 0")
e("s_lshl_b32 s55, s31, 12")
e(f"s_add_u32 s55, s55, {L_QR}")
e(f"v_lshlrev_b32 v7, 7, {V_G}")
e("v_lshl_add_u32 v7, v11, 4, v7")
e("v_add_u32 v7, s55, v7")
e("s_mov_b32 exec_lo, 0x00ff00ff")
e("s_mov_b32 exec_hi, 0xff00ff00")
e("s_nop 1")
for j in range(8):
    e(f"ds_write_b128 v7, v[{DQ+4*j}:{DQ+4*j+3}] offset:{j*512}")
e("s_mov_b64 exec, -1")
e("s_waitcnt lgkmcnt(0)")
lds_set("v6", CF_QR)
e("s_lshl_b32 s55, s31, 10")
e(f"s_add_u32 s55, s55, {L_QR}")
e("v_lshlrev_b32 v7, 2, v0")
e("v_add_u32 v7, s55, v7")
e("v_and_b32 v8, 3, v0")
e("v_lshlrev_b32 v8, 13, v8")
e("v_lshrrev_b32 v9, 5, v0")
e("v_lshl_add_u32 v8, v9, 15, v8")
e("v_bfe_u32 v9, v0, 2, 3")
e("v_lshl_add_u32 v8, v9, 4, v8")
e("s_lshl_b32 s59, s30, 16")
e("s_lshl_b32 s61, s28, 12")
e("s_add_u32 s59, s59, s61")
e("s_lshl_b32 s61, s27, 9")
e("s_add_u32 s59, s59, s61")
e("s_lshl_b32 s61, s31, 7")
e("s_add_u32 s59, s59, s61")
e(f"s_add_u32 s59, s59, {WS_QP}")
e("v_mov_b32 v66, s50")
e("v_mov_b32 v67, s51")
lds_wait4(CF_QR)
for k in range(8):
    a_, s_ = k >> 1, k & 1
    e(f"ds_read2st64_b32 v[{68+2*k}:{69+2*k}], v7 offset0:{16*a_+s_} offset1:{16*a_+s_+2}")
e("s_waitcnt lgkmcnt(0)")
for k in range(4):
    e(f"v_add_f32 v{68+4*k}, v{68+4*k}, v{70+4*k}")
    e(f"v_add_f32 v{69+4*k}, v{69+4*k}, v{71+4*k}")
e("v_add_f32 v68, v68, v72"); e("v_add_f32 v69, v69, v73")
e("v_add_f32 v76, v76, v80"); e("v_add_f32 v77, v77, v81")
e("v_add_f32 v64, v68, v76"); e("v_add_f32 v65, v69, v77")
e(f"buffer_store_dwordx4 v[64:67], v8, {SRD_WS}, s59 offen sc1")
stamp_if_role(0, 2)
if P["dbg"] == 2: e("s_branch L_end")
e("s_lshl_b32 s58, s30, 16")
e("s_lshl_b32 s59, s27, 13")
e("s_add_u32 s58, s58, s59")
e("s_lshl_b32 s59, s31, 10")
e("s_add_u32 s58, s58, s59")
e(f"s_add_u32 s58, s58, {WS_QP}")
e("s_add_u32 s59, s58, 4096")
e("v_lshrrev_b32 v8, 5, v0")
e("v_lshlrev_b32 v8, 7, v8")
e("v_lshl_add_u32 v8, v11, 4, v8")
e("v_bfe_u32 v9, v0, 3, 2")
e("v_lshl_add_u32 v8, v9, 2, v8")
e("s_lshl_b32 s55, s31, 8")
e(f"s_add_u32 s55, s55, {L_QL}")
e("v_add_u32 v8, s55, v8")
if P["qdelay"]: e(f"s_sleep {P['qdelay']}")
if P["qprobe"]:
    e("v_and_b32 v9, 1, v0")
    e("v_lshlrev_b32 v9, 9, v9")
    e("v_lshrrev_b32 v10, 1, v0")
    e("v_lshl_add_u32 v9, v10, 12, v9")
    e("s_mov_b64 exec, 0xf")
    lp, ld = uid("Lp"), uid("Ld")
    lab(lp)
    e(f"buffer_load_dwordx4 v[68:71], v9, {SRD_WS}, s58 offen offset:496 sc1")
    e("s_waitcnt vmcnt(0)")
    e("v_cmp_ne_u64 vcc, v[70:71], v[66:67]")
    e("s_mov_b64 exec, vcc")
    e(f"s_cbranch_execz {ld}")
    budget_check()
    e(f"s_sleep {P['qsleep']}")
    e(f"s_branch {lp}")
    lab(ld)
    e("s_mov_b64 exec, -1")
lp, ld = uid("Lp"), uid("Ld")
lab(lp)
e(f"buffer_load_dwordx4 v[68:71], {V_L16}, {SRD_WS}, s58 offen sc1")
e(f"buffer_load_dwordx4 v[72:75], {V_L16}, {SRD_WS}, s59 offen sc1")
e("s_waitcnt vmcnt(0)")
e("v_cmp_ne_u64 vcc, v[70:71], v[66:67]")
e("v_cmp_ne_u64 s[56:57], v[74:75], v[66:67]")
e("s_or_b64 exec, vcc, s[56:57]")
e(f"s_cbranch_execz {ld}")
budget_check()
e(f"s_sleep {P['qsleep']}")
e(f"s_branch {lp}")
lab(ld)
e("s_mov_b64 exec, -1")
e("v_add_f32 v68, v68, v72"); e("v_add_f32 v69, v69, v73")
e("v_cvt_pk_bf16_f32 v68, v68, v69")
e("ds_write_b32 v8, v68")
lds_set("v6", CF_QST)
e("s_waitcnt lgkmcnt(0)")
lds_set("v6", CF_QL)
stamp_if_role(0, 3)
if P["dbg"] == 3: e("s_branch L_end")
lgo = uid("Lgo")
e("s_cmp_lg_u32 s31, 0")
e(f"s_cbranch_scc1 {lgo}")
lds_wait4(CF_QST)
e("s_lshl_b32 s58, s30, 7")
e(f"s_add_u32 s58, s58, {WS_FL}")
e("s_lshl_b32 s59, s29, 3")
e("v_mov_b32 v22, s59")
e("s_mov_b64 exec, 1")
e(f"buffer_store_dwordx2 v[66:67], v22, {SRD_WS}, s58 offen sc1")
e("s_mov_b64 exec, -1")
lab(lgo)
e(f"v_and_b32 v8, 3, {V_C}")
e("v_lshlrev_b32 v8, 2, v8")
e(f"v_lshrrev_b32 v9, 2, {V_C}")
e("v_add_u32 v8, v8, v9")
e("v_lshlrev_b32 v8, 8, v8")
e("s_lshl_b32 s55, s31, 15")
e("v_add_u32 v8, s55, v8")
for s in range(4):
    e(f"v_add_u32 v9, {4*s}, {V_G}")
    e(f"v_xor_b32 v9, v9, {V_C}")
    e(f"v_lshl_add_u32 v{28+s}, v9, 4, v8")
e(f"v_and_b32 v9, 3, {V_C}")
e("v_lshlrev_b32 v9, 8, v9")
e(f"v_lshl_add_u32 v9, {V_G}, 4, v9")
e(f"v_add_u32 v9, {L_QL}, v9")
lds_wait4(CF_QL)
stamp_if_role(0, 4)
QF = 32
for s in range(4):
    e(f"ds_read_b128 v[{QF+4*s}:{QF+4*s+3}], v9 offset:{s*64}")
lds_wait1("v6", CF_KL)
stamp_if_role(0, 5)
KF = 64
SC = 128
def kread(t):
    b = KF + 16 * (t & 3)
    for s in range(4):
        e(f"ds_read_b128 v[{b+4*s}:{b+4*s+3}], v{28+s} offset:{t*4096}")
kread(0); kread(1)
for t in range(8):
    if t + 2 < 8:
        kread(t + 2)
        e("s_waitcnt lgkmcnt(8)")
    else:
        e(f"s_waitcnt lgkmcnt({4*(7-t)})")
    b = KF + 16 * (t & 3)
    for s in range(4):
        c = "0" if s == 0 else f"v[{SC+4*t}:{SC+4*t+3}]"
        e(f"v_mfma_f32_16x16x32_bf16 v[{SC+4*t}:{SC+4*t+3}], v[{b+4*s}:{b+4*s+3}], v[{QF+4*s}:{QF+4*s+3}], {c}")
import math
CSC = (128 ** -0.5) * math.log2(math.e)
import struct
f2u = lambda x: struct.unpack('<I', struct.pack('<f', x))[0]
if P["mimic"]:
    e(f"s_mov_b32 s58, 0x{f2u(math.log2(math.e)):08x}")
    e(f"s_mov_b32 s59, 0x{f2u(128 ** -0.5):08x}")
    e("s_mov_b32 s57, 0xffff0000")
    e("s_nop 6")
    for k in range(16):
        e(f"v_cvt_pk_bf16_f32 v{64+k}, v{SC+2*k}, v{SC+2*k+1}")
    for k in range(16):
        e(f"v_lshlrev_b32 v{SC+2*k}, 16, v{64+k}")
        e(f"v_and_b32 v{SC+2*k+1}, s57, v{64+k}")
    for k in range(32):
        e(f"v_mul_f32 v{SC+k}, s59, v{SC+k}")
    for k in range(16):
        e(f"v_cvt_pk_bf16_f32 v{64+k}, v{SC+2*k}, v{SC+2*k+1}")
    for k in range(16):
        e(f"v_lshlrev_b32 v{SC+2*k}, 16, v{64+k}")
        e(f"v_and_b32 v{SC+2*k+1}, s57, v{64+k}")
else:
    e(f"s_mov_b32 s58, 0x{f2u(CSC):08x}")
    e("s_nop 7")
e(f"v_max3_f32 v10, v{SC}, v{SC+1}, v{SC+2}")
e(f"v_max3_f32 v11, v{SC+3}, v{SC+4}, v{SC+5}")
for k in range(6, 30, 4):
    e(f"v_max3_f32 v10, v10, v{SC+k}, v{SC+k+1}")
    e(f"v_max3_f32 v11, v11, v{SC+k+2}, v{SC+k+3}")
e(f"v_max3_f32 v10, v10, v{SC+30}, v{SC+31}")
e("v_max_f32 v10, v10, v11")
def xlane(op, v, t):
    e(f"v_mov_b32 {t}, {v}")
    e("s_nop 1")
    e(f"v_permlane32_swap_b32 {v}, {t}")
    e("s_nop 1")
    e(f"{op} {v}, {v}, {t}")
    e(f"v_mov_b32 {t}, {v}")
    e("s_nop 1")
    e(f"v_permlane16_swap_b32 {v}, {t}")
    e("s_nop 1")
    e(f"{op} {v}, {v}, {t}")
xlane("v_max_f32", "v10", "v11")
e("v_mul_f32 v10, s58, v10")
e("v_sub_f32 v13, 0, v10")
for k in range(32):
    e(f"v_fma_f32 v{SC+k}, v{SC+k}, s58, v13")
for k in range(32):
    e(f"v_exp_f32 v{SC+k}, v{SC+k}")
e("s_nop 0")
e(f"v_add_f32 v11, v{SC}, v{SC+1}")
e(f"v_add_f32 v14, v{SC+2}, v{SC+3}")
for k in range(4, 32, 2):
    e(f"v_add_f32 v11, v11, v{SC+k}")
    e(f"v_add_f32 v14, v14, v{SC+k+1}")
e("v_add_f32 v11, v11, v14")
for k in range(16):
    e(f"v_cvt_pk_bf16_f32 v{64+k}, v{SC+2*k}, v{SC+2*k+1}")
e("s_lshl_b32 s55, s31, 12")
e(f"v_add_u32 v7, s55, {V_L16}")
e(f"v_add_u32 v7, {L_PL}, v7")
for T in range(4):
    e(f"ds_write_b128 v7, v[{64+4*T}:{67+4*T}] offset:{T*1024}")
xlane("v_add_f32", "v11", "v14")
e("s_lshl_b32 s55, s31, 5")
e(f"s_add_u32 s55, s55, {L_SL}")
e("v_lshlrev_b32 v8, 3, v0")
e("v_add_u32 v8, s55, v8")
e("s_mov_b64 exec, 0xf")
e("ds_write_b64 v8, v[10:11]")
e("s_mov_b64 exec, -1")
e("s_waitcnt lgkmcnt(0)")
lds_set("v6", CF_P)
lds_set("v6", CF_SL)
stamp_if_role(0, 6)
if P["dbg"] == 4: e("s_branch L_end")
ls3, ls0, lsd = uid("Ls"), uid("Ls"), uid("Ls")
e("s_cmp_eq_u32 s31, 0")
e(f"s_cbranch_scc1 {ls0}")
e("s_cmp_lg_u32 s31, 3")
e(f"s_cbranch_scc1 {lsd}")
lds_wait4(CF_SL)
e("s_mov_b64 exec, 0xffff")
e("v_lshlrev_b32 v8, 3, v0")
e(f"v_add_u32 v8, {L_SL}, v8")
e("ds_read_b64 v[10:11], v8")
e("s_waitcnt lgkmcnt(0)")
e("v_max_f32_dpp v13, v10, v10 row_ror:4 row_mask:0xf bank_mask:0xf")
e("s_nop 1")
e("v_max_f32_dpp v13, v13, v13 row_ror:8 row_mask:0xf bank_mask:0xf")
e("v_sub_f32 v14, v10, v13")
e("v_exp_f32 v14, v14")
e("s_nop 0")
e("v_mul_f32 v14, v14, v11")
e("s_nop 1")
e("v_add_f32_dpp v15, v14, v14 row_ror:4 row_mask:0xf bank_mask:0xf")
e("s_nop 1")
e("v_add_f32_dpp v15, v15, v15 row_ror:8 row_mask:0xf bank_mask:0xf")
e("v_mov_b32 v20, v13")
e("v_mov_b32 v21, v15")
e("v_mov_b32 v22, s50")
e("v_mov_b32 v23, s51")
e("v_and_b32 v9, 3, v0")
e("v_lshlrev_b32 v9, 4, v9")
e("s_lshl_b32 s58, s2, 7")
e(f"s_add_u32 s58, s58, {WS_ST}")
e("s_xor_b32 s59, s58, 128")
e("s_mov_b64 exec, 0xf")
e(f"buffer_store_dwordx4 v[20:23], v9, {SRD_WS}, s58 offen sc1")
e("s_mov_b64 exec, 0xffff")
lp, ld = uid("Lp"), uid("Ld")
lab(lp)
e(f"buffer_load_dwordx4 v[24:27], v9, {SRD_WS}, s59 offen sc1")
e("s_waitcnt vmcnt(0)")
e("v_cmp_ne_u64 vcc, v[26:27], v[22:23]")
e(f"s_cbranch_vccz {ld}")
budget_check()
e("s_sleep 2")
e(f"s_branch {lp}")
lab(ld)
e("v_max_f32 v26, v13, v24")
e("v_sub_f32 v27, v13, v26")
e("v_sub_f32 v20, v24, v26")
e("v_sub_f32 v21, v10, v26")
e("v_exp_f32 v27, v27")
e("v_exp_f32 v20, v20")
e("v_exp_f32 v21, v21")
e("s_nop 0")
e("v_mul_f32 v27, v27, v15")
e("v_fmac_f32 v27, v20, v25")
e("v_rcp_f32 v27, v27")
e("s_nop 0")
e("v_mul_f32 v21, v21, v27")
e("v_lshlrev_b32 v8, 2, v0")
e(f"v_add_u32 v8, {L_FW}, v8")
e("ds_write_b32 v8, v21")
e("s_mov_b64 exec, -1")
e("s_waitcnt lgkmcnt(0)")
stamp(7)
e(f"s_branch {lsd}")
lab(ls0)
e("s_lshl_b32 s58, s4, 10")
e(f"s_add_u32 s58, s58, {WS_FL}")
e("v_mov_b32 v20, s50")
e("v_mov_b32 v21, s51")
lp, ld = uid("Lp"), uid("Ld")
lab(lp)
e(f"buffer_load_dwordx4 v[24:27], {V_L16}, {SRD_WS}, s58 offen sc1")
e("s_waitcnt vmcnt(0)")
e("v_cmp_ne_u64 vcc, v[24:25], v[20:21]")
e("v_cmp_ne_u64 s[56:57], v[26:27], v[20:21]")
e("s_or_b64 vcc, vcc, s[56:57]")
e(f"s_cbranch_vccz {ld}")
budget_check()
e("s_sleep 2")
e(f"s_branch {lp}")
lab(ld)
lab(lsd)
if P["s2bulk"]:
    e("s_barrier")
    e("s_cmp_lg_u32 s31, 0")
    e("s_cbranch_scc1 L_end")
    e("s_barrier")
else:
    if P["wolate"] in (1, 3):
        lds_wait1("v6", CF_VI)
    WO = 64; FO = 96; DO = 128
    e("s_lshl_b32 s56, s26, 9")
    e("s_and_b32 s57, s31, 1")
    e("s_lshl_b32 s57, s57, 6")
    e("s_add_u32 s56, s56, s57")
    e("s_lshl_b32 s57, s53, 1")
    e("s_add_u32 s56, s56, s57")
    e("s_lshr_b32 s57, s31, 1")
    e("s_add_u32 s56, s56, s57")
    e("s_lshl_b32 s56, s56, 10")
    e("s_lshl_b32 s57, s54, 8")
    e("s_add_u32 s56, s56, s57")
    e(f"v_lshlrev_b32 v8, 14, {V_G}")
    e(f"v_lshl_add_u32 v8, {V_C}, 4, v8")
    def wo_loads():
        if P["woprio"] != 3: e(f"s_setprio {P['woprio']}")
        for i in range(8):
            dd, h = i >> 2, i & 3
            e(f"s_add_u32 s57, s56, {(h*128 + 8*dd)*1024}")
            if P["wopace"] and i >= P["wopace"]: e(f"s_waitcnt vmcnt({P['wopace']-1})")
            e(f"buffer_load_dwordx4 v[{WO+4*i}:{WO+4*i+3}], v8, {SRD_B}, s57 offen{wpol}")
        if P["woprio"] != 3: e("s_setprio 3")
    if P["wolate"] != 2: wo_loads()
    e("v_and_b32 v9, 7, v0")
    e("v_lshlrev_b32 v9, 11, v9")
    e(f"v_lshrrev_b32 v10, 3, {V_C}")
    e("v_lshl_add_u32 v9, v10, 10, v9")
    e(f"v_lshl_add_u32 v9, {V_G}, 4, v9")
    e("s_lshl_b32 s58, s30, 14")
    e("s_lshl_b32 s59, s53, 8")
    e("s_add_u32 s58, s58, s59")
    e("s_lshl_b32 s59, s31, 6")
    e("s_add_u32 s58, s58, s59")
    e(f"s_add_u32 s58, s58, {WS_OP}")
    if P["dbg"] == 5:
        e("s_waitcnt vmcnt(0)")
        stamp_if_role(0, 13)
        e("s_branch L_end")
    e("s_barrier")
    if P["wolate"] == 2: wo_loads()
    stamp_if_role(0, 13)
    def wo_perms():
        e("s_waitcnt vmcnt(1)")
        perms_block(WO, FO)
        stamp_if_role(0, 14)
    if P["pipe"]:
        pipe_poll(1, lambda b: e(f"buffer_load_dwordx4 v[{b}:{b+3}], v9, {SRD_WS}, s58 offen sc1"),
                  16, [32 + 4*k for k in range(P["pipe"])], P["othr"], P["osleep"], pre=wo_perms)
    else:
        e("s_waitcnt vmcnt(0)")
        perms_block(WO, FO)
        lp, ld = uid("Lp"), uid("Ld")
        lab(lp)
        e(f"buffer_load_dwordx4 v[16:19], v9, {SRD_WS}, s58 offen sc1")
        e("s_waitcnt vmcnt(0)")
        e("v_max3_u32 v24, v16, v17, v18")
        e("v_max_u32 v24, v24, v19")
        e("v_cmp_eq_u32 vcc, -1, v24")
        e("s_mov_b64 exec, vcc")
        e(f"s_cbranch_execz {ld}")
        budget_check()
        if P["osleep"]: e(f"s_sleep {P['osleep']}")
        e(f"s_branch {lp}")
        lab(ld)
        e("s_mov_b64 exec, -1")
    stamp_if_role(0, 15)
    e("s_nop 3")
    for j in range(8):
        e(f"v_mfma_f32_16x16x32_bf16 v[{DO+4*j}:{DO+4*j+3}], v[16:19], v[{FO+4*j}:{FO+4*j+3}], 0")
    e("s_lshl_b32 s55, s31, 13")
    e(f"v_add_u32 v7, s55, {V_L16}")
    e("s_lshr_b32 s55, s31, 1")
    e("s_lshl_b32 s55, s55, 12")
    e("s_and_b32 s56, s31, 1")
    e("s_lshl_b32 s56, s56, 8")
    e("s_add_u32 s55, s55, s56")
    e(f"v_lshlrev_b32 v8, 10, {V_G}")
    e(f"v_lshl_add_u32 v8, {V_C}, 4, v8")
    e("v_add_u32 v8, s55, v8")
    for j in range(8):
        e(f"ds_write_b128 v7, v[{DO+4*j}:{DO+4*j+3}] offset:{j*1024}")
    e("s_waitcnt lgkmcnt(0)")
    e("s_barrier")
    for k in range(8):
        a, sp = k >> 1, k & 1
        e(f"ds_read_b128 v[{64+4*k}:{67+4*k}], v8 offset:{a*8192 + sp*512}")
    e("s_waitcnt lgkmcnt(6)")
    for r in range(4): e(f"v_add_f32 v{64+r}, v{64+r}, v{68+r}")
    e("s_waitcnt lgkmcnt(4)")
    for r in range(4): e(f"v_add_f32 v{72+r}, v{72+r}, v{76+r}")
    e("s_waitcnt lgkmcnt(2)")
    for r in range(4): e(f"v_add_f32 v{80+r}, v{80+r}, v{84+r}")
    for r in range(4): e(f"v_add_f32 v{64+r}, v{64+r}, v{72+r}")
    e("s_waitcnt lgkmcnt(0)")
    for r in range(4): e(f"v_add_f32 v{88+r}, v{88+r}, v{92+r}")
    for r in range(4): e(f"v_add_f32 v{80+r}, v{80+r}, v{88+r}")
    for r in range(4): e(f"v_add_f32 v{64+r}, v{64+r}, v{80+r}")
    for r in range(4): e(f"v_min_u32 v{64+r}, -2, v{64+r}")
    e(f"buffer_store_dwordx4 v[64:67], v12, {SRD_WS}, s60 offen sc1")
e("s_cmp_lg_u32 s31, 0")
e("s_cbranch_scc1 L_end")
if not P["s2bulk"]: stamp(16)
for _ in range(P["padtail"]): e("s_nop 0")
e("s_and_b32 s55, s2, 1")
e("s_lshl_b32 s56, s4, 1")
e("s_add_u32 s56, s56, s55")
e("s_lshl_b32 s56, s56, 18")
e("s_bfe_u32 s57, s2, 0x60001")
e("s_lshl_b32 s58, s57, 12")
e("s_add_u32 s56, s56, s58")
e(f"s_add_u32 s56, s56, {WS_RP}")
e("s_mov_b32 s44, s20"); e("s_mov_b32 s45, s21"); e("s_mov_b32 s46, 16384"); e("s_mov_b32 s47, 0x20000")
e("s_lshl_b32 s58, s55, 13")
e("s_lshl_b32 s59, s4, 10")
e("s_add_u32 s58, s58, s59")
e("s_lshl_b32 s59, s57, 4")
e("s_add_u32 s58, s58, s59")
e("v_lshlrev_b32 v8, 1, v0")
if P["pipe"]:
    def iss(b):
        for t in range(4):
            e(f"buffer_load_dwordx4 v[{b+4*t}:{b+4*t+3}], {V_L16}, {SRD_WS}, s56 offen offset:{t*1024} sc1")
    pipe_poll(4, iss, 16, [160 + 16*k for k in range(P["pipe"])], P["rthr"], P["osleep"])
else:
    lp, ld = uid("Lp"), uid("Ld")
    lab(lp)
    for t in range(4):
        e(f"buffer_load_dwordx4 v[{16+4*t}:{19+4*t}], {V_L16}, {SRD_WS}, s56 offen offset:{t*1024} sc1")
    e("s_waitcnt vmcnt(0)")
    e("v_max3_u32 v32, v16, v17, v18")
    e("v_max3_u32 v33, v19, v20, v21")
    e("v_max3_u32 v32, v32, v22, v23")
    e("v_max3_u32 v33, v33, v24, v25")
    e("v_max3_u32 v32, v32, v26, v27")
    e("v_max3_u32 v33, v33, v28, v29")
    e("v_max3_u32 v32, v32, v30, v31")
    e("v_max_u32 v32, v32, v33")
    e("v_cmp_eq_u32 vcc, -1, v32")
    e("s_mov_b64 exec, vcc")
    e(f"s_cbranch_execz {ld}")
    budget_check()
    if P["osleep"]: e(f"s_sleep {P['osleep']}")
    e(f"s_branch {lp}")
    lab(ld)
    e("s_mov_b64 exec, -1")
stamp(17)
for r in range(4): e(f"v_add_f32 v{16+r}, v{16+r}, v{20+r}")
for r in range(4): e(f"v_add_f32 v{24+r}, v{24+r}, v{28+r}")
for r in range(4): e(f"v_add_f32 v{16+r}, v{16+r}, v{24+r}")
e("s_nop 1")
for r in range(4): e(f"v_add_f32_dpp v{20+r}, v{16+r}, v{16+r} row_ror:8 row_mask:0xf bank_mask:0xf")
for r in range(4): e(f"v_mov_b32 v{24+r}, v{20+r}")
e("s_nop 1")
for r in range(4): e(f"v_permlane32_swap_b32 v{20+r}, v{24+r}")
e("s_nop 1")
for r in range(4): e(f"v_add_f32 v{20+r}, v{20+r}, v{24+r}")
for r in range(4): e(f"v_mov_b32 v{24+r}, v{20+r}")
e("s_nop 1")
for r in range(4): e(f"v_permlane16_swap_b32 v{20+r}, v{24+r}")
e("s_nop 1")
for r in range(4): e(f"v_add_f32 v{20+r}, v{20+r}, v{24+r}")
for r in range(4): e(f"v_cvt_pk_bf16_f32 v{20+r}, v{20+r}, v{20+r}")
e("s_mov_b64 exec, 0xff")
e("s_add_u32 s59, s58, 4096")
for r in range(4):
    e(f"buffer_store_short v{20+r}, v8, {SRD_X}, {'s58' if r < 2 else 's59'} offen offset:{(r&1)*2048}")
e("s_and_b32 s55, s2, 127")
e("s_cmp_lg_u32 s55, 0")
lfin = uid("Lf")
e(f"s_cbranch_scc1 {lfin}")
e("s_mov_b64 exec, 1")
e("v_mov_b32 v24, s50")
e("v_mov_b32 v25, s51")
e("v_mov_b32 v26, 0")
e("s_lshl_b32 s58, s4, 7")
e(f"buffer_store_dwordx2 v[24:25], v26, {SRD_WS}, s58 offen sc1")
lab(lfin)
if P["dclk"]:
    ldc = uid("Ldc")
    e("s_cmp_lg_u32 s2, 5")
    e(f"s_cbranch_scc1 {ldc}")
    e("s_memrealtime s[64:65]")
    e("s_memtime s[88:89]")
    e("s_mov_b32 s44, s22"); e("s_mov_b32 s45, s23"); e("s_mov_b32 s46, 256"); e("s_mov_b32 s47, 0x20000")
    e("s_waitcnt lgkmcnt(0)")
    e("s_sub_u32 s64, s64, s70")
    e("s_sub_u32 s88, s88, s86")
    e("s_mov_b64 exec, 1")
    e("v_mov_b32 v24, s64")
    e("v_mov_b32 v25, s88")
    e("v_mov_b32 v26, 0")
    e("buffer_store_dwordx2 v[24:25], v26, s[44:47], 0 offen")
    lab(ldc)
if P["dspan"]:
    e("s_waitcnt vmcnt(0)")
    e("s_memrealtime s[64:65]")
    e("s_mov_b32 s44, s22"); e("s_mov_b32 s45, s23"); e("s_mov_b32 s46, 256"); e("s_mov_b32 s47, 0x20000")
    e("s_waitcnt lgkmcnt(0)")
    e("s_mov_b64 exec, 1")
    e("s_not_b32 s66, s70")
    e("v_mov_b32 v24, s64")
    e("v_mov_b32 v25, s66")
    e("v_mov_b32 v26, 0")
    e("buffer_atomic_umax v24, v26, s[44:47], 0 offen")
    e("buffer_atomic_umax v25, v26, s[44:47], 0 offen offset:4")
    e("v_mov_b32 v24, s70")
    e("buffer_atomic_umax v24, v26, s[44:47], 0 offen offset:8")
    e("s_not_b32 s66, s64")
    e("v_mov_b32 v25, s66")
    e("buffer_atomic_umax v25, v26, s[44:47], 0 offen offset:12")
if NST:
    e("s_mov_b64 exec, -1")
    e("s_waitcnt vmcnt(0)")
    stamp(18)
lab("L_end")
e("s_endpgm")
lab("L_code_end")

ftr = f""".section .rodata,"a"
.p2align 6
.amdhsa_kernel {NAME}_kernel
  .amdhsa_next_free_vgpr 256
  .amdhsa_next_free_sgpr 102
  .amdhsa_accum_offset 256
  .amdhsa_group_segment_fixed_size 0
  .amdhsa_kernarg_size 104
  .amdhsa_user_sgpr_count 2
  .amdhsa_user_sgpr_kernarg_segment_ptr 1
  .amdhsa_system_sgpr_workgroup_id_x 1
.end_amdhsa_kernel
"""
open(out, "w").write(hdr + "\n" + "\n".join(L) + "\n" + ftr)
```

```python
import sys

out = sys.argv[1]
P = dict(padq=0, padp=0, b0early=0, b0at=0, fastpro=1, padtop=0, padtail=0, dclk=0, cwarm=0, s2bulk=1, woprio=3, wopace=0, noclr=0, ilv=0, mimic=1, remap=0, rmul=5, warm=1, dspan=0, wothr=4, pipe=4, othr=24, rthr=32, pgap=2, psw=64, pace2=0, dbg=0, noswz=0, qprobe=0, smask=0, qdelay=32, osleep=2, qsleep=12, pace=8, stamps=0, pol="nt", wpol="nt", budget=1 << 22, wolate=2)
for a in sys.argv[2:]:
    k, v = a.split("=")
    P[k] = v if k in ("pol", "wpol") else int(v, 0)
NAME = "concat_heads__sliding_block_cached__sliding_block_cached__decode"
pol = "".join(" " + x for x in P["pol"].split("+") if x != "none")
wpol = "".join(" " + x for x in P["wpol"].split("+") if x != "none")
NST = P["stamps"]
NW_ = 2 if P["warm"] else 0
STAMPOFF = 200 << 20

WS_E = 0x0
WS_FL = 0x1000
WS_ST = 0x2000
WS_OP = 0x10000
WS_QP = 0x100000
WS_RP = 0x200000
WS_SIZE = 0x300000

L_K = 0
L_RR = 0
L_QR = 131072
L_PL = 131072
L_OR = 147456
L_QL = 155648
L_SL = 156672
L_FW = 156800
L_CF = 156928
CF_QR, CF_QST, CF_QL, CF_KL, CF_VI, CF_P, CF_SL, CF_GO = [16 * i for i in range(8)]
LDS_BYTES = 157184 + 128

L = []
def e(s): L.append("    " + s)
def lab(s): L.append(s + ":")
def cmt(s): L.append("    ; " + s)
_uid = [0]
def uid(p="L"):
    _uid[0] += 1
    return f"{p}_{_uid[0]}"

S_WG, S_WAVE, S_BR = "s2", "s3", "s4"
S_HKV, S_B, S_SPLIT, S_C, S_GRP, S_ROLE = "s26", "s27", "s28", "s29", "s30", "s31"
SRD_A, SRD_B, SRD_WS, SRD_X = "s[32:35]", "s[36:39]", "s[40:43]", "s[44:47]"
S_SELLO, S_SELHI = "s48", "s49"
S_TAG0, S_TAG1 = "s50", "s51"
S_BUD = "s52"
S_HI, S_LO = "s53", "s54"

V_LANE = "v0"
V_CF = "v1"
V_G = "v2"
V_C = "v3"
V_ONE = "v4"
V_L16 = "v5"

TMP = dict(st=250, w=244, pp=248)
def stamp(idx):
    if not NST: return
    if P["smask"] and not (P["smask"] >> idx) & 1: return
    t = TMP["st"]
    e("s_memrealtime s[64:65]")
    e("s_waitcnt lgkmcnt(0)")
    e("s_mov_b64 s[66:67], exec")
    e("s_mov_b64 exec, 1")
    e(f"v_mov_b32 v{t}, s64")
    e(f"v_mov_b32 v{t+1}, s65")
    e(f"v_mov_b32 v{t+2}, {idx*8}")
    e(f"buffer_store_dwordx2 v[{t}:{t+1}], v{t+2}, s[72:75], s68 offen")
    e("s_mov_b64 exec, s[66:67]")

def stamp_if_role(role, idx):
    if not NST: return
    if P["smask"] and not (P["smask"] >> idx) & 1: return
    l = uid("Lst")
    e(f"s_cmp_lg_u32 {S_ROLE}, {role}")
    e(f"s_cbranch_scc1 {l}")
    stamp(idx)
    lab(l)

def budget_check():
    e(f"s_sub_u32 {S_BUD}, {S_BUD}, 1")
    e("s_cbranch_scc1 L_end")

def lds_wait4(off, t="v[244:247]"):
    l, d = uid("Lw"), uid("Ld")
    lab(l)
    e(f"ds_read_b128 v[244:247], {V_CF} offset:{off}")
    e("s_waitcnt lgkmcnt(0)")
    e("v_and_b32 v244, v244, v245")
    e("v_and_b32 v246, v246, v247")
    e("v_and_b32 v244, v244, v246")
    e("s_nop 0")
    e("v_readfirstlane_b32 s55, v244")
    e("s_cmp_eq_u32 s55, 1")
    e(f"s_cbranch_scc1 {d}")
    budget_check()
    e("s_sleep 1")
    e(f"s_branch {l}")
    lab(d)

def lds_wait1(vaddr, off):
    l, d = uid("Lw"), uid("Ld")
    lab(l)
    e(f"ds_read_b32 v{TMP['w']}, {vaddr} offset:{off}")
    e("s_waitcnt lgkmcnt(0)")
    e(f"v_readfirstlane_b32 s55, v{TMP['w']}")
    e("s_cmp_eq_u32 s55, 1")
    e(f"s_cbranch_scc1 {d}")
    budget_check()
    e("s_sleep 1")
    e(f"s_branch {l}")
    lab(d)

def lds_set(vaddr, off):
    e(f"ds_write_b32 {vaddr}, {V_ONE} offset:{off}")


def pipe_poll(nload, issue, final, sets, slow_thresh, slow_sleep, pre=None):
    N = len(sets)
    nreg = 4 * nload
    ld = uid("Ld")
    def check(base, mask):
        e(f"s_mov_b64 exec, {mask}")
        regs = [f"v{base+i}" for i in range(nreg)]
        e(f"v_max3_u32 v{TMP['pp']}, {regs[0]}, {regs[1]}, {regs[2]}")
        rest = regs[3:]
        while len(rest) >= 2:
            e(f"v_max3_u32 v{TMP['pp']}, v{TMP['pp']}, {rest[0]}, {rest[1]}"); rest = rest[2:]
        if rest: e(f"v_max_u32 v{TMP['pp']}, v{TMP['pp']}, {rest[0]}")
        e(f"v_cmp_ne_u32 vcc, -1, v{TMP['pp']}")
        e("s_and_b64 exec, vcc, s[76:77]")
        for i in range(nreg): e(f"v_mov_b32 v{final+i}, v{base+i}")
        e("s_andn2_b64 s[76:77], s[76:77], exec")
        e(f"s_cbranch_scc0 {ld}")
    e("s_mov_b64 s[76:77], -1")
    ls, lf, l1 = uid("Lsl"), uid("Lfa"), uid("L1")
    if pre is not None:
        e("s_mov_b64 s[78:79], -1")
        issue(sets[0])
        pre()
        e(f"s_branch {l1}")
    lab(ls)
    e("s_mov_b64 exec, s[76:77]")
    e("s_mov_b64 s[78:79], s[76:77]")
    issue(sets[0])
    lab(l1)
    e("s_waitcnt vmcnt(0)")
    check(sets[0], "s[78:79]")
    e("s_bcnt1_i32_b64 s55, s[76:77]")
    e(f"s_cmp_le_u32 s55, {slow_thresh}")
    e(f"s_cbranch_scc1 {lf}")
    budget_check()
    if slow_sleep: e(f"s_sleep {slow_sleep}")
    e(f"s_branch {ls}")
    lab(lf)
    for k in range(N - 1):
        e("s_mov_b64 exec, s[76:77]")
        e(f"s_mov_b64 s[{78+2*k}:{79+2*k}], s[76:77]")
        issue(sets[k])
        if P["pgap"]: e(f"s_sleep {P['pgap']}")
    lp = uid("Lp")
    lab(lp)
    for k in range(N):
        kk = (k + N - 1) % N
        e("s_mov_b64 exec, s[76:77]")
        e(f"s_mov_b64 s[{78+2*kk}:{79+2*kk}], s[76:77]")
        issue(sets[kk])
        e(f"s_waitcnt vmcnt({(N-1)*nload})")
        check(sets[k], f"s[{78+2*k}:{79+2*k}]")
    budget_check()
    e(f"s_branch {lp}")
    lab(ld)
    e("s_mov_b64 exec, -1")

def perms_block(src, dst, plist=range(4)):
    for p in plist:
        for jj in range(4):
            a = src + 4 * (2 * p) + jj
            b = src + 4 * (2 * p + 1) + jj
            e(f"v_perm_b32 v{dst + 4*(2*jj) + p}, v{b}, v{a}, {S_SELLO}")
            e(f"v_perm_b32 v{dst + 4*(2*jj+1) + p}, v{b}, v{a}, {S_SELHI}")


def wo_addr(vreg):
    e("s_lshl_b32 s62, s26, 9")
    e("s_and_b32 s63, s31, 1")
    e("s_lshl_b32 s63, s63, 6")
    e("s_add_u32 s62, s62, s63")
    e("s_lshl_b32 s63, s53, 1")
    e("s_add_u32 s62, s62, s63")
    e("s_lshr_b32 s63, s31, 1")
    e("s_add_u32 s62, s62, s63")
    e("s_lshl_b32 s62, s62, 10")
    e("s_lshl_b32 s63, s54, 8")
    e("s_add_u32 s62, s62, s63")
    e(f"v_lshlrev_b32 {vreg}, 14, {V_G}")
    e(f"v_lshl_add_u32 {vreg}, {V_C}, 4, {vreg}")
def rp_addr(vreg):
    e("s_and_b32 s58, s31, 1")
    e("s_lshl_b32 s59, s4, 1")
    e("s_add_u32 s59, s59, s58")
    e("s_lshl_b32 s60, s59, 18")
    e("s_lshl_b32 s59, s54, 16")
    e("s_add_u32 s60, s60, s59")
    e("s_lshl_b32 s59, s26, 2")
    e("s_add_u32 s59, s59, s53")
    e("s_lshl_b32 s59, s59, 7")
    e("s_add_u32 s60, s60, s59")
    e("s_lshr_b32 s59, s31, 1")
    e("s_lshl_b32 s59, s59, 6")
    e("s_add_u32 s60, s60, s59")
    e(f"s_add_u32 s60, s60, {WS_RP}")
    e(f"v_lshlrev_b32 {vreg}, 12, {V_C}")
    e(f"v_lshl_add_u32 {vreg}, {V_G}, 4, {vreg}")
def op_addr():
    e("v_and_b32 v9, 7, v0")
    e("v_lshlrev_b32 v9, 11, v9")
    e(f"v_lshrrev_b32 v10, 3, {V_C}")
    e("v_lshl_add_u32 v9, v10, 10, v9")
    e(f"v_lshl_add_u32 v9, {V_G}, 4, v9")
    e("s_lshl_b32 s58, s30, 14")
    e("s_lshl_b32 s59, s53, 8")
    e("s_add_u32 s58, s58, s59")
    e("s_lshl_b32 s59, s31, 6")
    e("s_add_u32 s58, s58, s59")
    e(f"s_add_u32 s58, s58, {WS_OP}")
def stage2(WO, FO, DO, vrp, nwait):
    def wo_perms():
        e(f"s_waitcnt vmcnt({nwait})")
        perms_block(WO, FO)
        stamp_if_role(0, 14)
    pipe_poll(1, lambda b: e(f"buffer_load_dwordx4 v[{b}:{b+3}], v9, {SRD_WS}, s58 offen sc1"),
              16, [32 + 4*k for k in range(P["pipe"])], P["othr"], P["osleep"], pre=wo_perms)
    stamp_if_role(0, 15)
    e("s_nop 3")
    for j in range(8):
        e(f"v_mfma_f32_16x16x32_bf16 v[{DO+4*j}:{DO+4*j+3}], v[16:19], v[{FO+4*j}:{FO+4*j+3}], 0")
    e("s_lshl_b32 s55, s31, 13")
    e(f"v_add_u32 v7, s55, {V_L16}")
    e("s_lshr_b32 s55, s31, 1")
    e("s_lshl_b32 s55, s55, 12")
    e("s_and_b32 s56, s31, 1")
    e("s_lshl_b32 s56, s56, 8")
    e("s_add_u32 s55, s55, s56")
    e(f"v_lshlrev_b32 v8, 10, {V_G}")
    e(f"v_lshl_add_u32 v8, {V_C}, 4, v8")
    e("v_add_u32 v8, s55, v8")
    for j in range(8):
        e(f"ds_write_b128 v7, v[{DO+4*j}:{DO+4*j+3}] offset:{j*1024}")
    e("s_waitcnt lgkmcnt(0)")
    e("s_barrier")
    for k in range(8):
        a, sp = k >> 1, k & 1
        e(f"ds_read_b128 v[{64+4*k}:{67+4*k}], v8 offset:{a*8192 + sp*512}")
    e("s_waitcnt lgkmcnt(6)")
    for r in range(4): e(f"v_add_f32 v{64+r}, v{64+r}, v{68+r}")
    e("s_waitcnt lgkmcnt(4)")
    for r in range(4): e(f"v_add_f32 v{72+r}, v{72+r}, v{76+r}")
    e("s_waitcnt lgkmcnt(2)")
    for r in range(4): e(f"v_add_f32 v{80+r}, v{80+r}, v{84+r}")
    for r in range(4): e(f"v_add_f32 v{64+r}, v{64+r}, v{72+r}")
    e("s_waitcnt lgkmcnt(0)")
    for r in range(4): e(f"v_add_f32 v{88+r}, v{88+r}, v{92+r}")
    for r in range(4): e(f"v_add_f32 v{80+r}, v{80+r}, v{88+r}")
    for r in range(4): e(f"v_add_f32 v{64+r}, v{64+r}, v{80+r}")
    for r in range(4): e(f"v_min_u32 v{64+r}, -2, v{64+r}")
    e(f"buffer_store_dwordx4 v[64:67], {vrp}, {SRD_WS}, s60 offen sc1")
    stamp_if_role(0, 16)

hdr = f"""; fused sliding-window GQA decode attention (two branches), one persistent launch of 256 workgroups
; @launch grid=(256,1,1) block=(512,1,1) lds={LDS_BYTES}
.amdgcn_target "amdgcn-amd-amdhsa--gfx950"
.text
.globl {NAME}_kernel
.p2align 8
.type {NAME}_kernel,@function
{NAME}_kernel:"""

e("s_cmp_ge_u32 s2, 256")
e("s_cbranch_scc1 L_end")
for _ in range(P["padtop"]): e("s_nop 0")
if NST or P["dspan"] or P["dclk"]: e("s_memrealtime s[70:71]")
if P["dclk"]: e("s_memtime s[86:87]")
if NST: e(f"s_mul_i32 s68, s2, {NST*8}")
if P["remap"] == 1:
    e("s_and_b32 s4, s2, 7")
    e("s_lshl_b32 s4, s4, 5")
    e("s_bfe_u32 s5, s2, 0x10003")
    e("s_lshl_b32 s5, s5, 4")
    e("s_lshr_b32 s2, s2, 4")
    e("s_or_b32 s2, s2, s4")
    e("s_or_b32 s2, s2, s5")
e("s_lshr_b32 s4, s2, 7")
e("s_mul_i32 s5, s4, 40")
e("s_add_u32 s6, s0, s5")
e("s_addc_u32 s7, s1, 0")
def common_late():
    e("s_and_b32 s29, s2, 15")
    e("s_lshr_b32 s30, s2, 4")
    e("s_lshr_b32 s53, s29, 2")
    e("s_and_b32 s54, s29, 3")
    e("s_mov_b32 s48, 0x05040100")
    e("s_mov_b32 s49, 0x07060302")
    e(f"s_mov_b32 s52, {P['budget']}")
    e(f"v_mov_b32 {V_CF}, {L_CF}")
    e(f"v_mov_b32 {V_ONE}, 1")
    e(f"v_lshlrev_b32 {V_L16}, 4, v0")
    e("s_lshl_b32 s55, s31, 2")
    e(f"v_add_u32 v6, s55, {V_CF}")
    e(f"s_mov_b32 s42, {WS_SIZE}"); e("s_mov_b32 s43, 0x20000")
    if NST:
        e(f"s_add_u32 s72, s40, {STAMPOFF}")
        e("s_addc_u32 s73, s41, 0")
        e(f"s_mov_b32 s74, {256*NST*8}")
        e("s_mov_b32 s75, 0x20000")
if P["fastpro"]:
    e("s_load_dwordx4 s[8:11], s[6:7], 8")
    e("s_load_dwordx4 s[12:15], s[6:7], 24")
    e("v_lshrrev_b32 v1, 6, v0")
    e("v_and_b32 v0, 63, v0")
    e("s_bfe_u32 s26, s2, 0x30004")
    e("v_readfirstlane_b32 s3, v1")
    e("s_bfe_u32 s27, s2, 0x30001")
    e("s_and_b32 s28, s2, 1")
    e(f"v_lshrrev_b32 {V_G}, 4, v0")
    e(f"v_and_b32 {V_C}, 15, v0")
    e("s_and_b32 s31, s3, 3")
    e("s_cmp_lt_u32 s3, 4")
    e("s_cbranch_scc1 L_aux")
else:
    e("s_load_dwordx8 s[8:15], s[6:7], 0")
    e("s_load_dwordx2 s[16:17], s[6:7], 32")
    e("s_load_dwordx4 s[20:23], s[0:1], 80")
    e("s_load_dwordx2 s[24:25], s[0:1], 96")
    if P["cwarm"] >= 10:
        e("s_getpc_b64 s[56:57]")
        lab("L_pc")
        e(f"s_sub_u32 s56, s56, L_pc - {NAME}_kernel")
        e("s_subb_u32 s57, s57, 0")
        e("v_lshlrev_b32 v8, 6, v0")
        e(f"v_cmp_gt_u32 vcc, L_code_end - {NAME}_kernel, v8")
        e("s_and_saveexec_b64 s[58:59], vcc")
        lct = uid("Lct")
        e(f"s_cbranch_execz {lct}")
        e("global_load_dword v15, v8, s[56:57]")
        lab(lct)
        e("s_mov_b64 exec, -1")
    e("v_lshrrev_b32 v1, 6, v0")
    e("v_and_b32 v0, 63, v0")
    e("s_bfe_u32 s26, s2, 0x30004")
    e("v_readfirstlane_b32 s3, v1")
    e("s_bfe_u32 s27, s2, 0x30001")
    e("s_and_b32 s28, s2, 1")
    e("s_and_b32 s29, s2, 15")
    e("s_lshr_b32 s30, s2, 4")
    e("s_lshr_b32 s53, s29, 2")
    e("s_and_b32 s54, s29, 3")
    e("s_and_b32 s31, s3, 3")
    e("s_mov_b32 s48, 0x05040100")
    e("s_mov_b32 s49, 0x07060302")
    e(f"s_mov_b32 s52, {P['budget']}")
    e(f"v_mov_b32 {V_CF}, {L_CF}")
    e(f"v_lshrrev_b32 {V_G}, 4, v0")
    e(f"v_and_b32 {V_C}, 15, v0")
    e(f"v_mov_b32 {V_ONE}, 1")
    e(f"v_lshlrev_b32 {V_L16}, 4, v0")
    e("s_lshl_b32 s55, s31, 2")
    e(f"v_add_u32 v6, s55, {V_CF}")
    e("s_waitcnt lgkmcnt(0)")
    e("s_mov_b32 s40, s24"); e("s_mov_b32 s41, s25"); e(f"s_mov_b32 s42, {WS_SIZE}"); e("s_mov_b32 s43, 0x20000")
    if NST:
        e(f"s_add_u32 s72, s24, {STAMPOFF}")
        e("s_addc_u32 s73, s25, 0")
        e(f"s_mov_b32 s74, {256*NST*8}")
        e("s_mov_b32 s75, 0x20000")
    e("s_cmp_lt_u32 s3, 4")
    e("s_cbranch_scc1 L_aux")


if P["s2bulk"]: TMP.update(st=12, w=8, pp=11)
NWO = 8 if P["s2bulk"] else 0
WOB = 224
VB = 64
FB = 192
AC = 16
PB = 48
if P["fastpro"]:
    e("s_load_dwordx2 s[40:41], s[0:1], 96")
    e("s_mov_b32 s34, 0x4000000"); e("s_mov_b32 s35, 0x20000")
else:
    e("s_mov_b32 s32, s10"); e("s_mov_b32 s33, s11"); e("s_mov_b32 s34, 0x4000000"); e("s_mov_b32 s35, 0x20000")
    e("s_mov_b32 s36, s12"); e("s_mov_b32 s37, s13"); e("s_mov_b32 s38, 0x4000000"); e("s_mov_b32 s39, 0x20000")
e("s_lshl_b32 s56, s27, 23")
e("s_lshl_b32 s57, s26, 20")
e("s_add_u32 s56, s56, s57")
e("s_lshl_b32 s57, s28, 17")
e("s_add_u32 s56, s56, s57")
e("s_lshl_b32 s57, s31, 15")
if P["ilv"]:
    e("s_lshl_b32 s58, s31, 10")
    e("s_add_u32 s56, s56, s58")
else:
    e("s_add_u32 s56, s56, s57")
e(f"s_add_u32 s56, s56, {3072*256}")
e(f"v_lshlrev_b32 v12, 2, {V_G}")
e(f"v_lshlrev_b32 v13, 8, {V_G}")
for ii in range(4):
    e(f"v_add_u32 v14, {ii}, v12")
    e(f"v_xor_b32 v14, v14, {V_C}") if not P["noswz"] else e(f"v_mov_b32 v14, {V_C}")
    e(f"v_lshl_add_u32 v{8+ii}, v14, 4, v13")
PACE = P["pace"]
n_issued = 0
def pre_issue():
    global n_issued
    if n_issued == min(PACE, 8) if PACE else n_issued == 8:
        if P["fastpro"]:
            common_late()
            e("s_mov_b32 s36, s10"); e("s_mov_b32 s37, s11")
            e("s_mov_b32 s38, 0x4000000"); e("s_mov_b32 s39, 0x20000")
            if P["s2bulk"]: e("s_mov_b32 s16, s14"); e("s_mov_b32 s17, s15")
        if not P["b0at"]: e("s_barrier")
        if NST and (P["smask"] >> 20) & 1:
            e(f"s_waitcnt vmcnt({n_issued - 1})")
            stamp_if_role(0, 20)
    pc = PACE if n_issued < P["psw"] else P["pace2"]
    if pc and n_issued >= pc:
        e(f"s_waitcnt vmcnt({pc-1})")
    if P["b0at"] and n_issued == P["b0at"]: e("s_barrier")
    n_issued += 1
kl_done = False
e(f"s_mul_i32 s61, s2, {P['rmul']}")
if not P["ilv"]:
    e("s_lshl_b32 s62, s31, 3")
    e("s_add_u32 s61, s61, s62")
CSH = 12 if P["ilv"] else 10
e(f"s_lshl_b32 s61, s61, {CSH}")
if P["warm"] and not P["fastpro"]:
    e("v_mov_b32 v15, 0")
    e(f"buffer_load_dword v15, v15, {SRD_B}, s56 offen")
if P["fastpro"]:
    e("s_waitcnt lgkmcnt(0)")
    e("s_mov_b32 s32, s8"); e("s_mov_b32 s33, s9")
def rotaddr(n):
    e(f"s_add_u32 s58, s61, {n << CSH}")
    e(f"s_and_b32 s58, s58, {31 << CSH}")
    e("s_add_u32 s58, s58, s56")
for n in range(32):
    e(f"s_add_u32 m0, s57, {n*1024}")
    rotaddr(n)
    pre_issue()
    e(f"buffer_load_dwordx4 v{8+(n&3)}, {SRD_A}, s58 offen{pol} lds")
for n in range(32):
    rotaddr(n)
    pre_issue()
    pc = PACE if (n_issued - 1) < P["psw"] else P["pace2"]
    if pc and not kl_done and (n_issued - 1) - pc >= 31:
        lds_set("v6", CF_KL)
        kl_done = True
        stamp_if_role(0, 8)
    r = VB + 4 * n
    e(f"buffer_load_dwordx4 v[{r}:{r+3}], {V_L16}, {SRD_B}, s58 offen{pol}")
if P["wolate"] != 3: lds_set("v6", CF_VI)
if not kl_done:
    e("s_waitcnt vmcnt(32)")
    lds_set("v6", CF_KL)
if P["s2bulk"]:
    e("s_mov_b32 s32, s16"); e("s_mov_b32 s33, s17"); e("s_mov_b32 s34, 0x400000"); e("s_mov_b32 s35, 0x20000")
    wo_addr("v7")
    for i in range(8):
        dd, h = i >> 2, i & 3
        e(f"s_add_u32 s63, s62, {(h*128 + 8*dd)*1024}")
        if P["wopace"]: pre_issue()
        e(f"buffer_load_dwordx4 v[{WOB+4*i}:{WOB+4*i+3}], v7, {SRD_A}, s63 offen{wpol}")
nst_extra = 0
if NST:
    stamp_if_role(0, 9)
if not P["dbg"]: lds_wait1("v6", CF_P)
stamp_if_role(0, 10)
e("s_lshl_b32 s55, s31, 12")
e(f"v_add_u32 v7, s55, {V_L16}")
e(f"v_add_u32 v7, {L_PL}, v7")
for T in range(4):
    e(f"ds_read_b128 v[{PB+4*T}:{PB+4*T+3}], v7 offset:{T*1024}")
for T in range(4):
    src = VB + 32 * T
    if T < 3:
        e(f"s_waitcnt vmcnt({24 - 8*T + NWO})")
        if P["wolate"] == 3 and P["wothr"] == 24 - 8*T: lds_set("v6", CF_VI)
        perms_block(src, FB)
    else:
        for p in range(4):
            e(f"s_waitcnt vmcnt({6 - 2*p + NWO})")
            if P["wolate"] == 3 and P["wothr"] == 6 - 2*p: lds_set("v6", CF_VI)
            perms_block(src, FB, [p])
    if T == 0: e("s_waitcnt lgkmcnt(0)")
    e("s_nop 1")
    for j in range(8):
        c = "0" if T == 0 else f"v[{AC+4*j}:{AC+4*j+3}]"
        e(f"v_mfma_f32_16x16x32_bf16 v[{AC+4*j}:{AC+4*j+3}], v[{PB+4*T}:{PB+4*T+3}], v[{FB+4*j}:{FB+4*j+3}], {c}")
stamp_if_role(0, 11)
if P["dbg"]: e("s_branch L_end")
e("s_lshl_b32 s55, s31, 11")
e(f"v_add_u32 v7, s55, {V_L16}")
e(f"v_add_u32 v7, {L_OR}, v7")
e("s_mov_b64 exec, 0xffff")
e("s_nop 4")
for j in range(8):
    e(f"ds_write_b128 v7, v[{AC+4*j}:{AC+4*j+3}] offset:{j*256}")
e("s_mov_b64 exec, -1")
e("s_waitcnt lgkmcnt(0)")
e("s_barrier")
e("s_cmp_ge_u32 s31, 2")
e("s_cbranch_scc1 L_end" if not P["s2bulk"] else "s_cbranch_scc1 L_s2x")
e("s_lshl_b32 s55, s31, 10")
e(f"v_add_u32 v7, s55, {V_L16}")
e(f"v_add_u32 v8, {L_OR}, v7")
e(f"v_mov_b32 v9, {L_FW}")
for w in range(4):
    e(f"ds_read_b128 v[{16+4*w}:{19+4*w}], v8 offset:{w*2048}")
    e(f"ds_read_b128 v[{32+4*w}:{35+4*w}], v9 offset:{w*16}")
e("s_lshl_b32 s55, s2, 10")
e(f"s_add_u32 s55, s55, {WS_OP}")
e("v_lshrrev_b32 v7, 1, v7")
e("s_waitcnt lgkmcnt(6)")
for h in range(4): e(f"v_mul_f32 v{48+h}, v{16+h}, v{32+h}")
for w in range(1, 4):
    e(f"s_waitcnt lgkmcnt({6-2*w})")
    for h in range(4): e(f"v_fmac_f32 v{48+h}, v{16+4*w+h}, v{32+4*w+h}")
e("v_cvt_pk_bf16_f32 v48, v48, v49")
e("v_cvt_pk_bf16_f32 v49, v50, v51")
e("v_min_u32 v48, -2, v48")
e("v_min_u32 v49, -2, v49")
e(f"buffer_store_dwordx2 v[48:49], v7, {SRD_WS}, s55 offen sc1")
stamp_if_role(0, 12)
if P["s2bulk"]:
    e("s_branch L_s2")
    lab("L_s2x")
    e("v_mov_b32 v14, 0")
    e(f"buffer_load_dword v14, v14, {SRD_WS}, 0 offen")
    lab("L_s2")
    rp_addr("v15")
    op_addr()
    stage2(WOB, FB, 128, "v15", 2)
    TMP.update(st=250, w=244, pp=248)
e("s_branch L_end")

lab("L_aux")
e("s_setprio 3")
if P["fastpro"]:
    e("s_load_dwordx2 s[44:45], s[6:7], 0")
    e("s_load_dwordx2 s[40:41], s[0:1], 96")
    e("s_load_dwordx4 s[20:23], s[0:1], 80")
    if P["b0early"]:
        e("v_mov_b32 v10, 0")
        e(f"v_mov_b32 v13, {L_CF}")
        e("v_lshl_add_u32 v13, v0, 2, v13")
        e("ds_write_b32 v13, v10")
else:
    stamp_if_role(0, 19)
if 0 < P["cwarm"] < 10:
    lcw = uid("Lcw")
    e(f"s_cmp_lg_u32 s31, {P['cwarm'] - 1}")
    e(f"s_cbranch_scc1 {lcw}")
    e("s_getpc_b64 s[56:57]")
    lab("L_pc")
    e(f"s_sub_u32 s56, s56, L_pc - {NAME}_kernel")
    e("s_subb_u32 s57, s57, 0")
    e("v_lshlrev_b32 v8, 7, v0")
    e(f"v_cmp_gt_u32 vcc, L_code_end - {NAME}_kernel, v8")
    e("s_and_saveexec_b64 s[58:59], vcc")
    e("global_load_dword v242, v8, s[56:57]")
    e("v_add_u32 v8, 8192, v8")
    e(f"v_cmp_gt_u32 vcc, L_code_end - {NAME}_kernel, v8")
    e("s_and_b64 exec, exec, vcc")
    lc2 = uid("Lcw")
    e(f"s_cbranch_execz {lc2}")
    e("global_load_dword v243, v8, s[56:57]")
    e("v_add_u32 v8, 8192, v8")
    e(f"v_cmp_gt_u32 vcc, L_code_end - {NAME}_kernel, v8")
    e("s_and_b64 exec, exec, vcc")
    e(f"s_cbranch_execz {lc2}")
    e("global_load_dword v239, v8, s[56:57]")
    lab(lc2)
    e("s_mov_b64 exec, -1")
    lab(lcw)
WQ = 64
FQ = 96
DQ = 128
XF = 16
if P["fastpro"]:
    e("s_mov_b32 s34, 0x400000"); e("s_mov_b32 s35, 0x20000")
else:
    e("s_mov_b32 s32, s14"); e("s_mov_b32 s33, s15"); e("s_mov_b32 s34, 0x400000"); e("s_mov_b32 s35, 0x20000")
    e("s_mov_b32 s36, s16"); e("s_mov_b32 s37, s17"); e("s_mov_b32 s38, 0x400000"); e("s_mov_b32 s39, 0x20000")
    e("s_mov_b32 s44, s8"); e("s_mov_b32 s45, s9"); e("s_mov_b32 s46, 8192"); e("s_mov_b32 s47, 0x20000")
e("s_lshl_b32 s56, s28, 8")
e("s_lshl_b32 s57, s31, 6")
e("s_add_u32 s56, s56, s57")
e("s_lshl_b32 s57, s56, 13")
e("s_lshl_b32 s58, s26, 10")
e("s_add_u32 s57, s57, s58")
e("s_lshl_b32 s58, s27, 7")
e("s_add_u32 s57, s57, s58")
e(f"v_lshrrev_b32 v10, 3, {V_C}")
e("v_and_b32 v11, 7, v0")
e(f"v_lshlrev_b32 v8, 16, {V_G}")
e("v_lshl_add_u32 v8, v10, 18, v8")
e("v_lshl_add_u32 v8, v11, 4, v8")
if P["fastpro"]:
    e("s_waitcnt lgkmcnt(0)")
    e("s_mov_b32 s32, s12"); e("s_mov_b32 s33, s13")
for i in range(8):
    e(f"s_add_u32 s58, s57, {i*8192}")
    e(f"buffer_load_dwordx4 v[{WQ+4*i}:{WQ+4*i+3}], v8, {SRD_A}, s58 offen{wpol}")
if P["fastpro"]:
    if P["b0early"]: e("s_barrier")
    common_late()
    e("s_mov_b32 s36, s14"); e("s_mov_b32 s37, s15")
    e("s_mov_b32 s38, 0x400000"); e("s_mov_b32 s39, 0x20000")
    e("s_mov_b32 s46, 8192"); e("s_mov_b32 s47, 0x20000")
e("v_lshlrev_b32 v9, 10, v11")
e(f"v_lshl_add_u32 v9, {V_G}, 4, v9")
e("v_lshl_add_u32 v9, v10, 6, v9")
e("s_lshl_b32 s58, s56, 1")
e(f"buffer_load_dwordx4 v[{XF}:{XF+3}], v9, {SRD_X}, s58 offen")
e("s_lshl_b32 s58, s4, 7")
e("v_mov_b32 v10, 0")
e(f"buffer_load_dwordx2 v[20:21], v10, {SRD_WS}, s58 offen sc1")
e("v_mov_b32 v24, -1"); e("v_mov_b32 v25, -1"); e("v_mov_b32 v26, -1"); e("v_mov_b32 v27, -1")
B0E = P["b0early"] and P["fastpro"]
if not B0E:
    lz = uid("Lz")
    e("s_cmp_lg_u32 s31, 0")
    e(f"s_cbranch_scc1 {lz}")
    e(f"v_lshl_add_u32 v13, v0, 2, {V_CF}")
    e("ds_write_b32 v13, v10")
    e("s_waitcnt lgkmcnt(0)")
    lab(lz)
e("s_and_b32 s58, s31, 1")
e("s_lshl_b32 s59, s4, 1")
e("s_add_u32 s59, s59, s58")
e("s_lshl_b32 s60, s59, 18")
e("s_lshl_b32 s59, s54, 16")
e("s_add_u32 s60, s60, s59")
e("s_lshl_b32 s59, s26, 2")
e("s_add_u32 s59, s59, s53")
e("s_lshl_b32 s59, s59, 7")
e("s_add_u32 s60, s60, s59")
e("s_lshr_b32 s59, s31, 1")
e("s_lshl_b32 s59, s59, 6")
e("s_add_u32 s60, s60, s59")
e(f"s_add_u32 s60, s60, {WS_RP}")
e(f"v_lshlrev_b32 v12, 12, {V_C}")
e(f"v_lshl_add_u32 v12, {V_G}, 4, v12")
if P["noclr"]: e("s_mov_b64 exec, 1")
e(f"buffer_store_dwordx4 v[24:27], v12, {SRD_WS}, s60 offen sc1")
e("s_lshl_b32 s58, s2, 10")
e("s_lshl_b32 s59, s31, 8")
e("s_add_u32 s58, s58, s59")
e(f"s_add_u32 s58, s58, {WS_OP}")
e("s_mov_b64 exec, 0xffff" if not P["noclr"] else "s_mov_b64 exec, 1")
e(f"buffer_store_dwordx4 v[24:27], {V_L16}, {SRD_WS}, s58 offen sc1")
e("s_mov_b64 exec, -1")
if P["warm"]:
    e("s_lshl_b32 s58, s26, 19")
    e("s_lshl_b32 s59, s31, 17")
    e("s_add_u32 s58, s58, s59")
    e(f"buffer_load_dword v240, v10, {SRD_B}, s58 offen")
    e("s_mov_b32 s80, s20"); e("s_mov_b32 s81, s21"); e("s_mov_b32 s82, 16384"); e("s_mov_b32 s83, 0x20000")
    e("buffer_load_dword v241, v10, s[80:83], 0 offen")
if not B0E: e("s_barrier")
if NST:
    l = uid("Lst")
    e("s_cmp_lg_u32 s31, 0")
    e(f"s_cbranch_scc1 {l}")
    e("v_mov_b32 v250, s70"); e("v_mov_b32 v251, s71"); e("v_mov_b32 v252, 0")
    e("s_mov_b64 exec, 1")
    e("buffer_store_dwordx2 v[250:251], v252, s[72:75], s68 offen")
    e("s_mov_b64 exec, -1")
    e(f"s_waitcnt vmcnt({3+NW_})")
    lab(l)
e(f"s_waitcnt vmcnt({2+NW_})" if not NST else f"s_waitcnt vmcnt({3+NW_})")
if NST:
    l = uid("Lst")
    e("s_cmp_eq_u32 s31, 0")
    e(f"s_cbranch_scc1 {l}")
    e(f"s_waitcnt vmcnt({2+NW_})")
    lab(l)
stamp_if_role(0, 1)
if P["dbg"] == 1: e("s_branch L_end")
for _ in range(P["padp"]): e("s_nop 0")
perms_block(WQ, FQ)
e("v_readfirstlane_b32 s50, v20")
e("v_readfirstlane_b32 s51, v21")
for j in range(8):
    e(f"v_mfma_f32_16x16x32_bf16 v[{DQ+4*j}:{DQ+4*j+3}], v[{XF}:{XF+3}], v[{FQ+4*j}:{FQ+4*j+3}], 0")
e("s_add_u32 s50, s50, 1")
e("s_addc_u32 s51, s51, 0")
e("s_lshl_b32 s55, s31, 12")
e(f"s_add_u32 s55, s55, {L_QR}")
e(f"v_lshlrev_b32 v7, 7, {V_G}")
e("v_lshl_add_u32 v7, v11, 4, v7")
e("v_add_u32 v7, s55, v7")
e("s_mov_b32 exec_lo, 0x00ff00ff")
e("s_mov_b32 exec_hi, 0xff00ff00")
e("s_nop 1")
for j in range(8):
    e(f"ds_write_b128 v7, v[{DQ+4*j}:{DQ+4*j+3}] offset:{j*512}")
e("s_mov_b64 exec, -1")
e("s_waitcnt lgkmcnt(0)")
lds_set("v6", CF_QR)
e("s_lshl_b32 s55, s31, 10")
e(f"s_add_u32 s55, s55, {L_QR}")
e("v_lshlrev_b32 v7, 2, v0")
e("v_add_u32 v7, s55, v7")
e("v_and_b32 v8, 3, v0")
e("v_lshlrev_b32 v8, 13, v8")
e("v_lshrrev_b32 v9, 5, v0")
e("v_lshl_add_u32 v8, v9, 15, v8")
e("v_bfe_u32 v9, v0, 2, 3")
e("v_lshl_add_u32 v8, v9, 4, v8")
e("s_lshl_b32 s59, s30, 16")
e("s_lshl_b32 s61, s28, 12")
e("s_add_u32 s59, s59, s61")
e("s_lshl_b32 s61, s27, 9")
e("s_add_u32 s59, s59, s61")
e("s_lshl_b32 s61, s31, 7")
e("s_add_u32 s59, s59, s61")
e(f"s_add_u32 s59, s59, {WS_QP}")
e("v_mov_b32 v66, s50")
e("v_mov_b32 v67, s51")
lds_wait4(CF_QR)
for k in range(8):
    a_, s_ = k >> 1, k & 1
    e(f"ds_read2st64_b32 v[{68+2*k}:{69+2*k}], v7 offset0:{16*a_+s_} offset1:{16*a_+s_+2}")
e("s_waitcnt lgkmcnt(0)")
for k in range(4):
    e(f"v_add_f32 v{68+4*k}, v{68+4*k}, v{70+4*k}")
    e(f"v_add_f32 v{69+4*k}, v{69+4*k}, v{71+4*k}")
e("v_add_f32 v68, v68, v72"); e("v_add_f32 v69, v69, v73")
e("v_add_f32 v76, v76, v80"); e("v_add_f32 v77, v77, v81")
e("v_add_f32 v64, v68, v76"); e("v_add_f32 v65, v69, v77")
e(f"buffer_store_dwordx4 v[64:67], v8, {SRD_WS}, s59 offen sc1")
stamp_if_role(0, 2)
if P["dbg"] == 2: e("s_branch L_end")
e("s_lshl_b32 s58, s30, 16")
e("s_lshl_b32 s59, s27, 13")
e("s_add_u32 s58, s58, s59")
e("s_lshl_b32 s59, s31, 10")
e("s_add_u32 s58, s58, s59")
e(f"s_add_u32 s58, s58, {WS_QP}")
e("s_add_u32 s59, s58, 4096")
e("v_lshrrev_b32 v8, 5, v0")
e("v_lshlrev_b32 v8, 7, v8")
e("v_lshl_add_u32 v8, v11, 4, v8")
e("v_bfe_u32 v9, v0, 3, 2")
e("v_lshl_add_u32 v8, v9, 2, v8")
e("s_lshl_b32 s55, s31, 8")
e(f"s_add_u32 s55, s55, {L_QL}")
e("v_add_u32 v8, s55, v8")
if P["qdelay"]: e(f"s_sleep {P['qdelay']}")
if P["qprobe"]:
    e("v_and_b32 v9, 1, v0")
    e("v_lshlrev_b32 v9, 9, v9")
    e("v_lshrrev_b32 v10, 1, v0")
    e("v_lshl_add_u32 v9, v10, 12, v9")
    e("s_mov_b64 exec, 0xf")
    lp, ld = uid("Lp"), uid("Ld")
    lab(lp)
    e(f"buffer_load_dwordx4 v[68:71], v9, {SRD_WS}, s58 offen offset:496 sc1")
    e("s_waitcnt vmcnt(0)")
    e("v_cmp_ne_u64 vcc, v[70:71], v[66:67]")
    e("s_mov_b64 exec, vcc")
    e(f"s_cbranch_execz {ld}")
    budget_check()
    e(f"s_sleep {P['qsleep']}")
    e(f"s_branch {lp}")
    lab(ld)
    e("s_mov_b64 exec, -1")
lp, ld = uid("Lp"), uid("Ld")
lab(lp)
e(f"buffer_load_dwordx4 v[68:71], {V_L16}, {SRD_WS}, s58 offen sc1")
e(f"buffer_load_dwordx4 v[72:75], {V_L16}, {SRD_WS}, s59 offen sc1")
e("s_waitcnt vmcnt(0)")
e("v_cmp_ne_u64 vcc, v[70:71], v[66:67]")
e("v_cmp_ne_u64 s[56:57], v[74:75], v[66:67]")
e("s_or_b64 exec, vcc, s[56:57]")
e(f"s_cbranch_execz {ld}")
budget_check()
e(f"s_sleep {P['qsleep']}")
e(f"s_branch {lp}")
lab(ld)
e("s_mov_b64 exec, -1")
e("v_add_f32 v68, v68, v72"); e("v_add_f32 v69, v69, v73")
e("v_cvt_pk_bf16_f32 v68, v68, v69")
e("ds_write_b32 v8, v68")
lds_set("v6", CF_QST)
e("s_waitcnt lgkmcnt(0)")
lds_set("v6", CF_QL)
stamp_if_role(0, 3)
if P["dbg"] == 3: e("s_branch L_end")
lgo = uid("Lgo")
e("s_cmp_lg_u32 s31, 0")
e(f"s_cbranch_scc1 {lgo}")
lds_wait4(CF_QST)
e("s_lshl_b32 s58, s30, 7")
e(f"s_add_u32 s58, s58, {WS_FL}")
e("s_lshl_b32 s59, s29, 3")
e("v_mov_b32 v22, s59")
e("s_mov_b64 exec, 1")
e(f"buffer_store_dwordx2 v[66:67], v22, {SRD_WS}, s58 offen sc1")
e("s_mov_b64 exec, -1")
lab(lgo)
for _ in range(P["padq"]): e("s_nop 0")
e(f"v_and_b32 v8, 3, {V_C}")
e("v_lshlrev_b32 v8, 2, v8")
e(f"v_lshrrev_b32 v9, 2, {V_C}")
e("v_add_u32 v8, v8, v9")
e("v_lshlrev_b32 v8, 8, v8")
e("s_lshl_b32 s55, s31, 15")
e("v_add_u32 v8, s55, v8")
for s in range(4):
    e(f"v_add_u32 v9, {4*s}, {V_G}")
    e(f"v_xor_b32 v9, v9, {V_C}")
    e(f"v_lshl_add_u32 v{28+s}, v9, 4, v8")
e(f"v_and_b32 v9, 3, {V_C}")
e("v_lshlrev_b32 v9, 8, v9")
e(f"v_lshl_add_u32 v9, {V_G}, 4, v9")
e(f"v_add_u32 v9, {L_QL}, v9")
lds_wait4(CF_QL)
stamp_if_role(0, 4)
QF = 32
for s in range(4):
    e(f"ds_read_b128 v[{QF+4*s}:{QF+4*s+3}], v9 offset:{s*64}")
lds_wait1("v6", CF_KL)
stamp_if_role(0, 5)
KF = 64
SC = 128
def kread(t):
    b = KF + 16 * (t & 3)
    for s in range(4):
        e(f"ds_read_b128 v[{b+4*s}:{b+4*s+3}], v{28+s} offset:{t*4096}")
kread(0); kread(1)
for t in range(8):
    if t + 2 < 8:
        kread(t + 2)
        e("s_waitcnt lgkmcnt(8)")
    else:
        e(f"s_waitcnt lgkmcnt({4*(7-t)})")
    b = KF + 16 * (t & 3)
    for s in range(4):
        c = "0" if s == 0 else f"v[{SC+4*t}:{SC+4*t+3}]"
        e(f"v_mfma_f32_16x16x32_bf16 v[{SC+4*t}:{SC+4*t+3}], v[{b+4*s}:{b+4*s+3}], v[{QF+4*s}:{QF+4*s+3}], {c}")
import math
CSC = (128 ** -0.5) * math.log2(math.e)
import struct
f2u = lambda x: struct.unpack('<I', struct.pack('<f', x))[0]
if P["mimic"]:
    e(f"s_mov_b32 s58, 0x{f2u(math.log2(math.e)):08x}")
    e(f"s_mov_b32 s59, 0x{f2u(128 ** -0.5):08x}")
    e("s_mov_b32 s57, 0xffff0000")
    e("s_nop 6")
    for k in range(16):
        e(f"v_cvt_pk_bf16_f32 v{64+k}, v{SC+2*k}, v{SC+2*k+1}")
    for k in range(16):
        e(f"v_lshlrev_b32 v{SC+2*k}, 16, v{64+k}")
        e(f"v_and_b32 v{SC+2*k+1}, s57, v{64+k}")
    for k in range(32):
        e(f"v_mul_f32 v{SC+k}, s59, v{SC+k}")
    for k in range(16):
        e(f"v_cvt_pk_bf16_f32 v{64+k}, v{SC+2*k}, v{SC+2*k+1}")
    for k in range(16):
        e(f"v_lshlrev_b32 v{SC+2*k}, 16, v{64+k}")
        e(f"v_and_b32 v{SC+2*k+1}, s57, v{64+k}")
else:
    e(f"s_mov_b32 s58, 0x{f2u(CSC):08x}")
    e("s_nop 7")
e(f"v_max3_f32 v10, v{SC}, v{SC+1}, v{SC+2}")
e(f"v_max3_f32 v11, v{SC+3}, v{SC+4}, v{SC+5}")
for k in range(6, 30, 4):
    e(f"v_max3_f32 v10, v10, v{SC+k}, v{SC+k+1}")
    e(f"v_max3_f32 v11, v11, v{SC+k+2}, v{SC+k+3}")
e(f"v_max3_f32 v10, v10, v{SC+30}, v{SC+31}")
e("v_max_f32 v10, v10, v11")
def xlane(op, v, t):
    e(f"v_mov_b32 {t}, {v}")
    e("s_nop 1")
    e(f"v_permlane32_swap_b32 {v}, {t}")
    e("s_nop 1")
    e(f"{op} {v}, {v}, {t}")
    e(f"v_mov_b32 {t}, {v}")
    e("s_nop 1")
    e(f"v_permlane16_swap_b32 {v}, {t}")
    e("s_nop 1")
    e(f"{op} {v}, {v}, {t}")
xlane("v_max_f32", "v10", "v11")
e("v_mul_f32 v10, s58, v10")
e("v_sub_f32 v13, 0, v10")
for k in range(32):
    e(f"v_fma_f32 v{SC+k}, v{SC+k}, s58, v13")
for k in range(32):
    e(f"v_exp_f32 v{SC+k}, v{SC+k}")
e("s_nop 0")
e(f"v_add_f32 v11, v{SC}, v{SC+1}")
e(f"v_add_f32 v14, v{SC+2}, v{SC+3}")
for k in range(4, 32, 2):
    e(f"v_add_f32 v11, v11, v{SC+k}")
    e(f"v_add_f32 v14, v14, v{SC+k+1}")
e("v_add_f32 v11, v11, v14")
for k in range(16):
    e(f"v_cvt_pk_bf16_f32 v{64+k}, v{SC+2*k}, v{SC+2*k+1}")
e("s_lshl_b32 s55, s31, 12")
e(f"v_add_u32 v7, s55, {V_L16}")
e(f"v_add_u32 v7, {L_PL}, v7")
for T in range(4):
    e(f"ds_write_b128 v7, v[{64+4*T}:{67+4*T}] offset:{T*1024}")
xlane("v_add_f32", "v11", "v14")
e("s_lshl_b32 s55, s31, 5")
e(f"s_add_u32 s55, s55, {L_SL}")
e("v_lshlrev_b32 v8, 3, v0")
e("v_add_u32 v8, s55, v8")
e("s_mov_b64 exec, 0xf")
e("ds_write_b64 v8, v[10:11]")
e("s_mov_b64 exec, -1")
e("s_waitcnt lgkmcnt(0)")
lds_set("v6", CF_P)
lds_set("v6", CF_SL)
stamp_if_role(0, 6)
if P["dbg"] == 4: e("s_branch L_end")
ls3, ls0, lsd = uid("Ls"), uid("Ls"), uid("Ls")
e("s_cmp_eq_u32 s31, 0")
e(f"s_cbranch_scc1 {ls0}")
e("s_cmp_lg_u32 s31, 3")
e(f"s_cbranch_scc1 {lsd}")
lds_wait4(CF_SL)
e("s_mov_b64 exec, 0xffff")
e("v_lshlrev_b32 v8, 3, v0")
e(f"v_add_u32 v8, {L_SL}, v8")
e("ds_read_b64 v[10:11], v8")
e("s_waitcnt lgkmcnt(0)")
e("v_max_f32_dpp v13, v10, v10 row_ror:4 row_mask:0xf bank_mask:0xf")
e("s_nop 1")
e("v_max_f32_dpp v13, v13, v13 row_ror:8 row_mask:0xf bank_mask:0xf")
e("v_sub_f32 v14, v10, v13")
e("v_exp_f32 v14, v14")
e("s_nop 0")
e("v_mul_f32 v14, v14, v11")
e("s_nop 1")
e("v_add_f32_dpp v15, v14, v14 row_ror:4 row_mask:0xf bank_mask:0xf")
e("s_nop 1")
e("v_add_f32_dpp v15, v15, v15 row_ror:8 row_mask:0xf bank_mask:0xf")
e("v_mov_b32 v20, v13")
e("v_mov_b32 v21, v15")
e("v_mov_b32 v22, s50")
e("v_mov_b32 v23, s51")
e("v_and_b32 v9, 3, v0")
e("v_lshlrev_b32 v9, 4, v9")
e("s_lshl_b32 s58, s2, 7")
e(f"s_add_u32 s58, s58, {WS_ST}")
e("s_xor_b32 s59, s58, 128")
e("s_mov_b64 exec, 0xf")
e(f"buffer_store_dwordx4 v[20:23], v9, {SRD_WS}, s58 offen sc1")
e("s_mov_b64 exec, 0xffff")
lp, ld = uid("Lp"), uid("Ld")
lab(lp)
e(f"buffer_load_dwordx4 v[24:27], v9, {SRD_WS}, s59 offen sc1")
e("s_waitcnt vmcnt(0)")
e("v_cmp_ne_u64 vcc, v[26:27], v[22:23]")
e(f"s_cbranch_vccz {ld}")
budget_check()
e("s_sleep 2")
e(f"s_branch {lp}")
lab(ld)
e("v_max_f32 v26, v13, v24")
e("v_sub_f32 v27, v13, v26")
e("v_sub_f32 v20, v24, v26")
e("v_sub_f32 v21, v10, v26")
e("v_exp_f32 v27, v27")
e("v_exp_f32 v20, v20")
e("v_exp_f32 v21, v21")
e("s_nop 0")
e("v_mul_f32 v27, v27, v15")
e("v_fmac_f32 v27, v20, v25")
e("v_rcp_f32 v27, v27")
e("s_nop 0")
e("v_mul_f32 v21, v21, v27")
e("v_lshlrev_b32 v8, 2, v0")
e(f"v_add_u32 v8, {L_FW}, v8")
e("ds_write_b32 v8, v21")
e("s_mov_b64 exec, -1")
e("s_waitcnt lgkmcnt(0)")
stamp(7)
e(f"s_branch {lsd}")
lab(ls0)
e("s_lshl_b32 s58, s4, 10")
e(f"s_add_u32 s58, s58, {WS_FL}")
e("v_mov_b32 v20, s50")
e("v_mov_b32 v21, s51")
lp, ld = uid("Lp"), uid("Ld")
lab(lp)
e(f"buffer_load_dwordx4 v[24:27], {V_L16}, {SRD_WS}, s58 offen sc1")
e("s_waitcnt vmcnt(0)")
e("v_cmp_ne_u64 vcc, v[24:25], v[20:21]")
e("v_cmp_ne_u64 s[56:57], v[26:27], v[20:21]")
e("s_or_b64 vcc, vcc, s[56:57]")
e(f"s_cbranch_vccz {ld}")
budget_check()
e("s_sleep 2")
e(f"s_branch {lp}")
lab(ld)
lab(lsd)
if P["s2bulk"]:
    e("s_barrier")
    e("s_cmp_lg_u32 s31, 0")
    e("s_cbranch_scc1 L_end")
    e("s_barrier")
else:
    if P["wolate"] in (1, 3):
        lds_wait1("v6", CF_VI)
    WO = 64; FO = 96; DO = 128
    e("s_lshl_b32 s56, s26, 9")
    e("s_and_b32 s57, s31, 1")
    e("s_lshl_b32 s57, s57, 6")
    e("s_add_u32 s56, s56, s57")
    e("s_lshl_b32 s57, s53, 1")
    e("s_add_u32 s56, s56, s57")
    e("s_lshr_b32 s57, s31, 1")
    e("s_add_u32 s56, s56, s57")
    e("s_lshl_b32 s56, s56, 10")
    e("s_lshl_b32 s57, s54, 8")
    e("s_add_u32 s56, s56, s57")
    e(f"v_lshlrev_b32 v8, 14, {V_G}")
    e(f"v_lshl_add_u32 v8, {V_C}, 4, v8")
    def wo_loads():
        if P["woprio"] != 3: e(f"s_setprio {P['woprio']}")
        for i in range(8):
            dd, h = i >> 2, i & 3
            e(f"s_add_u32 s57, s56, {(h*128 + 8*dd)*1024}")
            if P["wopace"] and i >= P["wopace"]: e(f"s_waitcnt vmcnt({P['wopace']-1})")
            e(f"buffer_load_dwordx4 v[{WO+4*i}:{WO+4*i+3}], v8, {SRD_B}, s57 offen{wpol}")
        if P["woprio"] != 3: e("s_setprio 3")
    if P["wolate"] != 2: wo_loads()
    e("v_and_b32 v9, 7, v0")
    e("v_lshlrev_b32 v9, 11, v9")
    e(f"v_lshrrev_b32 v10, 3, {V_C}")
    e("v_lshl_add_u32 v9, v10, 10, v9")
    e(f"v_lshl_add_u32 v9, {V_G}, 4, v9")
    e("s_lshl_b32 s58, s30, 14")
    e("s_lshl_b32 s59, s53, 8")
    e("s_add_u32 s58, s58, s59")
    e("s_lshl_b32 s59, s31, 6")
    e("s_add_u32 s58, s58, s59")
    e(f"s_add_u32 s58, s58, {WS_OP}")
    if P["dbg"] == 5:
        e("s_waitcnt vmcnt(0)")
        stamp_if_role(0, 13)
        e("s_branch L_end")
    e("s_barrier")
    if P["wolate"] == 2: wo_loads()
    stamp_if_role(0, 13)
    def wo_perms():
        e("s_waitcnt vmcnt(1)")
        perms_block(WO, FO)
        stamp_if_role(0, 14)
    if P["pipe"]:
        pipe_poll(1, lambda b: e(f"buffer_load_dwordx4 v[{b}:{b+3}], v9, {SRD_WS}, s58 offen sc1"),
                  16, [32 + 4*k for k in range(P["pipe"])], P["othr"], P["osleep"], pre=wo_perms)
    else:
        e("s_waitcnt vmcnt(0)")
        perms_block(WO, FO)
        lp, ld = uid("Lp"), uid("Ld")
        lab(lp)
        e(f"buffer_load_dwordx4 v[16:19], v9, {SRD_WS}, s58 offen sc1")
        e("s_waitcnt vmcnt(0)")
        e("v_max3_u32 v24, v16, v17, v18")
        e("v_max_u32 v24, v24, v19")
        e("v_cmp_eq_u32 vcc, -1, v24")
        e("s_mov_b64 exec, vcc")
        e(f"s_cbranch_execz {ld}")
        budget_check()
        if P["osleep"]: e(f"s_sleep {P['osleep']}")
        e(f"s_branch {lp}")
        lab(ld)
        e("s_mov_b64 exec, -1")
    stamp_if_role(0, 15)
    e("s_nop 3")
    for j in range(8):
        e(f"v_mfma_f32_16x16x32_bf16 v[{DO+4*j}:{DO+4*j+3}], v[16:19], v[{FO+4*j}:{FO+4*j+3}], 0")
    e("s_lshl_b32 s55, s31, 13")
    e(f"v_add_u32 v7, s55, {V_L16}")
    e("s_lshr_b32 s55, s31, 1")
    e("s_lshl_b32 s55, s55, 12")
    e("s_and_b32 s56, s31, 1")
    e("s_lshl_b32 s56, s56, 8")
    e("s_add_u32 s55, s55, s56")
    e(f"v_lshlrev_b32 v8, 10, {V_G}")
    e(f"v_lshl_add_u32 v8, {V_C}, 4, v8")
    e("v_add_u32 v8, s55, v8")
    for j in range(8):
        e(f"ds_write_b128 v7, v[{DO+4*j}:{DO+4*j+3}] offset:{j*1024}")
    e("s_waitcnt lgkmcnt(0)")
    e("s_barrier")
    for k in range(8):
        a, sp = k >> 1, k & 1
        e(f"ds_read_b128 v[{64+4*k}:{67+4*k}], v8 offset:{a*8192 + sp*512}")
    e("s_waitcnt lgkmcnt(6)")
    for r in range(4): e(f"v_add_f32 v{64+r}, v{64+r}, v{68+r}")
    e("s_waitcnt lgkmcnt(4)")
    for r in range(4): e(f"v_add_f32 v{72+r}, v{72+r}, v{76+r}")
    e("s_waitcnt lgkmcnt(2)")
    for r in range(4): e(f"v_add_f32 v{80+r}, v{80+r}, v{84+r}")
    for r in range(4): e(f"v_add_f32 v{64+r}, v{64+r}, v{72+r}")
    e("s_waitcnt lgkmcnt(0)")
    for r in range(4): e(f"v_add_f32 v{88+r}, v{88+r}, v{92+r}")
    for r in range(4): e(f"v_add_f32 v{80+r}, v{80+r}, v{88+r}")
    for r in range(4): e(f"v_add_f32 v{64+r}, v{64+r}, v{80+r}")
    for r in range(4): e(f"v_min_u32 v{64+r}, -2, v{64+r}")
    e(f"buffer_store_dwordx4 v[64:67], v12, {SRD_WS}, s60 offen sc1")
e("s_cmp_lg_u32 s31, 0")
e("s_cbranch_scc1 L_end")
if not P["s2bulk"]: stamp(16)
for _ in range(P["padtail"]): e("s_nop 0")
e("s_and_b32 s55, s2, 1")
e("s_lshl_b32 s56, s4, 1")
e("s_add_u32 s56, s56, s55")
e("s_lshl_b32 s56, s56, 18")
e("s_bfe_u32 s57, s2, 0x60001")
e("s_lshl_b32 s58, s57, 12")
e("s_add_u32 s56, s56, s58")
e(f"s_add_u32 s56, s56, {WS_RP}")
e("s_mov_b32 s44, s20"); e("s_mov_b32 s45, s21"); e("s_mov_b32 s46, 16384"); e("s_mov_b32 s47, 0x20000")
e("s_lshl_b32 s58, s55, 13")
e("s_lshl_b32 s59, s4, 10")
e("s_add_u32 s58, s58, s59")
e("s_lshl_b32 s59, s57, 4")
e("s_add_u32 s58, s58, s59")
e("v_lshlrev_b32 v8, 1, v0")
if P["pipe"]:
    def iss(b):
        for t in range(4):
            e(f"buffer_load_dwordx4 v[{b+4*t}:{b+4*t+3}], {V_L16}, {SRD_WS}, s56 offen offset:{t*1024} sc1")
    pipe_poll(4, iss, 16, [160 + 16*k for k in range(P["pipe"])], P["rthr"], P["osleep"])
else:
    lp, ld = uid("Lp"), uid("Ld")
    lab(lp)
    for t in range(4):
        e(f"buffer_load_dwordx4 v[{16+4*t}:{19+4*t}], {V_L16}, {SRD_WS}, s56 offen offset:{t*1024} sc1")
    e("s_waitcnt vmcnt(0)")
    e("v_max3_u32 v32, v16, v17, v18")
    e("v_max3_u32 v33, v19, v20, v21")
    e("v_max3_u32 v32, v32, v22, v23")
    e("v_max3_u32 v33, v33, v24, v25")
    e("v_max3_u32 v32, v32, v26, v27")
    e("v_max3_u32 v33, v33, v28, v29")
    e("v_max3_u32 v32, v32, v30, v31")
    e("v_max_u32 v32, v32, v33")
    e("v_cmp_eq_u32 vcc, -1, v32")
    e("s_mov_b64 exec, vcc")
    e(f"s_cbranch_execz {ld}")
    budget_check()
    if P["osleep"]: e(f"s_sleep {P['osleep']}")
    e(f"s_branch {lp}")
    lab(ld)
    e("s_mov_b64 exec, -1")
stamp(17)
for r in range(4): e(f"v_add_f32 v{16+r}, v{16+r}, v{20+r}")
for r in range(4): e(f"v_add_f32 v{24+r}, v{24+r}, v{28+r}")
for r in range(4): e(f"v_add_f32 v{16+r}, v{16+r}, v{24+r}")
e("s_nop 1")
for r in range(4): e(f"v_add_f32_dpp v{20+r}, v{16+r}, v{16+r} row_ror:8 row_mask:0xf bank_mask:0xf")
for r in range(4): e(f"v_mov_b32 v{24+r}, v{20+r}")
e("s_nop 1")
for r in range(4): e(f"v_permlane32_swap_b32 v{20+r}, v{24+r}")
e("s_nop 1")
for r in range(4): e(f"v_add_f32 v{20+r}, v{20+r}, v{24+r}")
for r in range(4): e(f"v_mov_b32 v{24+r}, v{20+r}")
e("s_nop 1")
for r in range(4): e(f"v_permlane16_swap_b32 v{20+r}, v{24+r}")
e("s_nop 1")
for r in range(4): e(f"v_add_f32 v{20+r}, v{20+r}, v{24+r}")
for r in range(4): e(f"v_cvt_pk_bf16_f32 v{20+r}, v{20+r}, v{20+r}")
e("s_mov_b64 exec, 0xff")
e("s_add_u32 s59, s58, 4096")
for r in range(4):
    e(f"buffer_store_short v{20+r}, v8, {SRD_X}, {'s58' if r < 2 else 's59'} offen offset:{(r&1)*2048}")
e("s_and_b32 s55, s2, 127")
e("s_cmp_lg_u32 s55, 0")
lfin = uid("Lf")
e(f"s_cbranch_scc1 {lfin}")
e("s_mov_b64 exec, 1")
e("v_mov_b32 v24, s50")
e("v_mov_b32 v25, s51")
e("v_mov_b32 v26, 0")
e("s_lshl_b32 s58, s4, 7")
e(f"buffer_store_dwordx2 v[24:25], v26, {SRD_WS}, s58 offen sc1")
lab(lfin)
if P["dclk"]:
    ldc = uid("Ldc")
    e("s_cmp_lg_u32 s2, 5")
    e(f"s_cbranch_scc1 {ldc}")
    e("s_memrealtime s[64:65]")
    e("s_memtime s[88:89]")
    e("s_mov_b32 s44, s22"); e("s_mov_b32 s45, s23"); e("s_mov_b32 s46, 256"); e("s_mov_b32 s47, 0x20000")
    e("s_waitcnt lgkmcnt(0)")
    e("s_sub_u32 s64, s64, s70")
    e("s_sub_u32 s88, s88, s86")
    e("s_mov_b64 exec, 1")
    e("v_mov_b32 v24, s64")
    e("v_mov_b32 v25, s88")
    e("v_mov_b32 v26, 0")
    e("buffer_store_dwordx2 v[24:25], v26, s[44:47], 0 offen")
    lab(ldc)
if P["dspan"]:
    e("s_waitcnt vmcnt(0)")
    e("s_memrealtime s[64:65]")
    e("s_mov_b32 s44, s22"); e("s_mov_b32 s45, s23"); e("s_mov_b32 s46, 256"); e("s_mov_b32 s47, 0x20000")
    e("s_waitcnt lgkmcnt(0)")
    e("s_mov_b64 exec, 1")
    e("s_not_b32 s66, s70")
    e("v_mov_b32 v24, s64")
    e("v_mov_b32 v25, s66")
    e("v_mov_b32 v26, 0")
    e("buffer_atomic_umax v24, v26, s[44:47], 0 offen")
    e("buffer_atomic_umax v25, v26, s[44:47], 0 offen offset:4")
    e("v_mov_b32 v24, s70")
    e("buffer_atomic_umax v24, v26, s[44:47], 0 offen offset:8")
    e("s_not_b32 s66, s64")
    e("v_mov_b32 v25, s66")
    e("buffer_atomic_umax v25, v26, s[44:47], 0 offen offset:12")
if NST:
    e("s_mov_b64 exec, -1")
    e("s_waitcnt vmcnt(0)")
    stamp(18)
lab("L_end")
e("s_endpgm")
lab("L_code_end")

ftr = f""".section .rodata,"a"
.p2align 6
.amdhsa_kernel {NAME}_kernel
  .amdhsa_next_free_vgpr 256
  .amdhsa_next_free_sgpr 102
  .amdhsa_accum_offset 256
  .amdhsa_group_segment_fixed_size 0
  .amdhsa_kernarg_size 104
  .amdhsa_user_sgpr_count 2
  .amdhsa_user_sgpr_kernarg_segment_ptr 1
  .amdhsa_system_sgpr_workgroup_id_x 1
.end_amdhsa_kernel
"""
open(out, "w").write(hdr + "\n" + "\n".join(L) + "\n" + ftr)
```

```python
import sys

out = sys.argv[1]
P = dict(vwarm=0, wowarm=0, padq=0, padp=0, b0early=0, b0at=0, fastpro=1, padtop=0, padtail=0, dclk=0, cwarm=0, s2bulk=1, woprio=3, wopace=0, noclr=0, ilv=0, mimic=1, remap=0, rmul=5, warm=1, dspan=0, wothr=4, pipe=4, othr=24, rthr=32, pgap=2, psw=64, pace2=0, dbg=0, noswz=0, qprobe=0, smask=0, qdelay=32, osleep=2, qsleep=12, pace=8, stamps=0, pol="nt", wpol="nt", budget=1 << 22, wolate=2)
for a in sys.argv[2:]:
    k, v = a.split("=")
    P[k] = v if k in ("pol", "wpol") else int(v, 0)
NAME = "concat_heads__sliding_block_cached__sliding_block_cached__decode"
pol = "".join(" " + x for x in P["pol"].split("+") if x != "none")
wpol = "".join(" " + x for x in P["wpol"].split("+") if x != "none")
NST = P["stamps"]
NW_ = 2 if P["warm"] else 0
STAMPOFF = 200 << 20

WS_E = 0x0
WS_FL = 0x1000
WS_ST = 0x2000
WS_OP = 0x10000
WS_QP = 0x100000
WS_RP = 0x200000
WS_SIZE = 0x300000

L_K = 0
L_RR = 0
L_QR = 131072
L_PL = 131072
L_OR = 147456
L_QL = 155648
L_SL = 156672
L_FW = 156800
L_CF = 156928
CF_QR, CF_QST, CF_QL, CF_KL, CF_VI, CF_P, CF_SL, CF_GO = [16 * i for i in range(8)]
LDS_BYTES = 157184 + 128

L = []
def e(s): L.append("    " + s)
def lab(s): L.append(s + ":")
def cmt(s): L.append("    ; " + s)
_uid = [0]
def uid(p="L"):
    _uid[0] += 1
    return f"{p}_{_uid[0]}"

S_WG, S_WAVE, S_BR = "s2", "s3", "s4"
S_HKV, S_B, S_SPLIT, S_C, S_GRP, S_ROLE = "s26", "s27", "s28", "s29", "s30", "s31"
SRD_A, SRD_B, SRD_WS, SRD_X = "s[32:35]", "s[36:39]", "s[40:43]", "s[44:47]"
S_SELLO, S_SELHI = "s48", "s49"
S_TAG0, S_TAG1 = "s50", "s51"
S_BUD = "s52"
S_HI, S_LO = "s53", "s54"

V_LANE = "v0"
V_CF = "v1"
V_G = "v2"
V_C = "v3"
V_ONE = "v4"
V_L16 = "v5"

TMP = dict(st=250, w=244, pp=248)
def stamp(idx):
    if not NST: return
    if P["smask"] and not (P["smask"] >> idx) & 1: return
    t = TMP["st"]
    e("s_memrealtime s[64:65]")
    e("s_waitcnt lgkmcnt(0)")
    e("s_mov_b64 s[66:67], exec")
    e("s_mov_b64 exec, 1")
    e(f"v_mov_b32 v{t}, s64")
    e(f"v_mov_b32 v{t+1}, s65")
    e(f"v_mov_b32 v{t+2}, {idx*8}")
    e(f"buffer_store_dwordx2 v[{t}:{t+1}], v{t+2}, s[72:75], s68 offen")
    e("s_mov_b64 exec, s[66:67]")

def stamp_if_role(role, idx):
    if not NST: return
    if P["smask"] and not (P["smask"] >> idx) & 1: return
    l = uid("Lst")
    e(f"s_cmp_lg_u32 {S_ROLE}, {role}")
    e(f"s_cbranch_scc1 {l}")
    stamp(idx)
    lab(l)

def budget_check():
    e(f"s_sub_u32 {S_BUD}, {S_BUD}, 1")
    e("s_cbranch_scc1 L_end")

def lds_wait4(off, t="v[244:247]"):
    l, d = uid("Lw"), uid("Ld")
    lab(l)
    e(f"ds_read_b128 v[244:247], {V_CF} offset:{off}")
    e("s_waitcnt lgkmcnt(0)")
    e("v_and_b32 v244, v244, v245")
    e("v_and_b32 v246, v246, v247")
    e("v_and_b32 v244, v244, v246")
    e("s_nop 0")
    e("v_readfirstlane_b32 s55, v244")
    e("s_cmp_eq_u32 s55, 1")
    e(f"s_cbranch_scc1 {d}")
    budget_check()
    e("s_sleep 1")
    e(f"s_branch {l}")
    lab(d)

def lds_wait1(vaddr, off):
    l, d = uid("Lw"), uid("Ld")
    lab(l)
    e(f"ds_read_b32 v{TMP['w']}, {vaddr} offset:{off}")
    e("s_waitcnt lgkmcnt(0)")
    e(f"v_readfirstlane_b32 s55, v{TMP['w']}")
    e("s_cmp_eq_u32 s55, 1")
    e(f"s_cbranch_scc1 {d}")
    budget_check()
    e("s_sleep 1")
    e(f"s_branch {l}")
    lab(d)

def lds_set(vaddr, off):
    e(f"ds_write_b32 {vaddr}, {V_ONE} offset:{off}")


def pipe_poll(nload, issue, final, sets, slow_thresh, slow_sleep, pre=None):
    N = len(sets)
    nreg = 4 * nload
    ld = uid("Ld")
    def check(base, mask):
        e(f"s_mov_b64 exec, {mask}")
        regs = [f"v{base+i}" for i in range(nreg)]
        e(f"v_max3_u32 v{TMP['pp']}, {regs[0]}, {regs[1]}, {regs[2]}")
        rest = regs[3:]
        while len(rest) >= 2:
            e(f"v_max3_u32 v{TMP['pp']}, v{TMP['pp']}, {rest[0]}, {rest[1]}"); rest = rest[2:]
        if rest: e(f"v_max_u32 v{TMP['pp']}, v{TMP['pp']}, {rest[0]}")
        e(f"v_cmp_ne_u32 vcc, -1, v{TMP['pp']}")
        e("s_and_b64 exec, vcc, s[76:77]")
        for i in range(nreg): e(f"v_mov_b32 v{final+i}, v{base+i}")
        e("s_andn2_b64 s[76:77], s[76:77], exec")
        e(f"s_cbranch_scc0 {ld}")
    e("s_mov_b64 s[76:77], -1")
    ls, lf, l1 = uid("Lsl"), uid("Lfa"), uid("L1")
    if pre is not None:
        e("s_mov_b64 s[78:79], -1")
        issue(sets[0])
        pre()
        e(f"s_branch {l1}")
    lab(ls)
    e("s_mov_b64 exec, s[76:77]")
    e("s_mov_b64 s[78:79], s[76:77]")
    issue(sets[0])
    lab(l1)
    e("s_waitcnt vmcnt(0)")
    check(sets[0], "s[78:79]")
    e("s_bcnt1_i32_b64 s55, s[76:77]")
    e(f"s_cmp_le_u32 s55, {slow_thresh}")
    e(f"s_cbranch_scc1 {lf}")
    budget_check()
    if slow_sleep: e(f"s_sleep {slow_sleep}")
    e(f"s_branch {ls}")
    lab(lf)
    for k in range(N - 1):
        e("s_mov_b64 exec, s[76:77]")
        e(f"s_mov_b64 s[{78+2*k}:{79+2*k}], s[76:77]")
        issue(sets[k])
        if P["pgap"]: e(f"s_sleep {P['pgap']}")
    lp = uid("Lp")
    lab(lp)
    for k in range(N):
        kk = (k + N - 1) % N
        e("s_mov_b64 exec, s[76:77]")
        e(f"s_mov_b64 s[{78+2*kk}:{79+2*kk}], s[76:77]")
        issue(sets[kk])
        e(f"s_waitcnt vmcnt({(N-1)*nload})")
        check(sets[k], f"s[{78+2*k}:{79+2*k}]")
    budget_check()
    e(f"s_branch {lp}")
    lab(ld)
    e("s_mov_b64 exec, -1")

def perms_block(src, dst, plist=range(4)):
    for p in plist:
        for jj in range(4):
            a = src + 4 * (2 * p) + jj
            b = src + 4 * (2 * p + 1) + jj
            e(f"v_perm_b32 v{dst + 4*(2*jj) + p}, v{b}, v{a}, {S_SELLO}")
            e(f"v_perm_b32 v{dst + 4*(2*jj+1) + p}, v{b}, v{a}, {S_SELHI}")


def wo_addr(vreg):
    e("s_lshl_b32 s62, s26, 9")
    e("s_and_b32 s63, s31, 1")
    e("s_lshl_b32 s63, s63, 6")
    e("s_add_u32 s62, s62, s63")
    e("s_lshl_b32 s63, s53, 1")
    e("s_add_u32 s62, s62, s63")
    e("s_lshr_b32 s63, s31, 1")
    e("s_add_u32 s62, s62, s63")
    e("s_lshl_b32 s62, s62, 10")
    e("s_lshl_b32 s63, s54, 8")
    e("s_add_u32 s62, s62, s63")
    e(f"v_lshlrev_b32 {vreg}, 14, {V_G}")
    e(f"v_lshl_add_u32 {vreg}, {V_C}, 4, {vreg}")
def rp_addr(vreg):
    e("s_and_b32 s58, s31, 1")
    e("s_lshl_b32 s59, s4, 1")
    e("s_add_u32 s59, s59, s58")
    e("s_lshl_b32 s60, s59, 18")
    e("s_lshl_b32 s59, s54, 16")
    e("s_add_u32 s60, s60, s59")
    e("s_lshl_b32 s59, s26, 2")
    e("s_add_u32 s59, s59, s53")
    e("s_lshl_b32 s59, s59, 7")
    e("s_add_u32 s60, s60, s59")
    e("s_lshr_b32 s59, s31, 1")
    e("s_lshl_b32 s59, s59, 6")
    e("s_add_u32 s60, s60, s59")
    e(f"s_add_u32 s60, s60, {WS_RP}")
    e(f"v_lshlrev_b32 {vreg}, 12, {V_C}")
    e(f"v_lshl_add_u32 {vreg}, {V_G}, 4, {vreg}")
def op_addr():
    e("v_and_b32 v9, 7, v0")
    e("v_lshlrev_b32 v9, 11, v9")
    e(f"v_lshrrev_b32 v10, 3, {V_C}")
    e("v_lshl_add_u32 v9, v10, 10, v9")
    e(f"v_lshl_add_u32 v9, {V_G}, 4, v9")
    e("s_lshl_b32 s58, s30, 14")
    e("s_lshl_b32 s59, s53, 8")
    e("s_add_u32 s58, s58, s59")
    e("s_lshl_b32 s59, s31, 6")
    e("s_add_u32 s58, s58, s59")
    e(f"s_add_u32 s58, s58, {WS_OP}")
def stage2(WO, FO, DO, vrp, nwait):
    def wo_perms():
        e(f"s_waitcnt vmcnt({nwait})")
        perms_block(WO, FO)
        stamp_if_role(0, 14)
    pipe_poll(1, lambda b: e(f"buffer_load_dwordx4 v[{b}:{b+3}], v9, {SRD_WS}, s58 offen sc1"),
              16, [32 + 4*k for k in range(P["pipe"])], P["othr"], P["osleep"], pre=wo_perms)
    stamp_if_role(0, 15)
    e("s_nop 3")
    for j in range(8):
        e(f"v_mfma_f32_16x16x32_bf16 v[{DO+4*j}:{DO+4*j+3}], v[16:19], v[{FO+4*j}:{FO+4*j+3}], 0")
    e("s_lshl_b32 s55, s31, 13")
    e(f"v_add_u32 v7, s55, {V_L16}")
    e("s_lshr_b32 s55, s31, 1")
    e("s_lshl_b32 s55, s55, 12")
    e("s_and_b32 s56, s31, 1")
    e("s_lshl_b32 s56, s56, 8")
    e("s_add_u32 s55, s55, s56")
    e(f"v_lshlrev_b32 v8, 10, {V_G}")
    e(f"v_lshl_add_u32 v8, {V_C}, 4, v8")
    e("v_add_u32 v8, s55, v8")
    for j in range(8):
        e(f"ds_write_b128 v7, v[{DO+4*j}:{DO+4*j+3}] offset:{j*1024}")
    e("s_waitcnt lgkmcnt(0)")
    e("s_barrier")
    for k in range(8):
        a, sp = k >> 1, k & 1
        e(f"ds_read_b128 v[{64+4*k}:{67+4*k}], v8 offset:{a*8192 + sp*512}")
    e("s_waitcnt lgkmcnt(6)")
    for r in range(4): e(f"v_add_f32 v{64+r}, v{64+r}, v{68+r}")
    e("s_waitcnt lgkmcnt(4)")
    for r in range(4): e(f"v_add_f32 v{72+r}, v{72+r}, v{76+r}")
    e("s_waitcnt lgkmcnt(2)")
    for r in range(4): e(f"v_add_f32 v{80+r}, v{80+r}, v{84+r}")
    for r in range(4): e(f"v_add_f32 v{64+r}, v{64+r}, v{72+r}")
    e("s_waitcnt lgkmcnt(0)")
    for r in range(4): e(f"v_add_f32 v{88+r}, v{88+r}, v{92+r}")
    for r in range(4): e(f"v_add_f32 v{80+r}, v{80+r}, v{88+r}")
    for r in range(4): e(f"v_add_f32 v{64+r}, v{64+r}, v{80+r}")
    for r in range(4): e(f"v_min_u32 v{64+r}, -2, v{64+r}")
    e(f"buffer_store_dwordx4 v[64:67], {vrp}, {SRD_WS}, s60 offen sc1")
    stamp_if_role(0, 16)

hdr = f"""; fused sliding-window GQA decode attention (two branches), one persistent launch of 256 workgroups
; @launch grid=(256,1,1) block=(512,1,1) lds={LDS_BYTES}
.amdgcn_target "amdgcn-amd-amdhsa--gfx950"
.text
.globl {NAME}_kernel
.p2align 8
.type {NAME}_kernel,@function
{NAME}_kernel:"""

e("s_cmp_ge_u32 s2, 256")
e("s_cbranch_scc1 L_end")
for _ in range(P["padtop"]): e("s_nop 0")
if NST or P["dspan"] or P["dclk"]: e("s_memrealtime s[70:71]")
if P["dclk"]: e("s_memtime s[86:87]")
if NST: e(f"s_mul_i32 s68, s2, {NST*8}")
if P["remap"] == 1:
    e("s_and_b32 s4, s2, 7")
    e("s_lshl_b32 s4, s4, 5")
    e("s_bfe_u32 s5, s2, 0x10003")
    e("s_lshl_b32 s5, s5, 4")
    e("s_lshr_b32 s2, s2, 4")
    e("s_or_b32 s2, s2, s4")
    e("s_or_b32 s2, s2, s5")
e("s_lshr_b32 s4, s2, 7")
e("s_mul_i32 s5, s4, 40")
e("s_add_u32 s6, s0, s5")
e("s_addc_u32 s7, s1, 0")
def common_late():
    e("s_and_b32 s29, s2, 15")
    e("s_lshr_b32 s30, s2, 4")
    e("s_lshr_b32 s53, s29, 2")
    e("s_and_b32 s54, s29, 3")
    e("s_mov_b32 s48, 0x05040100")
    e("s_mov_b32 s49, 0x07060302")
    e(f"s_mov_b32 s52, {P['budget']}")
    e(f"v_mov_b32 {V_CF}, {L_CF}")
    e(f"v_mov_b32 {V_ONE}, 1")
    e(f"v_lshlrev_b32 {V_L16}, 4, v0")
    e("s_lshl_b32 s55, s31, 2")
    e(f"v_add_u32 v6, s55, {V_CF}")
    e(f"s_mov_b32 s42, {WS_SIZE}"); e("s_mov_b32 s43, 0x20000")
    if NST:
        e(f"s_add_u32 s72, s40, {STAMPOFF}")
        e("s_addc_u32 s73, s41, 0")
        e(f"s_mov_b32 s74, {256*NST*8}")
        e("s_mov_b32 s75, 0x20000")
if P["fastpro"]:
    e("s_load_dwordx4 s[8:11], s[6:7], 8")
    e("s_load_dwordx4 s[12:15], s[6:7], 24")
    e("v_lshrrev_b32 v1, 6, v0")
    e("v_and_b32 v0, 63, v0")
    e("s_bfe_u32 s26, s2, 0x30004")
    e("v_readfirstlane_b32 s3, v1")
    e("s_bfe_u32 s27, s2, 0x30001")
    e("s_and_b32 s28, s2, 1")
    e(f"v_lshrrev_b32 {V_G}, 4, v0")
    e(f"v_and_b32 {V_C}, 15, v0")
    e("s_and_b32 s31, s3, 3")
    e("s_cmp_lt_u32 s3, 4")
    e("s_cbranch_scc1 L_aux")
else:
    e("s_load_dwordx8 s[8:15], s[6:7], 0")
    e("s_load_dwordx2 s[16:17], s[6:7], 32")
    e("s_load_dwordx4 s[20:23], s[0:1], 80")
    e("s_load_dwordx2 s[24:25], s[0:1], 96")
    if P["cwarm"] >= 10:
        e("s_getpc_b64 s[56:57]")
        lab("L_pc")
        e(f"s_sub_u32 s56, s56, L_pc - {NAME}_kernel")
        e("s_subb_u32 s57, s57, 0")
        e("v_lshlrev_b32 v8, 6, v0")
        e(f"v_cmp_gt_u32 vcc, L_code_end - {NAME}_kernel, v8")
        e("s_and_saveexec_b64 s[58:59], vcc")
        lct = uid("Lct")
        e(f"s_cbranch_execz {lct}")
        e("global_load_dword v15, v8, s[56:57]")
        lab(lct)
        e("s_mov_b64 exec, -1")
    e("v_lshrrev_b32 v1, 6, v0")
    e("v_and_b32 v0, 63, v0")
    e("s_bfe_u32 s26, s2, 0x30004")
    e("v_readfirstlane_b32 s3, v1")
    e("s_bfe_u32 s27, s2, 0x30001")
    e("s_and_b32 s28, s2, 1")
    e("s_and_b32 s29, s2, 15")
    e("s_lshr_b32 s30, s2, 4")
    e("s_lshr_b32 s53, s29, 2")
    e("s_and_b32 s54, s29, 3")
    e("s_and_b32 s31, s3, 3")
    e("s_mov_b32 s48, 0x05040100")
    e("s_mov_b32 s49, 0x07060302")
    e(f"s_mov_b32 s52, {P['budget']}")
    e(f"v_mov_b32 {V_CF}, {L_CF}")
    e(f"v_lshrrev_b32 {V_G}, 4, v0")
    e(f"v_and_b32 {V_C}, 15, v0")
    e(f"v_mov_b32 {V_ONE}, 1")
    e(f"v_lshlrev_b32 {V_L16}, 4, v0")
    e("s_lshl_b32 s55, s31, 2")
    e(f"v_add_u32 v6, s55, {V_CF}")
    e("s_waitcnt lgkmcnt(0)")
    e("s_mov_b32 s40, s24"); e("s_mov_b32 s41, s25"); e(f"s_mov_b32 s42, {WS_SIZE}"); e("s_mov_b32 s43, 0x20000")
    if NST:
        e(f"s_add_u32 s72, s24, {STAMPOFF}")
        e("s_addc_u32 s73, s25, 0")
        e(f"s_mov_b32 s74, {256*NST*8}")
        e("s_mov_b32 s75, 0x20000")
    e("s_cmp_lt_u32 s3, 4")
    e("s_cbranch_scc1 L_aux")


if P["s2bulk"]: TMP.update(st=12, w=8, pp=11)
NWO = 8 if P["s2bulk"] else 0
WOB = 224
VB = 64
FB = 192
AC = 16
PB = 48
if P["fastpro"]:
    e("s_load_dwordx2 s[40:41], s[0:1], 96")
    e("s_mov_b32 s34, 0x4000000"); e("s_mov_b32 s35, 0x20000")
else:
    e("s_mov_b32 s32, s10"); e("s_mov_b32 s33, s11"); e("s_mov_b32 s34, 0x4000000"); e("s_mov_b32 s35, 0x20000")
    e("s_mov_b32 s36, s12"); e("s_mov_b32 s37, s13"); e("s_mov_b32 s38, 0x4000000"); e("s_mov_b32 s39, 0x20000")
e("s_lshl_b32 s56, s27, 23")
e("s_lshl_b32 s57, s26, 20")
e("s_add_u32 s56, s56, s57")
e("s_lshl_b32 s57, s28, 17")
e("s_add_u32 s56, s56, s57")
e("s_lshl_b32 s57, s31, 15")
if P["ilv"]:
    e("s_lshl_b32 s58, s31, 10")
    e("s_add_u32 s56, s56, s58")
else:
    e("s_add_u32 s56, s56, s57")
e(f"s_add_u32 s56, s56, {3072*256}")
e(f"v_lshlrev_b32 v12, 2, {V_G}")
e(f"v_lshlrev_b32 v13, 8, {V_G}")
for ii in range(4):
    e(f"v_add_u32 v14, {ii}, v12")
    e(f"v_xor_b32 v14, v14, {V_C}") if not P["noswz"] else e(f"v_mov_b32 v14, {V_C}")
    e(f"v_lshl_add_u32 v{8+ii}, v14, 4, v13")
PACE = P["pace"]
n_issued = 0
def pre_issue():
    global n_issued
    if n_issued == min(PACE, 8) if PACE else n_issued == 8:
        if P["fastpro"]:
            common_late()
            e("s_mov_b32 s36, s10"); e("s_mov_b32 s37, s11")
            e("s_mov_b32 s38, 0x4000000"); e("s_mov_b32 s39, 0x20000")
            if P["s2bulk"]: e("s_mov_b32 s16, s14"); e("s_mov_b32 s17, s15")
            if P["vwarm"]:
                e("v_lshlrev_b32 v15, 12, v0")
                e(f"s_mov_b64 exec, {(1 << P['vwarm']) - 1}")
                e(f"buffer_load_dword v15, v15, {SRD_B}, s56 offen nt")
                e("s_mov_b64 exec, -1")
        if not P["b0at"]: e("s_barrier")
        if NST and (P["smask"] >> 20) & 1:
            e(f"s_waitcnt vmcnt({n_issued - 1})")
            stamp_if_role(0, 20)
    pc = PACE if n_issued < P["psw"] else P["pace2"]
    if pc and n_issued >= pc:
        e(f"s_waitcnt vmcnt({pc-1})")
    if P["b0at"] and n_issued == P["b0at"]: e("s_barrier")
    n_issued += 1
kl_done = False
e(f"s_mul_i32 s61, s2, {P['rmul']}")
if not P["ilv"]:
    e("s_lshl_b32 s62, s31, 3")
    e("s_add_u32 s61, s61, s62")
CSH = 12 if P["ilv"] else 10
e(f"s_lshl_b32 s61, s61, {CSH}")
if P["warm"] and not P["fastpro"]:
    e("v_mov_b32 v15, 0")
    e(f"buffer_load_dword v15, v15, {SRD_B}, s56 offen")
if P["fastpro"]:
    e("s_waitcnt lgkmcnt(0)")
    e("s_mov_b32 s32, s8"); e("s_mov_b32 s33, s9")
def rotaddr(n):
    e(f"s_add_u32 s58, s61, {n << CSH}")
    e(f"s_and_b32 s58, s58, {31 << CSH}")
    e("s_add_u32 s58, s58, s56")
for n in range(32):
    e(f"s_add_u32 m0, s57, {n*1024}")
    rotaddr(n)
    pre_issue()
    e(f"buffer_load_dwordx4 v{8+(n&3)}, {SRD_A}, s58 offen{pol} lds")
for n in range(32):
    rotaddr(n)
    pre_issue()
    pc = PACE if (n_issued - 1) < P["psw"] else P["pace2"]
    if pc and not kl_done and (n_issued - 1) - pc >= 31:
        lds_set("v6", CF_KL)
        kl_done = True
        stamp_if_role(0, 8)
    r = VB + 4 * n
    e(f"buffer_load_dwordx4 v[{r}:{r+3}], {V_L16}, {SRD_B}, s58 offen{pol}")
if P["wolate"] != 3: lds_set("v6", CF_VI)
if not kl_done:
    e("s_waitcnt vmcnt(32)")
    lds_set("v6", CF_KL)
if P["s2bulk"]:
    e("s_mov_b32 s32, s16"); e("s_mov_b32 s33, s17"); e("s_mov_b32 s34, 0x400000"); e("s_mov_b32 s35, 0x20000")
    wo_addr("v7")
    for i in range(8):
        dd, h = i >> 2, i & 3
        e(f"s_add_u32 s63, s62, {(h*128 + 8*dd)*1024}")
        if P["wopace"]: pre_issue()
        e(f"buffer_load_dwordx4 v[{WOB+4*i}:{WOB+4*i+3}], v7, {SRD_A}, s63 offen{wpol}")
nst_extra = 0
if NST:
    stamp_if_role(0, 9)
if not P["dbg"]: lds_wait1("v6", CF_P)
stamp_if_role(0, 10)
e("s_lshl_b32 s55, s31, 12")
e(f"v_add_u32 v7, s55, {V_L16}")
e(f"v_add_u32 v7, {L_PL}, v7")
for T in range(4):
    e(f"ds_read_b128 v[{PB+4*T}:{PB+4*T+3}], v7 offset:{T*1024}")
for T in range(4):
    src = VB + 32 * T
    if T < 3:
        e(f"s_waitcnt vmcnt({24 - 8*T + NWO})")
        if P["wolate"] == 3 and P["wothr"] == 24 - 8*T: lds_set("v6", CF_VI)
        perms_block(src, FB)
    else:
        for p in range(4):
            e(f"s_waitcnt vmcnt({6 - 2*p + NWO})")
            if P["wolate"] == 3 and P["wothr"] == 6 - 2*p: lds_set("v6", CF_VI)
            perms_block(src, FB, [p])
    if T == 0: e("s_waitcnt lgkmcnt(0)")
    e("s_nop 1")
    for j in range(8):
        c = "0" if T == 0 else f"v[{AC+4*j}:{AC+4*j+3}]"
        e(f"v_mfma_f32_16x16x32_bf16 v[{AC+4*j}:{AC+4*j+3}], v[{PB+4*T}:{PB+4*T+3}], v[{FB+4*j}:{FB+4*j+3}], {c}")
stamp_if_role(0, 11)
if P["dbg"]: e("s_branch L_end")
e("s_lshl_b32 s55, s31, 11")
e(f"v_add_u32 v7, s55, {V_L16}")
e(f"v_add_u32 v7, {L_OR}, v7")
e("s_mov_b64 exec, 0xffff")
e("s_nop 4")
for j in range(8):
    e(f"ds_write_b128 v7, v[{AC+4*j}:{AC+4*j+3}] offset:{j*256}")
e("s_mov_b64 exec, -1")
e("s_waitcnt lgkmcnt(0)")
e("s_barrier")
e("s_cmp_ge_u32 s31, 2")
e("s_cbranch_scc1 L_end" if not P["s2bulk"] else "s_cbranch_scc1 L_s2x")
e("s_lshl_b32 s55, s31, 10")
e(f"v_add_u32 v7, s55, {V_L16}")
e(f"v_add_u32 v8, {L_OR}, v7")
e(f"v_mov_b32 v9, {L_FW}")
for w in range(4):
    e(f"ds_read_b128 v[{16+4*w}:{19+4*w}], v8 offset:{w*2048}")
    e(f"ds_read_b128 v[{32+4*w}:{35+4*w}], v9 offset:{w*16}")
e("s_lshl_b32 s55, s2, 10")
e(f"s_add_u32 s55, s55, {WS_OP}")
e("v_lshrrev_b32 v7, 1, v7")
e("s_waitcnt lgkmcnt(6)")
for h in range(4): e(f"v_mul_f32 v{48+h}, v{16+h}, v{32+h}")
for w in range(1, 4):
    e(f"s_waitcnt lgkmcnt({6-2*w})")
    for h in range(4): e(f"v_fmac_f32 v{48+h}, v{16+4*w+h}, v{32+4*w+h}")
e("v_cvt_pk_bf16_f32 v48, v48, v49")
e("v_cvt_pk_bf16_f32 v49, v50, v51")
e("v_min_u32 v48, -2, v48")
e("v_min_u32 v49, -2, v49")
e(f"buffer_store_dwordx2 v[48:49], v7, {SRD_WS}, s55 offen sc1")
stamp_if_role(0, 12)
if P["s2bulk"]:
    e("s_branch L_s2")
    lab("L_s2x")
    e("v_mov_b32 v14, 0")
    e(f"buffer_load_dword v14, v14, {SRD_WS}, 0 offen")
    lab("L_s2")
    rp_addr("v15")
    op_addr()
    stage2(WOB, FB, 128, "v15", 2)
    TMP.update(st=250, w=244, pp=248)
e("s_branch L_end")

lab("L_aux")
e("s_setprio 3")
if P["fastpro"]:
    e("s_load_dwordx2 s[44:45], s[6:7], 0")
    e("s_load_dwordx2 s[40:41], s[0:1], 96")
    e("s_load_dwordx4 s[20:23], s[0:1], 80")
    if P["b0early"]:
        e("v_mov_b32 v10, 0")
        e(f"v_mov_b32 v13, {L_CF}")
        e("v_lshl_add_u32 v13, v0, 2, v13")
        e("ds_write_b32 v13, v10")
else:
    stamp_if_role(0, 19)
if 0 < P["cwarm"] < 10:
    lcw = uid("Lcw")
    e(f"s_cmp_lg_u32 s31, {P['cwarm'] - 1}")
    e(f"s_cbranch_scc1 {lcw}")
    e("s_getpc_b64 s[56:57]")
    lab("L_pc")
    e(f"s_sub_u32 s56, s56, L_pc - {NAME}_kernel")
    e("s_subb_u32 s57, s57, 0")
    e("v_lshlrev_b32 v8, 7, v0")
    e(f"v_cmp_gt_u32 vcc, L_code_end - {NAME}_kernel, v8")
    e("s_and_saveexec_b64 s[58:59], vcc")
    e("global_load_dword v242, v8, s[56:57]")
    e("v_add_u32 v8, 8192, v8")
    e(f"v_cmp_gt_u32 vcc, L_code_end - {NAME}_kernel, v8")
    e("s_and_b64 exec, exec, vcc")
    lc2 = uid("Lcw")
    e(f"s_cbranch_execz {lc2}")
    e("global_load_dword v243, v8, s[56:57]")
    e("v_add_u32 v8, 8192, v8")
    e(f"v_cmp_gt_u32 vcc, L_code_end - {NAME}_kernel, v8")
    e("s_and_b64 exec, exec, vcc")
    e(f"s_cbranch_execz {lc2}")
    e("global_load_dword v239, v8, s[56:57]")
    lab(lc2)
    e("s_mov_b64 exec, -1")
    lab(lcw)
WQ = 64
FQ = 96
DQ = 128
XF = 16
if P["fastpro"]:
    e("s_mov_b32 s34, 0x400000"); e("s_mov_b32 s35, 0x20000")
else:
    e("s_mov_b32 s32, s14"); e("s_mov_b32 s33, s15"); e("s_mov_b32 s34, 0x400000"); e("s_mov_b32 s35, 0x20000")
    e("s_mov_b32 s36, s16"); e("s_mov_b32 s37, s17"); e("s_mov_b32 s38, 0x400000"); e("s_mov_b32 s39, 0x20000")
    e("s_mov_b32 s44, s8"); e("s_mov_b32 s45, s9"); e("s_mov_b32 s46, 8192"); e("s_mov_b32 s47, 0x20000")
e("s_lshl_b32 s56, s28, 8")
e("s_lshl_b32 s57, s31, 6")
e("s_add_u32 s56, s56, s57")
e("s_lshl_b32 s57, s56, 13")
e("s_lshl_b32 s58, s26, 10")
e("s_add_u32 s57, s57, s58")
e("s_lshl_b32 s58, s27, 7")
e("s_add_u32 s57, s57, s58")
e(f"v_lshrrev_b32 v10, 3, {V_C}")
e("v_and_b32 v11, 7, v0")
e(f"v_lshlrev_b32 v8, 16, {V_G}")
e("v_lshl_add_u32 v8, v10, 18, v8")
e("v_lshl_add_u32 v8, v11, 4, v8")
if P["fastpro"]:
    e("s_waitcnt lgkmcnt(0)")
    e("s_mov_b32 s32, s12"); e("s_mov_b32 s33, s13")
for i in range(8):
    e(f"s_add_u32 s58, s57, {i*8192}")
    e(f"buffer_load_dwordx4 v[{WQ+4*i}:{WQ+4*i+3}], v8, {SRD_A}, s58 offen{wpol}")
if P["fastpro"]:
    if P["b0early"]: e("s_barrier")
    common_late()
    e("s_mov_b32 s36, s14"); e("s_mov_b32 s37, s15")
    e("s_mov_b32 s38, 0x400000"); e("s_mov_b32 s39, 0x20000")
    e("s_mov_b32 s46, 8192"); e("s_mov_b32 s47, 0x20000")
e("v_lshlrev_b32 v9, 10, v11")
e(f"v_lshl_add_u32 v9, {V_G}, 4, v9")
e("v_lshl_add_u32 v9, v10, 6, v9")
e("s_lshl_b32 s58, s56, 1")
e(f"buffer_load_dwordx4 v[{XF}:{XF+3}], v9, {SRD_X}, s58 offen")
e("s_lshl_b32 s58, s4, 7")
e("v_mov_b32 v10, 0")
e(f"buffer_load_dwordx2 v[20:21], v10, {SRD_WS}, s58 offen sc1")
e("v_mov_b32 v24, -1"); e("v_mov_b32 v25, -1"); e("v_mov_b32 v26, -1"); e("v_mov_b32 v27, -1")
B0E = P["b0early"] and P["fastpro"]
if not B0E:
    lz = uid("Lz")
    e("s_cmp_lg_u32 s31, 0")
    e(f"s_cbranch_scc1 {lz}")
    e(f"v_lshl_add_u32 v13, v0, 2, {V_CF}")
    e("ds_write_b32 v13, v10")
    e("s_waitcnt lgkmcnt(0)")
    lab(lz)
e("s_and_b32 s58, s31, 1")
e("s_lshl_b32 s59, s4, 1")
e("s_add_u32 s59, s59, s58")
e("s_lshl_b32 s60, s59, 18")
e("s_lshl_b32 s59, s54, 16")
e("s_add_u32 s60, s60, s59")
e("s_lshl_b32 s59, s26, 2")
e("s_add_u32 s59, s59, s53")
e("s_lshl_b32 s59, s59, 7")
e("s_add_u32 s60, s60, s59")
e("s_lshr_b32 s59, s31, 1")
e("s_lshl_b32 s59, s59, 6")
e("s_add_u32 s60, s60, s59")
e(f"s_add_u32 s60, s60, {WS_RP}")
e(f"v_lshlrev_b32 v12, 12, {V_C}")
e(f"v_lshl_add_u32 v12, {V_G}, 4, v12")
if P["noclr"]: e("s_mov_b64 exec, 1")
e(f"buffer_store_dwordx4 v[24:27], v12, {SRD_WS}, s60 offen sc1")
e("s_lshl_b32 s58, s2, 10")
e("s_lshl_b32 s59, s31, 8")
e("s_add_u32 s58, s58, s59")
e(f"s_add_u32 s58, s58, {WS_OP}")
e("s_mov_b64 exec, 0xffff" if not P["noclr"] else "s_mov_b64 exec, 1")
e(f"buffer_store_dwordx4 v[24:27], {V_L16}, {SRD_WS}, s58 offen sc1")
e("s_mov_b64 exec, -1")
if P["warm"]:
    e("s_lshl_b32 s58, s26, 19")
    e("s_lshl_b32 s59, s31, 17")
    e("s_add_u32 s58, s58, s59")
    if P["wowarm"]:
        e("v_lshlrev_b32 v240, 12, v0")
        e(f"s_mov_b64 exec, {(1 << P['wowarm']) - 1}")
        e(f"buffer_load_dword v240, v240, {SRD_B}, s58 offen nt")
        e("s_mov_b64 exec, -1")
    else:
        e(f"buffer_load_dword v240, v10, {SRD_B}, s58 offen")
    e("s_mov_b32 s80, s20"); e("s_mov_b32 s81, s21"); e("s_mov_b32 s82, 16384"); e("s_mov_b32 s83, 0x20000")
    e("buffer_load_dword v241, v10, s[80:83], 0 offen")
if not B0E: e("s_barrier")
if NST:
    l = uid("Lst")
    e("s_cmp_lg_u32 s31, 0")
    e(f"s_cbranch_scc1 {l}")
    e("v_mov_b32 v250, s70"); e("v_mov_b32 v251, s71"); e("v_mov_b32 v252, 0")
    e("s_mov_b64 exec, 1")
    e("buffer_store_dwordx2 v[250:251], v252, s[72:75], s68 offen")
    e("s_mov_b64 exec, -1")
    e(f"s_waitcnt vmcnt({3+NW_})")
    lab(l)
e(f"s_waitcnt vmcnt({2+NW_})" if not NST else f"s_waitcnt vmcnt({3+NW_})")
if NST:
    l = uid("Lst")
    e("s_cmp_eq_u32 s31, 0")
    e(f"s_cbranch_scc1 {l}")
    e(f"s_waitcnt vmcnt({2+NW_})")
    lab(l)
stamp_if_role(0, 1)
if P["dbg"] == 1: e("s_branch L_end")
for _ in range(P["padp"]): e("s_nop 0")
perms_block(WQ, FQ)
e("v_readfirstlane_b32 s50, v20")
e("v_readfirstlane_b32 s51, v21")
for j in range(8):
    e(f"v_mfma_f32_16x16x32_bf16 v[{DQ+4*j}:{DQ+4*j+3}], v[{XF}:{XF+3}], v[{FQ+4*j}:{FQ+4*j+3}], 0")
e("s_add_u32 s50, s50, 1")
e("s_addc_u32 s51, s51, 0")
e("s_lshl_b32 s55, s31, 12")
e(f"s_add_u32 s55, s55, {L_QR}")
e(f"v_lshlrev_b32 v7, 7, {V_G}")
e("v_lshl_add_u32 v7, v11, 4, v7")
e("v_add_u32 v7, s55, v7")
e("s_mov_b32 exec_lo, 0x00ff00ff")
e("s_mov_b32 exec_hi, 0xff00ff00")
e("s_nop 1")
for j in range(8):
    e(f"ds_write_b128 v7, v[{DQ+4*j}:{DQ+4*j+3}] offset:{j*512}")
e("s_mov_b64 exec, -1")
e("s_waitcnt lgkmcnt(0)")
lds_set("v6", CF_QR)
e("s_lshl_b32 s55, s31, 10")
e(f"s_add_u32 s55, s55, {L_QR}")
e("v_lshlrev_b32 v7, 2, v0")
e("v_add_u32 v7, s55, v7")
e("v_and_b32 v8, 3, v0")
e("v_lshlrev_b32 v8, 13, v8")
e("v_lshrrev_b32 v9, 5, v0")
e("v_lshl_add_u32 v8, v9, 15, v8")
e("v_bfe_u32 v9, v0, 2, 3")
e("v_lshl_add_u32 v8, v9, 4, v8")
e("s_lshl_b32 s59, s30, 16")
e("s_lshl_b32 s61, s28, 12")
e("s_add_u32 s59, s59, s61")
e("s_lshl_b32 s61, s27, 9")
e("s_add_u32 s59, s59, s61")
e("s_lshl_b32 s61, s31, 7")
e("s_add_u32 s59, s59, s61")
e(f"s_add_u32 s59, s59, {WS_QP}")
e("v_mov_b32 v66, s50")
e("v_mov_b32 v67, s51")
lds_wait4(CF_QR)
for k in range(8):
    a_, s_ = k >> 1, k & 1
    e(f"ds_read2st64_b32 v[{68+2*k}:{69+2*k}], v7 offset0:{16*a_+s_} offset1:{16*a_+s_+2}")
e("s_waitcnt lgkmcnt(0)")
for k in range(4):
    e(f"v_add_f32 v{68+4*k}, v{68+4*k}, v{70+4*k}")
    e(f"v_add_f32 v{69+4*k}, v{69+4*k}, v{71+4*k}")
e("v_add_f32 v68, v68, v72"); e("v_add_f32 v69, v69, v73")
e("v_add_f32 v76, v76, v80"); e("v_add_f32 v77, v77, v81")
e("v_add_f32 v64, v68, v76"); e("v_add_f32 v65, v69, v77")
e(f"buffer_store_dwordx4 v[64:67], v8, {SRD_WS}, s59 offen sc1")
stamp_if_role(0, 2)
if P["dbg"] == 2: e("s_branch L_end")
e("s_lshl_b32 s58, s30, 16")
e("s_lshl_b32 s59, s27, 13")
e("s_add_u32 s58, s58, s59")
e("s_lshl_b32 s59, s31, 10")
e("s_add_u32 s58, s58, s59")
e(f"s_add_u32 s58, s58, {WS_QP}")
e("s_add_u32 s59, s58, 4096")
e("v_lshrrev_b32 v8, 5, v0")
e("v_lshlrev_b32 v8, 7, v8")
e("v_lshl_add_u32 v8, v11, 4, v8")
e("v_bfe_u32 v9, v0, 3, 2")
e("v_lshl_add_u32 v8, v9, 2, v8")
e("s_lshl_b32 s55, s31, 8")
e(f"s_add_u32 s55, s55, {L_QL}")
e("v_add_u32 v8, s55, v8")
if P["qdelay"]: e(f"s_sleep {P['qdelay']}")
if P["qprobe"]:
    e("v_and_b32 v9, 1, v0")
    e("v_lshlrev_b32 v9, 9, v9")
    e("v_lshrrev_b32 v10, 1, v0")
    e("v_lshl_add_u32 v9, v10, 12, v9")
    e("s_mov_b64 exec, 0xf")
    lp, ld = uid("Lp"), uid("Ld")
    lab(lp)
    e(f"buffer_load_dwordx4 v[68:71], v9, {SRD_WS}, s58 offen offset:496 sc1")
    e("s_waitcnt vmcnt(0)")
    e("v_cmp_ne_u64 vcc, v[70:71], v[66:67]")
    e("s_mov_b64 exec, vcc")
    e(f"s_cbranch_execz {ld}")
    budget_check()
    e(f"s_sleep {P['qsleep']}")
    e(f"s_branch {lp}")
    lab(ld)
    e("s_mov_b64 exec, -1")
lp, ld = uid("Lp"), uid("Ld")
lab(lp)
e(f"buffer_load_dwordx4 v[68:71], {V_L16}, {SRD_WS}, s58 offen sc1")
e(f"buffer_load_dwordx4 v[72:75], {V_L16}, {SRD_WS}, s59 offen sc1")
e("s_waitcnt vmcnt(0)")
e("v_cmp_ne_u64 vcc, v[70:71], v[66:67]")
e("v_cmp_ne_u64 s[56:57], v[74:75], v[66:67]")
e("s_or_b64 exec, vcc, s[56:57]")
e(f"s_cbranch_execz {ld}")
budget_check()
e(f"s_sleep {P['qsleep']}")
e(f"s_branch {lp}")
lab(ld)
e("s_mov_b64 exec, -1")
e("v_add_f32 v68, v68, v72"); e("v_add_f32 v69, v69, v73")
e("v_cvt_pk_bf16_f32 v68, v68, v69")
e("ds_write_b32 v8, v68")
lds_set("v6", CF_QST)
e("s_waitcnt lgkmcnt(0)")
lds_set("v6", CF_QL)
stamp_if_role(0, 3)
if P["dbg"] == 3: e("s_branch L_end")
lgo = uid("Lgo")
e("s_cmp_lg_u32 s31, 0")
e(f"s_cbranch_scc1 {lgo}")
lds_wait4(CF_QST)
e("s_lshl_b32 s58, s30, 7")
e(f"s_add_u32 s58, s58, {WS_FL}")
e("s_lshl_b32 s59, s29, 3")
e("v_mov_b32 v22, s59")
e("s_mov_b64 exec, 1")
e(f"buffer_store_dwordx2 v[66:67], v22, {SRD_WS}, s58 offen sc1")
e("s_mov_b64 exec, -1")
lab(lgo)
for _ in range(P["padq"]): e("s_nop 0")
e(f"v_and_b32 v8, 3, {V_C}")
e("v_lshlrev_b32 v8, 2, v8")
e(f"v_lshrrev_b32 v9, 2, {V_C}")
e("v_add_u32 v8, v8, v9")
e("v_lshlrev_b32 v8, 8, v8")
e("s_lshl_b32 s55, s31, 15")
e("v_add_u32 v8, s55, v8")
for s in range(4):
    e(f"v_add_u32 v9, {4*s}, {V_G}")
    e(f"v_xor_b32 v9, v9, {V_C}")
    e(f"v_lshl_add_u32 v{28+s}, v9, 4, v8")
e(f"v_and_b32 v9, 3, {V_C}")
e("v_lshlrev_b32 v9, 8, v9")
e(f"v_lshl_add_u32 v9, {V_G}, 4, v9")
e(f"v_add_u32 v9, {L_QL}, v9")
lds_wait4(CF_QL)
stamp_if_role(0, 4)
QF = 32
for s in range(4):
    e(f"ds_read_b128 v[{QF+4*s}:{QF+4*s+3}], v9 offset:{s*64}")
lds_wait1("v6", CF_KL)
stamp_if_role(0, 5)
KF = 64
SC = 128
def kread(t):
    b = KF + 16 * (t & 3)
    for s in range(4):
        e(f"ds_read_b128 v[{b+4*s}:{b+4*s+3}], v{28+s} offset:{t*4096}")
kread(0); kread(1)
for t in range(8):
    if t + 2 < 8:
        kread(t + 2)
        e("s_waitcnt lgkmcnt(8)")
    else:
        e(f"s_waitcnt lgkmcnt({4*(7-t)})")
    b = KF + 16 * (t & 3)
    for s in range(4):
        c = "0" if s == 0 else f"v[{SC+4*t}:{SC+4*t+3}]"
        e(f"v_mfma_f32_16x16x32_bf16 v[{SC+4*t}:{SC+4*t+3}], v[{b+4*s}:{b+4*s+3}], v[{QF+4*s}:{QF+4*s+3}], {c}")
import math
CSC = (128 ** -0.5) * math.log2(math.e)
import struct
f2u = lambda x: struct.unpack('<I', struct.pack('<f', x))[0]
if P["mimic"]:
    e(f"s_mov_b32 s58, 0x{f2u(math.log2(math.e)):08x}")
    e(f"s_mov_b32 s59, 0x{f2u(128 ** -0.5):08x}")
    e("s_mov_b32 s57, 0xffff0000")
    e("s_nop 6")
    for k in range(16):
        e(f"v_cvt_pk_bf16_f32 v{64+k}, v{SC+2*k}, v{SC+2*k+1}")
    for k in range(16):
        e(f"v_lshlrev_b32 v{SC+2*k}, 16, v{64+k}")
        e(f"v_and_b32 v{SC+2*k+1}, s57, v{64+k}")
    for k in range(32):
        e(f"v_mul_f32 v{SC+k}, s59, v{SC+k}")
    for k in range(16):
        e(f"v_cvt_pk_bf16_f32 v{64+k}, v{SC+2*k}, v{SC+2*k+1}")
    for k in range(16):
        e(f"v_lshlrev_b32 v{SC+2*k}, 16, v{64+k}")
        e(f"v_and_b32 v{SC+2*k+1}, s57, v{64+k}")
else:
    e(f"s_mov_b32 s58, 0x{f2u(CSC):08x}")
    e("s_nop 7")
e(f"v_max3_f32 v10, v{SC}, v{SC+1}, v{SC+2}")
e(f"v_max3_f32 v11, v{SC+3}, v{SC+4}, v{SC+5}")
for k in range(6, 30, 4):
    e(f"v_max3_f32 v10, v10, v{SC+k}, v{SC+k+1}")
    e(f"v_max3_f32 v11, v11, v{SC+k+2}, v{SC+k+3}")
e(f"v_max3_f32 v10, v10, v{SC+30}, v{SC+31}")
e("v_max_f32 v10, v10, v11")
def xlane(op, v, t):
    e(f"v_mov_b32 {t}, {v}")
    e("s_nop 1")
    e(f"v_permlane32_swap_b32 {v}, {t}")
    e("s_nop 1")
    e(f"{op} {v}, {v}, {t}")
    e(f"v_mov_b32 {t}, {v}")
    e("s_nop 1")
    e(f"v_permlane16_swap_b32 {v}, {t}")
    e("s_nop 1")
    e(f"{op} {v}, {v}, {t}")
xlane("v_max_f32", "v10", "v11")
e("v_mul_f32 v10, s58, v10")
e("v_sub_f32 v13, 0, v10")
for k in range(32):
    e(f"v_fma_f32 v{SC+k}, v{SC+k}, s58, v13")
for k in range(32):
    e(f"v_exp_f32 v{SC+k}, v{SC+k}")
e("s_nop 0")
e(f"v_add_f32 v11, v{SC}, v{SC+1}")
e(f"v_add_f32 v14, v{SC+2}, v{SC+3}")
for k in range(4, 32, 2):
    e(f"v_add_f32 v11, v11, v{SC+k}")
    e(f"v_add_f32 v14, v14, v{SC+k+1}")
e("v_add_f32 v11, v11, v14")
for k in range(16):
    e(f"v_cvt_pk_bf16_f32 v{64+k}, v{SC+2*k}, v{SC+2*k+1}")
e("s_lshl_b32 s55, s31, 12")
e(f"v_add_u32 v7, s55, {V_L16}")
e(f"v_add_u32 v7, {L_PL}, v7")
for T in range(4):
    e(f"ds_write_b128 v7, v[{64+4*T}:{67+4*T}] offset:{T*1024}")
xlane("v_add_f32", "v11", "v14")
e("s_lshl_b32 s55, s31, 5")
e(f"s_add_u32 s55, s55, {L_SL}")
e("v_lshlrev_b32 v8, 3, v0")
e("v_add_u32 v8, s55, v8")
e("s_mov_b64 exec, 0xf")
e("ds_write_b64 v8, v[10:11]")
e("s_mov_b64 exec, -1")
e("s_waitcnt lgkmcnt(0)")
lds_set("v6", CF_P)
lds_set("v6", CF_SL)
stamp_if_role(0, 6)
if P["dbg"] == 4: e("s_branch L_end")
ls3, ls0, lsd = uid("Ls"), uid("Ls"), uid("Ls")
e("s_cmp_eq_u32 s31, 0")
e(f"s_cbranch_scc1 {ls0}")
e("s_cmp_lg_u32 s31, 3")
e(f"s_cbranch_scc1 {lsd}")
lds_wait4(CF_SL)
e("s_mov_b64 exec, 0xffff")
e("v_lshlrev_b32 v8, 3, v0")
e(f"v_add_u32 v8, {L_SL}, v8")
e("ds_read_b64 v[10:11], v8")
e("s_waitcnt lgkmcnt(0)")
e("v_max_f32_dpp v13, v10, v10 row_ror:4 row_mask:0xf bank_mask:0xf")
e("s_nop 1")
e("v_max_f32_dpp v13, v13, v13 row_ror:8 row_mask:0xf bank_mask:0xf")
e("v_sub_f32 v14, v10, v13")
e("v_exp_f32 v14, v14")
e("s_nop 0")
e("v_mul_f32 v14, v14, v11")
e("s_nop 1")
e("v_add_f32_dpp v15, v14, v14 row_ror:4 row_mask:0xf bank_mask:0xf")
e("s_nop 1")
e("v_add_f32_dpp v15, v15, v15 row_ror:8 row_mask:0xf bank_mask:0xf")
e("v_mov_b32 v20, v13")
e("v_mov_b32 v21, v15")
e("v_mov_b32 v22, s50")
e("v_mov_b32 v23, s51")
e("v_and_b32 v9, 3, v0")
e("v_lshlrev_b32 v9, 4, v9")
e("s_lshl_b32 s58, s2, 7")
e(f"s_add_u32 s58, s58, {WS_ST}")
e("s_xor_b32 s59, s58, 128")
e("s_mov_b64 exec, 0xf")
e(f"buffer_store_dwordx4 v[20:23], v9, {SRD_WS}, s58 offen sc1")
e("s_mov_b64 exec, 0xffff")
lp, ld = uid("Lp"), uid("Ld")
lab(lp)
e(f"buffer_load_dwordx4 v[24:27], v9, {SRD_WS}, s59 offen sc1")
e("s_waitcnt vmcnt(0)")
e("v_cmp_ne_u64 vcc, v[26:27], v[22:23]")
e(f"s_cbranch_vccz {ld}")
budget_check()
e("s_sleep 2")
e(f"s_branch {lp}")
lab(ld)
e("v_max_f32 v26, v13, v24")
e("v_sub_f32 v27, v13, v26")
e("v_sub_f32 v20, v24, v26")
e("v_sub_f32 v21, v10, v26")
e("v_exp_f32 v27, v27")
e("v_exp_f32 v20, v20")
e("v_exp_f32 v21, v21")
e("s_nop 0")
e("v_mul_f32 v27, v27, v15")
e("v_fmac_f32 v27, v20, v25")
e("v_rcp_f32 v27, v27")
e("s_nop 0")
e("v_mul_f32 v21, v21, v27")
e("v_lshlrev_b32 v8, 2, v0")
e(f"v_add_u32 v8, {L_FW}, v8")
e("ds_write_b32 v8, v21")
e("s_mov_b64 exec, -1")
e("s_waitcnt lgkmcnt(0)")
stamp(7)
e(f"s_branch {lsd}")
lab(ls0)
e("s_lshl_b32 s58, s4, 10")
e(f"s_add_u32 s58, s58, {WS_FL}")
e("v_mov_b32 v20, s50")
e("v_mov_b32 v21, s51")
lp, ld = uid("Lp"), uid("Ld")
lab(lp)
e(f"buffer_load_dwordx4 v[24:27], {V_L16}, {SRD_WS}, s58 offen sc1")
e("s_waitcnt vmcnt(0)")
e("v_cmp_ne_u64 vcc, v[24:25], v[20:21]")
e("v_cmp_ne_u64 s[56:57], v[26:27], v[20:21]")
e("s_or_b64 vcc, vcc, s[56:57]")
e(f"s_cbranch_vccz {ld}")
budget_check()
e("s_sleep 2")
e(f"s_branch {lp}")
lab(ld)
lab(lsd)
if P["s2bulk"]:
    e("s_barrier")
    e("s_cmp_lg_u32 s31, 0")
    e("s_cbranch_scc1 L_end")
    e("s_barrier")
else:
    if P["wolate"] in (1, 3):
        lds_wait1("v6", CF_VI)
    WO = 64; FO = 96; DO = 128
    e("s_lshl_b32 s56, s26, 9")
    e("s_and_b32 s57, s31, 1")
    e("s_lshl_b32 s57, s57, 6")
    e("s_add_u32 s56, s56, s57")
    e("s_lshl_b32 s57, s53, 1")
    e("s_add_u32 s56, s56, s57")
    e("s_lshr_b32 s57, s31, 1")
    e("s_add_u32 s56, s56, s57")
    e("s_lshl_b32 s56, s56, 10")
    e("s_lshl_b32 s57, s54, 8")
    e("s_add_u32 s56, s56, s57")
    e(f"v_lshlrev_b32 v8, 14, {V_G}")
    e(f"v_lshl_add_u32 v8, {V_C}, 4, v8")
    def wo_loads():
        if P["woprio"] != 3: e(f"s_setprio {P['woprio']}")
        for i in range(8):
            dd, h = i >> 2, i & 3
            e(f"s_add_u32 s57, s56, {(h*128 + 8*dd)*1024}")
            if P["wopace"] and i >= P["wopace"]: e(f"s_waitcnt vmcnt({P['wopace']-1})")
            e(f"buffer_load_dwordx4 v[{WO+4*i}:{WO+4*i+3}], v8, {SRD_B}, s57 offen{wpol}")
        if P["woprio"] != 3: e("s_setprio 3")
    if P["wolate"] != 2: wo_loads()
    e("v_and_b32 v9, 7, v0")
    e("v_lshlrev_b32 v9, 11, v9")
    e(f"v_lshrrev_b32 v10, 3, {V_C}")
    e("v_lshl_add_u32 v9, v10, 10, v9")
    e(f"v_lshl_add_u32 v9, {V_G}, 4, v9")
    e("s_lshl_b32 s58, s30, 14")
    e("s_lshl_b32 s59, s53, 8")
    e("s_add_u32 s58, s58, s59")
    e("s_lshl_b32 s59, s31, 6")
    e("s_add_u32 s58, s58, s59")
    e(f"s_add_u32 s58, s58, {WS_OP}")
    if P["dbg"] == 5:
        e("s_waitcnt vmcnt(0)")
        stamp_if_role(0, 13)
        e("s_branch L_end")
    e("s_barrier")
    if P["wolate"] == 2: wo_loads()
    stamp_if_role(0, 13)
    def wo_perms():
        e("s_waitcnt vmcnt(1)")
        perms_block(WO, FO)
        stamp_if_role(0, 14)
    if P["pipe"]:
        pipe_poll(1, lambda b: e(f"buffer_load_dwordx4 v[{b}:{b+3}], v9, {SRD_WS}, s58 offen sc1"),
                  16, [32 + 4*k for k in range(P["pipe"])], P["othr"], P["osleep"], pre=wo_perms)
    else:
        e("s_waitcnt vmcnt(0)")
        perms_block(WO, FO)
        lp, ld = uid("Lp"), uid("Ld")
        lab(lp)
        e(f"buffer_load_dwordx4 v[16:19], v9, {SRD_WS}, s58 offen sc1")
        e("s_waitcnt vmcnt(0)")
        e("v_max3_u32 v24, v16, v17, v18")
        e("v_max_u32 v24, v24, v19")
        e("v_cmp_eq_u32 vcc, -1, v24")
        e("s_mov_b64 exec, vcc")
        e(f"s_cbranch_execz {ld}")
        budget_check()
        if P["osleep"]: e(f"s_sleep {P['osleep']}")
        e(f"s_branch {lp}")
        lab(ld)
        e("s_mov_b64 exec, -1")
    stamp_if_role(0, 15)
    e("s_nop 3")
    for j in range(8):
        e(f"v_mfma_f32_16x16x32_bf16 v[{DO+4*j}:{DO+4*j+3}], v[16:19], v[{FO+4*j}:{FO+4*j+3}], 0")
    e("s_lshl_b32 s55, s31, 13")
    e(f"v_add_u32 v7, s55, {V_L16}")
    e("s_lshr_b32 s55, s31, 1")
    e("s_lshl_b32 s55, s55, 12")
    e("s_and_b32 s56, s31, 1")
    e("s_lshl_b32 s56, s56, 8")
    e("s_add_u32 s55, s55, s56")
    e(f"v_lshlrev_b32 v8, 10, {V_G}")
    e(f"v_lshl_add_u32 v8, {V_C}, 4, v8")
    e("v_add_u32 v8, s55, v8")
    for j in range(8):
        e(f"ds_write_b128 v7, v[{DO+4*j}:{DO+4*j+3}] offset:{j*1024}")
    e("s_waitcnt lgkmcnt(0)")
    e("s_barrier")
    for k in range(8):
        a, sp = k >> 1, k & 1
        e(f"ds_read_b128 v[{64+4*k}:{67+4*k}], v8 offset:{a*8192 + sp*512}")
    e("s_waitcnt lgkmcnt(6)")
    for r in range(4): e(f"v_add_f32 v{64+r}, v{64+r}, v{68+r}")
    e("s_waitcnt lgkmcnt(4)")
    for r in range(4): e(f"v_add_f32 v{72+r}, v{72+r}, v{76+r}")
    e("s_waitcnt lgkmcnt(2)")
    for r in range(4): e(f"v_add_f32 v{80+r}, v{80+r}, v{84+r}")
    for r in range(4): e(f"v_add_f32 v{64+r}, v{64+r}, v{72+r}")
    e("s_waitcnt lgkmcnt(0)")
    for r in range(4): e(f"v_add_f32 v{88+r}, v{88+r}, v{92+r}")
    for r in range(4): e(f"v_add_f32 v{80+r}, v{80+r}, v{88+r}")
    for r in range(4): e(f"v_add_f32 v{64+r}, v{64+r}, v{80+r}")
    for r in range(4): e(f"v_min_u32 v{64+r}, -2, v{64+r}")
    e(f"buffer_store_dwordx4 v[64:67], v12, {SRD_WS}, s60 offen sc1")
e("s_cmp_lg_u32 s31, 0")
e("s_cbranch_scc1 L_end")
if not P["s2bulk"]: stamp(16)
for _ in range(P["padtail"]): e("s_nop 0")
e("s_and_b32 s55, s2, 1")
e("s_lshl_b32 s56, s4, 1")
e("s_add_u32 s56, s56, s55")
e("s_lshl_b32 s56, s56, 18")
e("s_bfe_u32 s57, s2, 0x60001")
e("s_lshl_b32 s58, s57, 12")
e("s_add_u32 s56, s56, s58")
e(f"s_add_u32 s56, s56, {WS_RP}")
e("s_mov_b32 s44, s20"); e("s_mov_b32 s45, s21"); e("s_mov_b32 s46, 16384"); e("s_mov_b32 s47, 0x20000")
e("s_lshl_b32 s58, s55, 13")
e("s_lshl_b32 s59, s4, 10")
e("s_add_u32 s58, s58, s59")
e("s_lshl_b32 s59, s57, 4")
e("s_add_u32 s58, s58, s59")
e("v_lshlrev_b32 v8, 1, v0")
if P["pipe"]:
    def iss(b):
        for t in range(4):
            e(f"buffer_load_dwordx4 v[{b+4*t}:{b+4*t+3}], {V_L16}, {SRD_WS}, s56 offen offset:{t*1024} sc1")
    pipe_poll(4, iss, 16, [160 + 16*k for k in range(P["pipe"])], P["rthr"], P["osleep"])
else:
    lp, ld = uid("Lp"), uid("Ld")
    lab(lp)
    for t in range(4):
        e(f"buffer_load_dwordx4 v[{16+4*t}:{19+4*t}], {V_L16}, {SRD_WS}, s56 offen offset:{t*1024} sc1")
    e("s_waitcnt vmcnt(0)")
    e("v_max3_u32 v32, v16, v17, v18")
    e("v_max3_u32 v33, v19, v20, v21")
    e("v_max3_u32 v32, v32, v22, v23")
    e("v_max3_u32 v33, v33, v24, v25")
    e("v_max3_u32 v32, v32, v26, v27")
    e("v_max3_u32 v33, v33, v28, v29")
    e("v_max3_u32 v32, v32, v30, v31")
    e("v_max_u32 v32, v32, v33")
    e("v_cmp_eq_u32 vcc, -1, v32")
    e("s_mov_b64 exec, vcc")
    e(f"s_cbranch_execz {ld}")
    budget_check()
    if P["osleep"]: e(f"s_sleep {P['osleep']}")
    e(f"s_branch {lp}")
    lab(ld)
    e("s_mov_b64 exec, -1")
stamp(17)
for r in range(4): e(f"v_add_f32 v{16+r}, v{16+r}, v{20+r}")
for r in range(4): e(f"v_add_f32 v{24+r}, v{24+r}, v{28+r}")
for r in range(4): e(f"v_add_f32 v{16+r}, v{16+r}, v{24+r}")
e("s_nop 1")
for r in range(4): e(f"v_add_f32_dpp v{20+r}, v{16+r}, v{16+r} row_ror:8 row_mask:0xf bank_mask:0xf")
for r in range(4): e(f"v_mov_b32 v{24+r}, v{20+r}")
e("s_nop 1")
for r in range(4): e(f"v_permlane32_swap_b32 v{20+r}, v{24+r}")
e("s_nop 1")
for r in range(4): e(f"v_add_f32 v{20+r}, v{20+r}, v{24+r}")
for r in range(4): e(f"v_mov_b32 v{24+r}, v{20+r}")
e("s_nop 1")
for r in range(4): e(f"v_permlane16_swap_b32 v{20+r}, v{24+r}")
e("s_nop 1")
for r in range(4): e(f"v_add_f32 v{20+r}, v{20+r}, v{24+r}")
for r in range(4): e(f"v_cvt_pk_bf16_f32 v{20+r}, v{20+r}, v{20+r}")
e("s_mov_b64 exec, 0xff")
e("s_add_u32 s59, s58, 4096")
for r in range(4):
    e(f"buffer_store_short v{20+r}, v8, {SRD_X}, {'s58' if r < 2 else 's59'} offen offset:{(r&1)*2048}")
e("s_and_b32 s55, s2, 127")
e("s_cmp_lg_u32 s55, 0")
lfin = uid("Lf")
e(f"s_cbranch_scc1 {lfin}")
e("s_mov_b64 exec, 1")
e("v_mov_b32 v24, s50")
e("v_mov_b32 v25, s51")
e("v_mov_b32 v26, 0")
e("s_lshl_b32 s58, s4, 7")
e(f"buffer_store_dwordx2 v[24:25], v26, {SRD_WS}, s58 offen sc1")
lab(lfin)
if P["dclk"]:
    ldc = uid("Ldc")
    e("s_cmp_lg_u32 s2, 5")
    e(f"s_cbranch_scc1 {ldc}")
    e("s_memrealtime s[64:65]")
    e("s_memtime s[88:89]")
    e("s_mov_b32 s44, s22"); e("s_mov_b32 s45, s23"); e("s_mov_b32 s46, 256"); e("s_mov_b32 s47, 0x20000")
    e("s_waitcnt lgkmcnt(0)")
    e("s_sub_u32 s64, s64, s70")
    e("s_sub_u32 s88, s88, s86")
    e("s_mov_b64 exec, 1")
    e("v_mov_b32 v24, s64")
    e("v_mov_b32 v25, s88")
    e("v_mov_b32 v26, 0")
    e("buffer_store_dwordx2 v[24:25], v26, s[44:47], 0 offen")
    lab(ldc)
if P["dspan"]:
    e("s_waitcnt vmcnt(0)")
    e("s_memrealtime s[64:65]")
    e("s_mov_b32 s44, s22"); e("s_mov_b32 s45, s23"); e("s_mov_b32 s46, 256"); e("s_mov_b32 s47, 0x20000")
    e("s_waitcnt lgkmcnt(0)")
    e("s_mov_b64 exec, 1")
    e("s_not_b32 s66, s70")
    e("v_mov_b32 v24, s64")
    e("v_mov_b32 v25, s66")
    e("v_mov_b32 v26, 0")
    e("buffer_atomic_umax v24, v26, s[44:47], 0 offen")
    e("buffer_atomic_umax v25, v26, s[44:47], 0 offen offset:4")
    e("v_mov_b32 v24, s70")
    e("buffer_atomic_umax v24, v26, s[44:47], 0 offen offset:8")
    e("s_not_b32 s66, s64")
    e("v_mov_b32 v25, s66")
    e("buffer_atomic_umax v25, v26, s[44:47], 0 offen offset:12")
if NST:
    e("s_mov_b64 exec, -1")
    e("s_waitcnt vmcnt(0)")
    stamp(18)
lab("L_end")
e("s_endpgm")
lab("L_code_end")

ftr = f""".section .rodata,"a"
.p2align 6
.amdhsa_kernel {NAME}_kernel
  .amdhsa_next_free_vgpr 256
  .amdhsa_next_free_sgpr 102
  .amdhsa_accum_offset 256
  .amdhsa_group_segment_fixed_size 0
  .amdhsa_kernarg_size 104
  .amdhsa_user_sgpr_count 2
  .amdhsa_user_sgpr_kernarg_segment_ptr 1
  .amdhsa_system_sgpr_workgroup_id_x 1
.end_amdhsa_kernel
"""
open(out, "w").write(hdr + "\n" + "\n".join(L) + "\n" + ftr)
```

```python
import sys

out = sys.argv[1]
P = dict(qtop=0, avwarm=0, vwarm=0, wowarm=0, padq=0, padp=0, b0early=0, b0at=0, fastpro=1, padtop=0, padtail=0, dclk=0, cwarm=0, s2bulk=1, woprio=3, wopace=0, noclr=0, ilv=0, mimic=1, remap=0, rmul=5, warm=1, dspan=0, wothr=4, pipe=4, othr=24, rthr=32, pgap=2, psw=64, pace2=0, dbg=0, noswz=0, qprobe=0, smask=0, qdelay=32, osleep=2, qsleep=12, pace=8, stamps=0, pol="nt", wpol="nt", budget=1 << 22, wolate=2)
for a in sys.argv[2:]:
    k, v = a.split("=")
    P[k] = v if k in ("pol", "wpol") else int(v, 0)
NAME = "concat_heads__sliding_block_cached__sliding_block_cached__decode"
pol = "".join(" " + x for x in P["pol"].split("+") if x != "none")
wpol = "".join(" " + x for x in P["wpol"].split("+") if x != "none")
NST = P["stamps"]
NW_ = (2 + (1 if P["avwarm"] else 0)) if P["warm"] else 0
STAMPOFF = 200 << 20

WS_E = 0x0
WS_FL = 0x1000
WS_ST = 0x2000
WS_OP = 0x10000
WS_QP = 0x100000
WS_RP = 0x200000
WS_SIZE = 0x300000

L_K = 0
L_RR = 0
L_QR = 131072
L_PL = 131072
L_OR = 147456
L_QL = 155648
L_SL = 156672
L_FW = 156800
L_CF = 156928
CF_QR, CF_QST, CF_QL, CF_KL, CF_VI, CF_P, CF_SL, CF_GO = [16 * i for i in range(8)]
LDS_BYTES = 157184 + 128

L = []
def e(s): L.append("    " + s)
def lab(s): L.append(s + ":")
def cmt(s): L.append("    ; " + s)
_uid = [0]
def uid(p="L"):
    _uid[0] += 1
    return f"{p}_{_uid[0]}"

S_WG, S_WAVE, S_BR = "s2", "s3", "s4"
S_HKV, S_B, S_SPLIT, S_C, S_GRP, S_ROLE = "s26", "s27", "s28", "s29", "s30", "s31"
SRD_A, SRD_B, SRD_WS, SRD_X = "s[32:35]", "s[36:39]", "s[40:43]", "s[44:47]"
S_SELLO, S_SELHI = "s48", "s49"
S_TAG0, S_TAG1 = "s50", "s51"
S_BUD = "s52"
S_HI, S_LO = "s53", "s54"

V_LANE = "v0"
V_CF = "v1"
V_G = "v2"
V_C = "v3"
V_ONE = "v4"
V_L16 = "v5"

TMP = dict(st=250, w=244, pp=248)
def stamp(idx):
    if not NST: return
    if P["smask"] and not (P["smask"] >> idx) & 1: return
    t = TMP["st"]
    e("s_memrealtime s[64:65]")
    e("s_waitcnt lgkmcnt(0)")
    e("s_mov_b64 s[66:67], exec")
    e("s_mov_b64 exec, 1")
    e(f"v_mov_b32 v{t}, s64")
    e(f"v_mov_b32 v{t+1}, s65")
    e(f"v_mov_b32 v{t+2}, {idx*8}")
    e(f"buffer_store_dwordx2 v[{t}:{t+1}], v{t+2}, s[72:75], s68 offen")
    e("s_mov_b64 exec, s[66:67]")

def stamp_if_role(role, idx):
    if not NST: return
    if P["smask"] and not (P["smask"] >> idx) & 1: return
    l = uid("Lst")
    e(f"s_cmp_lg_u32 {S_ROLE}, {role}")
    e(f"s_cbranch_scc1 {l}")
    stamp(idx)
    lab(l)

def budget_check():
    e(f"s_sub_u32 {S_BUD}, {S_BUD}, 1")
    e("s_cbranch_scc1 L_end")

def lds_wait4(off, t="v[244:247]"):
    l, d = uid("Lw"), uid("Ld")
    lab(l)
    e(f"ds_read_b128 v[244:247], {V_CF} offset:{off}")
    e("s_waitcnt lgkmcnt(0)")
    e("v_and_b32 v244, v244, v245")
    e("v_and_b32 v246, v246, v247")
    e("v_and_b32 v244, v244, v246")
    e("s_nop 0")
    e("v_readfirstlane_b32 s55, v244")
    e("s_cmp_eq_u32 s55, 1")
    e(f"s_cbranch_scc1 {d}")
    budget_check()
    e("s_sleep 1")
    e(f"s_branch {l}")
    lab(d)

def lds_wait1(vaddr, off):
    l, d = uid("Lw"), uid("Ld")
    lab(l)
    e(f"ds_read_b32 v{TMP['w']}, {vaddr} offset:{off}")
    e("s_waitcnt lgkmcnt(0)")
    e(f"v_readfirstlane_b32 s55, v{TMP['w']}")
    e("s_cmp_eq_u32 s55, 1")
    e(f"s_cbranch_scc1 {d}")
    budget_check()
    e("s_sleep 1")
    e(f"s_branch {l}")
    lab(d)

def lds_set(vaddr, off):
    e(f"ds_write_b32 {vaddr}, {V_ONE} offset:{off}")


def pipe_poll(nload, issue, final, sets, slow_thresh, slow_sleep, pre=None):
    N = len(sets)
    nreg = 4 * nload
    ld = uid("Ld")
    def check(base, mask):
        e(f"s_mov_b64 exec, {mask}")
        regs = [f"v{base+i}" for i in range(nreg)]
        e(f"v_max3_u32 v{TMP['pp']}, {regs[0]}, {regs[1]}, {regs[2]}")
        rest = regs[3:]
        while len(rest) >= 2:
            e(f"v_max3_u32 v{TMP['pp']}, v{TMP['pp']}, {rest[0]}, {rest[1]}"); rest = rest[2:]
        if rest: e(f"v_max_u32 v{TMP['pp']}, v{TMP['pp']}, {rest[0]}")
        e(f"v_cmp_ne_u32 vcc, -1, v{TMP['pp']}")
        e("s_and_b64 exec, vcc, s[76:77]")
        for i in range(nreg): e(f"v_mov_b32 v{final+i}, v{base+i}")
        e("s_andn2_b64 s[76:77], s[76:77], exec")
        e(f"s_cbranch_scc0 {ld}")
    e("s_mov_b64 s[76:77], -1")
    ls, lf, l1 = uid("Lsl"), uid("Lfa"), uid("L1")
    if pre is not None:
        e("s_mov_b64 s[78:79], -1")
        issue(sets[0])
        pre()
        e(f"s_branch {l1}")
    lab(ls)
    e("s_mov_b64 exec, s[76:77]")
    e("s_mov_b64 s[78:79], s[76:77]")
    issue(sets[0])
    lab(l1)
    e("s_waitcnt vmcnt(0)")
    check(sets[0], "s[78:79]")
    e("s_bcnt1_i32_b64 s55, s[76:77]")
    e(f"s_cmp_le_u32 s55, {slow_thresh}")
    e(f"s_cbranch_scc1 {lf}")
    budget_check()
    if slow_sleep: e(f"s_sleep {slow_sleep}")
    e(f"s_branch {ls}")
    lab(lf)
    for k in range(N - 1):
        e("s_mov_b64 exec, s[76:77]")
        e(f"s_mov_b64 s[{78+2*k}:{79+2*k}], s[76:77]")
        issue(sets[k])
        if P["pgap"]: e(f"s_sleep {P['pgap']}")
    lp = uid("Lp")
    lab(lp)
    for k in range(N):
        kk = (k + N - 1) % N
        e("s_mov_b64 exec, s[76:77]")
        e(f"s_mov_b64 s[{78+2*kk}:{79+2*kk}], s[76:77]")
        issue(sets[kk])
        e(f"s_waitcnt vmcnt({(N-1)*nload})")
        check(sets[k], f"s[{78+2*k}:{79+2*k}]")
    budget_check()
    e(f"s_branch {lp}")
    lab(ld)
    e("s_mov_b64 exec, -1")

def perms_block(src, dst, plist=range(4)):
    for p in plist:
        for jj in range(4):
            a = src + 4 * (2 * p) + jj
            b = src + 4 * (2 * p + 1) + jj
            e(f"v_perm_b32 v{dst + 4*(2*jj) + p}, v{b}, v{a}, {S_SELLO}")
            e(f"v_perm_b32 v{dst + 4*(2*jj+1) + p}, v{b}, v{a}, {S_SELHI}")


def wo_addr(vreg):
    e("s_lshl_b32 s62, s26, 9")
    e("s_and_b32 s63, s31, 1")
    e("s_lshl_b32 s63, s63, 6")
    e("s_add_u32 s62, s62, s63")
    e("s_lshl_b32 s63, s53, 1")
    e("s_add_u32 s62, s62, s63")
    e("s_lshr_b32 s63, s31, 1")
    e("s_add_u32 s62, s62, s63")
    e("s_lshl_b32 s62, s62, 10")
    e("s_lshl_b32 s63, s54, 8")
    e("s_add_u32 s62, s62, s63")
    e(f"v_lshlrev_b32 {vreg}, 14, {V_G}")
    e(f"v_lshl_add_u32 {vreg}, {V_C}, 4, {vreg}")
def rp_addr(vreg):
    e("s_and_b32 s58, s31, 1")
    e("s_lshl_b32 s59, s4, 1")
    e("s_add_u32 s59, s59, s58")
    e("s_lshl_b32 s60, s59, 18")
    e("s_lshl_b32 s59, s54, 16")
    e("s_add_u32 s60, s60, s59")
    e("s_lshl_b32 s59, s26, 2")
    e("s_add_u32 s59, s59, s53")
    e("s_lshl_b32 s59, s59, 7")
    e("s_add_u32 s60, s60, s59")
    e("s_lshr_b32 s59, s31, 1")
    e("s_lshl_b32 s59, s59, 6")
    e("s_add_u32 s60, s60, s59")
    e(f"s_add_u32 s60, s60, {WS_RP}")
    e(f"v_lshlrev_b32 {vreg}, 12, {V_C}")
    e(f"v_lshl_add_u32 {vreg}, {V_G}, 4, {vreg}")
def op_addr():
    e("v_and_b32 v9, 7, v0")
    e("v_lshlrev_b32 v9, 11, v9")
    e(f"v_lshrrev_b32 v10, 3, {V_C}")
    e("v_lshl_add_u32 v9, v10, 10, v9")
    e(f"v_lshl_add_u32 v9, {V_G}, 4, v9")
    e("s_lshl_b32 s58, s30, 14")
    e("s_lshl_b32 s59, s53, 8")
    e("s_add_u32 s58, s58, s59")
    e("s_lshl_b32 s59, s31, 6")
    e("s_add_u32 s58, s58, s59")
    e(f"s_add_u32 s58, s58, {WS_OP}")
def stage2(WO, FO, DO, vrp, nwait):
    def wo_perms():
        e(f"s_waitcnt vmcnt({nwait})")
        perms_block(WO, FO)
        stamp_if_role(0, 14)
    pipe_poll(1, lambda b: e(f"buffer_load_dwordx4 v[{b}:{b+3}], v9, {SRD_WS}, s58 offen sc1"),
              16, [32 + 4*k for k in range(P["pipe"])], P["othr"], P["osleep"], pre=wo_perms)
    stamp_if_role(0, 15)
    e("s_nop 3")
    for j in range(8):
        e(f"v_mfma_f32_16x16x32_bf16 v[{DO+4*j}:{DO+4*j+3}], v[16:19], v[{FO+4*j}:{FO+4*j+3}], 0")
    e("s_lshl_b32 s55, s31, 13")
    e(f"v_add_u32 v7, s55, {V_L16}")
    e("s_lshr_b32 s55, s31, 1")
    e("s_lshl_b32 s55, s55, 12")
    e("s_and_b32 s56, s31, 1")
    e("s_lshl_b32 s56, s56, 8")
    e("s_add_u32 s55, s55, s56")
    e(f"v_lshlrev_b32 v8, 10, {V_G}")
    e(f"v_lshl_add_u32 v8, {V_C}, 4, v8")
    e("v_add_u32 v8, s55, v8")
    for j in range(8):
        e(f"ds_write_b128 v7, v[{DO+4*j}:{DO+4*j+3}] offset:{j*1024}")
    e("s_waitcnt lgkmcnt(0)")
    e("s_barrier")
    for k in range(8):
        a, sp = k >> 1, k & 1
        e(f"ds_read_b128 v[{64+4*k}:{67+4*k}], v8 offset:{a*8192 + sp*512}")
    e("s_waitcnt lgkmcnt(6)")
    for r in range(4): e(f"v_add_f32 v{64+r}, v{64+r}, v{68+r}")
    e("s_waitcnt lgkmcnt(4)")
    for r in range(4): e(f"v_add_f32 v{72+r}, v{72+r}, v{76+r}")
    e("s_waitcnt lgkmcnt(2)")
    for r in range(4): e(f"v_add_f32 v{80+r}, v{80+r}, v{84+r}")
    for r in range(4): e(f"v_add_f32 v{64+r}, v{64+r}, v{72+r}")
    e("s_waitcnt lgkmcnt(0)")
    for r in range(4): e(f"v_add_f32 v{88+r}, v{88+r}, v{92+r}")
    for r in range(4): e(f"v_add_f32 v{80+r}, v{80+r}, v{88+r}")
    for r in range(4): e(f"v_add_f32 v{64+r}, v{64+r}, v{80+r}")
    for r in range(4): e(f"v_min_u32 v{64+r}, -2, v{64+r}")
    e(f"buffer_store_dwordx4 v[64:67], {vrp}, {SRD_WS}, s60 offen sc1")
    stamp_if_role(0, 16)

hdr = f"""; fused sliding-window GQA decode attention (two branches), one persistent launch of 256 workgroups
; @launch grid=(256,1,1) block=(512,1,1) lds={LDS_BYTES}
.amdgcn_target "amdgcn-amd-amdhsa--gfx950"
.text
.globl {NAME}_kernel
.p2align 8
.type {NAME}_kernel,@function
{NAME}_kernel:"""

e("s_cmp_ge_u32 s2, 256")
e("s_cbranch_scc1 L_end")
for _ in range(P["padtop"]): e("s_nop 0")
if NST or P["dspan"] or P["dclk"]: e("s_memrealtime s[70:71]")
if P["dclk"]: e("s_memtime s[86:87]")
if NST: e(f"s_mul_i32 s68, s2, {NST*8}")
if P["remap"] == 1:
    e("s_and_b32 s4, s2, 7")
    e("s_lshl_b32 s4, s4, 5")
    e("s_bfe_u32 s5, s2, 0x10003")
    e("s_lshl_b32 s5, s5, 4")
    e("s_lshr_b32 s2, s2, 4")
    e("s_or_b32 s2, s2, s4")
    e("s_or_b32 s2, s2, s5")
e("s_lshr_b32 s4, s2, 7")
e("s_mul_i32 s5, s4, 40")
e("s_add_u32 s6, s0, s5")
e("s_addc_u32 s7, s1, 0")
def common_late():
    e("s_and_b32 s29, s2, 15")
    e("s_lshr_b32 s30, s2, 4")
    e("s_lshr_b32 s53, s29, 2")
    e("s_and_b32 s54, s29, 3")
    e("s_mov_b32 s48, 0x05040100")
    e("s_mov_b32 s49, 0x07060302")
    e(f"s_mov_b32 s52, {P['budget']}")
    e(f"v_mov_b32 {V_CF}, {L_CF}")
    e(f"v_mov_b32 {V_ONE}, 1")
    e(f"v_lshlrev_b32 {V_L16}, 4, v0")
    e("s_lshl_b32 s55, s31, 2")
    e(f"v_add_u32 v6, s55, {V_CF}")
    e(f"s_mov_b32 s42, {WS_SIZE}"); e("s_mov_b32 s43, 0x20000")
    if NST:
        e(f"s_add_u32 s72, s40, {STAMPOFF}")
        e("s_addc_u32 s73, s41, 0")
        e(f"s_mov_b32 s74, {256*NST*8}")
        e("s_mov_b32 s75, 0x20000")
if P["fastpro"]:
    e("s_load_dwordx4 s[8:11], s[6:7], 8")
    e("s_load_dwordx4 s[12:15], s[6:7], 24")
    e("v_lshrrev_b32 v1, 6, v0")
    e("v_and_b32 v0, 63, v0")
    e("s_bfe_u32 s26, s2, 0x30004")
    e("v_readfirstlane_b32 s3, v1")
    e("s_bfe_u32 s27, s2, 0x30001")
    e("s_and_b32 s28, s2, 1")
    e(f"v_lshrrev_b32 {V_G}, 4, v0")
    e(f"v_and_b32 {V_C}, 15, v0")
    e("s_and_b32 s31, s3, 3")
    e("s_cmp_lt_u32 s3, 4")
    e("s_cbranch_scc1 L_aux")
else:
    e("s_load_dwordx8 s[8:15], s[6:7], 0")
    e("s_load_dwordx2 s[16:17], s[6:7], 32")
    e("s_load_dwordx4 s[20:23], s[0:1], 80")
    e("s_load_dwordx2 s[24:25], s[0:1], 96")
    if P["cwarm"] >= 10:
        e("s_getpc_b64 s[56:57]")
        lab("L_pc")
        e(f"s_sub_u32 s56, s56, L_pc - {NAME}_kernel")
        e("s_subb_u32 s57, s57, 0")
        e("v_lshlrev_b32 v8, 6, v0")
        e(f"v_cmp_gt_u32 vcc, L_code_end - {NAME}_kernel, v8")
        e("s_and_saveexec_b64 s[58:59], vcc")
        lct = uid("Lct")
        e(f"s_cbranch_execz {lct}")
        e("global_load_dword v15, v8, s[56:57]")
        lab(lct)
        e("s_mov_b64 exec, -1")
    e("v_lshrrev_b32 v1, 6, v0")
    e("v_and_b32 v0, 63, v0")
    e("s_bfe_u32 s26, s2, 0x30004")
    e("v_readfirstlane_b32 s3, v1")
    e("s_bfe_u32 s27, s2, 0x30001")
    e("s_and_b32 s28, s2, 1")
    e("s_and_b32 s29, s2, 15")
    e("s_lshr_b32 s30, s2, 4")
    e("s_lshr_b32 s53, s29, 2")
    e("s_and_b32 s54, s29, 3")
    e("s_and_b32 s31, s3, 3")
    e("s_mov_b32 s48, 0x05040100")
    e("s_mov_b32 s49, 0x07060302")
    e(f"s_mov_b32 s52, {P['budget']}")
    e(f"v_mov_b32 {V_CF}, {L_CF}")
    e(f"v_lshrrev_b32 {V_G}, 4, v0")
    e(f"v_and_b32 {V_C}, 15, v0")
    e(f"v_mov_b32 {V_ONE}, 1")
    e(f"v_lshlrev_b32 {V_L16}, 4, v0")
    e("s_lshl_b32 s55, s31, 2")
    e(f"v_add_u32 v6, s55, {V_CF}")
    e("s_waitcnt lgkmcnt(0)")
    e("s_mov_b32 s40, s24"); e("s_mov_b32 s41, s25"); e(f"s_mov_b32 s42, {WS_SIZE}"); e("s_mov_b32 s43, 0x20000")
    if NST:
        e(f"s_add_u32 s72, s24, {STAMPOFF}")
        e("s_addc_u32 s73, s25, 0")
        e(f"s_mov_b32 s74, {256*NST*8}")
        e("s_mov_b32 s75, 0x20000")
    e("s_cmp_lt_u32 s3, 4")
    e("s_cbranch_scc1 L_aux")


if P["s2bulk"]: TMP.update(st=12, w=8, pp=11)
NWO = 8 if P["s2bulk"] else 0
WOB = 224
VB = 64
FB = 192
AC = 16
PB = 48
if P["fastpro"]:
    e("s_load_dwordx2 s[40:41], s[0:1], 96")
    e("s_mov_b32 s34, 0x4000000"); e("s_mov_b32 s35, 0x20000")
else:
    e("s_mov_b32 s32, s10"); e("s_mov_b32 s33, s11"); e("s_mov_b32 s34, 0x4000000"); e("s_mov_b32 s35, 0x20000")
    e("s_mov_b32 s36, s12"); e("s_mov_b32 s37, s13"); e("s_mov_b32 s38, 0x4000000"); e("s_mov_b32 s39, 0x20000")
e("s_lshl_b32 s56, s27, 23")
e("s_lshl_b32 s57, s26, 20")
e("s_add_u32 s56, s56, s57")
e("s_lshl_b32 s57, s28, 17")
e("s_add_u32 s56, s56, s57")
e("s_lshl_b32 s57, s31, 15")
if P["ilv"]:
    e("s_lshl_b32 s58, s31, 10")
    e("s_add_u32 s56, s56, s58")
else:
    e("s_add_u32 s56, s56, s57")
e(f"s_add_u32 s56, s56, {3072*256}")
e(f"v_lshlrev_b32 v12, 2, {V_G}")
e(f"v_lshlrev_b32 v13, 8, {V_G}")
for ii in range(4):
    e(f"v_add_u32 v14, {ii}, v12")
    e(f"v_xor_b32 v14, v14, {V_C}") if not P["noswz"] else e(f"v_mov_b32 v14, {V_C}")
    e(f"v_lshl_add_u32 v{8+ii}, v14, 4, v13")
PACE = P["pace"]
n_issued = 0
def pre_issue():
    global n_issued
    if n_issued == min(PACE, 8) if PACE else n_issued == 8:
        if P["fastpro"]:
            common_late()
            e("s_mov_b32 s36, s10"); e("s_mov_b32 s37, s11")
            e("s_mov_b32 s38, 0x4000000"); e("s_mov_b32 s39, 0x20000")
            if P["s2bulk"]: e("s_mov_b32 s16, s14"); e("s_mov_b32 s17, s15")
            if P["vwarm"]:
                e("v_lshlrev_b32 v15, 12, v0")
                e(f"s_mov_b64 exec, {(1 << P['vwarm']) - 1}")
                e(f"buffer_load_dword v15, v15, {SRD_B}, s56 offen nt")
                e("s_mov_b64 exec, -1")
        if not P["b0at"]: e("s_barrier")
        if NST and (P["smask"] >> 20) & 1:
            e(f"s_waitcnt vmcnt({n_issued - 1})")
            stamp_if_role(0, 20)
    pc = PACE if n_issued < P["psw"] else P["pace2"]
    if pc and n_issued >= pc:
        e(f"s_waitcnt vmcnt({pc-1})")
    if P["b0at"] and n_issued == P["b0at"]: e("s_barrier")
    n_issued += 1
kl_done = False
e(f"s_mul_i32 s61, s2, {P['rmul']}")
if not P["ilv"]:
    e("s_lshl_b32 s62, s31, 3")
    e("s_add_u32 s61, s61, s62")
CSH = 12 if P["ilv"] else 10
e(f"s_lshl_b32 s61, s61, {CSH}")
if P["warm"] and not P["fastpro"]:
    e("v_mov_b32 v15, 0")
    e(f"buffer_load_dword v15, v15, {SRD_B}, s56 offen")
if P["fastpro"]:
    e("s_waitcnt lgkmcnt(0)")
    e("s_mov_b32 s32, s8"); e("s_mov_b32 s33, s9")
def rotaddr(n):
    e(f"s_add_u32 s58, s61, {n << CSH}")
    e(f"s_and_b32 s58, s58, {31 << CSH}")
    e("s_add_u32 s58, s58, s56")
for n in range(32):
    e(f"s_add_u32 m0, s57, {n*1024}")
    rotaddr(n)
    pre_issue()
    e(f"buffer_load_dwordx4 v{8+(n&3)}, {SRD_A}, s58 offen{pol} lds")
for n in range(32):
    rotaddr(n)
    pre_issue()
    pc = PACE if (n_issued - 1) < P["psw"] else P["pace2"]
    if pc and not kl_done and (n_issued - 1) - pc >= 31:
        lds_set("v6", CF_KL)
        kl_done = True
        stamp_if_role(0, 8)
    r = VB + 4 * n
    e(f"buffer_load_dwordx4 v[{r}:{r+3}], {V_L16}, {SRD_B}, s58 offen{pol}")
if P["wolate"] != 3: lds_set("v6", CF_VI)
if not kl_done:
    e("s_waitcnt vmcnt(32)")
    lds_set("v6", CF_KL)
if P["s2bulk"]:
    e("s_mov_b32 s32, s16"); e("s_mov_b32 s33, s17"); e("s_mov_b32 s34, 0x400000"); e("s_mov_b32 s35, 0x20000")
    wo_addr("v7")
    for i in range(8):
        dd, h = i >> 2, i & 3
        e(f"s_add_u32 s63, s62, {(h*128 + 8*dd)*1024}")
        if P["wopace"]: pre_issue()
        e(f"buffer_load_dwordx4 v[{WOB+4*i}:{WOB+4*i+3}], v7, {SRD_A}, s63 offen{wpol}")
nst_extra = 0
if NST:
    stamp_if_role(0, 9)
if not P["dbg"]: lds_wait1("v6", CF_P)
stamp_if_role(0, 10)
e("s_lshl_b32 s55, s31, 12")
e(f"v_add_u32 v7, s55, {V_L16}")
e(f"v_add_u32 v7, {L_PL}, v7")
for T in range(4):
    e(f"ds_read_b128 v[{PB+4*T}:{PB+4*T+3}], v7 offset:{T*1024}")
for T in range(4):
    src = VB + 32 * T
    if T < 3:
        e(f"s_waitcnt vmcnt({24 - 8*T + NWO})")
        if P["wolate"] == 3 and P["wothr"] == 24 - 8*T: lds_set("v6", CF_VI)
        perms_block(src, FB)
    else:
        for p in range(4):
            e(f"s_waitcnt vmcnt({6 - 2*p + NWO})")
            if P["wolate"] == 3 and P["wothr"] == 6 - 2*p: lds_set("v6", CF_VI)
            perms_block(src, FB, [p])
    if T == 0: e("s_waitcnt lgkmcnt(0)")
    e("s_nop 1")
    for j in range(8):
        c = "0" if T == 0 else f"v[{AC+4*j}:{AC+4*j+3}]"
        e(f"v_mfma_f32_16x16x32_bf16 v[{AC+4*j}:{AC+4*j+3}], v[{PB+4*T}:{PB+4*T+3}], v[{FB+4*j}:{FB+4*j+3}], {c}")
stamp_if_role(0, 11)
if P["dbg"]: e("s_branch L_end")
e("s_lshl_b32 s55, s31, 11")
e(f"v_add_u32 v7, s55, {V_L16}")
e(f"v_add_u32 v7, {L_OR}, v7")
e("s_mov_b64 exec, 0xffff")
e("s_nop 4")
for j in range(8):
    e(f"ds_write_b128 v7, v[{AC+4*j}:{AC+4*j+3}] offset:{j*256}")
e("s_mov_b64 exec, -1")
e("s_waitcnt lgkmcnt(0)")
e("s_barrier")
e("s_cmp_ge_u32 s31, 2")
e("s_cbranch_scc1 L_end" if not P["s2bulk"] else "s_cbranch_scc1 L_s2x")
e("s_lshl_b32 s55, s31, 10")
e(f"v_add_u32 v7, s55, {V_L16}")
e(f"v_add_u32 v8, {L_OR}, v7")
e(f"v_mov_b32 v9, {L_FW}")
for w in range(4):
    e(f"ds_read_b128 v[{16+4*w}:{19+4*w}], v8 offset:{w*2048}")
    e(f"ds_read_b128 v[{32+4*w}:{35+4*w}], v9 offset:{w*16}")
e("s_lshl_b32 s55, s2, 10")
e(f"s_add_u32 s55, s55, {WS_OP}")
e("v_lshrrev_b32 v7, 1, v7")
e("s_waitcnt lgkmcnt(6)")
for h in range(4): e(f"v_mul_f32 v{48+h}, v{16+h}, v{32+h}")
for w in range(1, 4):
    e(f"s_waitcnt lgkmcnt({6-2*w})")
    for h in range(4): e(f"v_fmac_f32 v{48+h}, v{16+4*w+h}, v{32+4*w+h}")
e("v_cvt_pk_bf16_f32 v48, v48, v49")
e("v_cvt_pk_bf16_f32 v49, v50, v51")
e("v_min_u32 v48, -2, v48")
e("v_min_u32 v49, -2, v49")
e(f"buffer_store_dwordx2 v[48:49], v7, {SRD_WS}, s55 offen sc1")
stamp_if_role(0, 12)
if P["s2bulk"]:
    e("s_branch L_s2")
    lab("L_s2x")
    e("v_mov_b32 v14, 0")
    e(f"buffer_load_dword v14, v14, {SRD_WS}, 0 offen")
    lab("L_s2")
    rp_addr("v15")
    op_addr()
    stage2(WOB, FB, 128, "v15", 2)
    TMP.update(st=250, w=244, pp=248)
e("s_branch L_end")

lab("L_aux")
e("s_setprio 3")
if P["fastpro"]:
    e("s_load_dwordx2 s[44:45], s[6:7], 0")
    e("s_load_dwordx2 s[40:41], s[0:1], 96")
    e("s_load_dwordx4 s[20:23], s[0:1], 80")
    if P["b0early"]:
        e("v_mov_b32 v10, 0")
        e(f"v_mov_b32 v13, {L_CF}")
        e("v_lshl_add_u32 v13, v0, 2, v13")
        e("ds_write_b32 v13, v10")
else:
    stamp_if_role(0, 19)
if 0 < P["cwarm"] < 10:
    lcw = uid("Lcw")
    e(f"s_cmp_lg_u32 s31, {P['cwarm'] - 1}")
    e(f"s_cbranch_scc1 {lcw}")
    e("s_getpc_b64 s[56:57]")
    lab("L_pc")
    e(f"s_sub_u32 s56, s56, L_pc - {NAME}_kernel")
    e("s_subb_u32 s57, s57, 0")
    e("v_lshlrev_b32 v8, 7, v0")
    e(f"v_cmp_gt_u32 vcc, L_code_end - {NAME}_kernel, v8")
    e("s_and_saveexec_b64 s[58:59], vcc")
    e("global_load_dword v242, v8, s[56:57]")
    e("v_add_u32 v8, 8192, v8")
    e(f"v_cmp_gt_u32 vcc, L_code_end - {NAME}_kernel, v8")
    e("s_and_b64 exec, exec, vcc")
    lc2 = uid("Lcw")
    e(f"s_cbranch_execz {lc2}")
    e("global_load_dword v243, v8, s[56:57]")
    e("v_add_u32 v8, 8192, v8")
    e(f"v_cmp_gt_u32 vcc, L_code_end - {NAME}_kernel, v8")
    e("s_and_b64 exec, exec, vcc")
    e(f"s_cbranch_execz {lc2}")
    e("global_load_dword v239, v8, s[56:57]")
    lab(lc2)
    e("s_mov_b64 exec, -1")
    lab(lcw)
WQ = 64
FQ = 96
DQ = 128
XF = 16
if P["fastpro"]:
    e("s_mov_b32 s34, 0x400000"); e("s_mov_b32 s35, 0x20000")
else:
    e("s_mov_b32 s32, s14"); e("s_mov_b32 s33, s15"); e("s_mov_b32 s34, 0x400000"); e("s_mov_b32 s35, 0x20000")
    e("s_mov_b32 s36, s16"); e("s_mov_b32 s37, s17"); e("s_mov_b32 s38, 0x400000"); e("s_mov_b32 s39, 0x20000")
    e("s_mov_b32 s44, s8"); e("s_mov_b32 s45, s9"); e("s_mov_b32 s46, 8192"); e("s_mov_b32 s47, 0x20000")
e("s_lshl_b32 s56, s28, 8")
e("s_lshl_b32 s57, s31, 6")
e("s_add_u32 s56, s56, s57")
e("s_lshl_b32 s57, s56, 13")
e("s_lshl_b32 s58, s26, 10")
e("s_add_u32 s57, s57, s58")
e("s_lshl_b32 s58, s27, 7")
e("s_add_u32 s57, s57, s58")
e(f"v_lshrrev_b32 v10, 3, {V_C}")
e("v_and_b32 v11, 7, v0")
e(f"v_lshlrev_b32 v8, 16, {V_G}")
e("v_lshl_add_u32 v8, v10, 18, v8")
e("v_lshl_add_u32 v8, v11, 4, v8")
if P["fastpro"]:
    e("s_waitcnt lgkmcnt(0)")
    e("s_mov_b32 s32, s12"); e("s_mov_b32 s33, s13")
for i in range(8):
    e(f"s_add_u32 s58, s57, {i*8192}")
    e(f"buffer_load_dwordx4 v[{WQ+4*i}:{WQ+4*i+3}], v8, {SRD_A}, s58 offen{wpol}")
if P["fastpro"]:
    if P["b0early"]: e("s_barrier")
    common_late()
    e("s_mov_b32 s36, s14"); e("s_mov_b32 s37, s15")
    e("s_mov_b32 s38, 0x400000"); e("s_mov_b32 s39, 0x20000")
    e("s_mov_b32 s46, 8192"); e("s_mov_b32 s47, 0x20000")
e("v_lshlrev_b32 v9, 10, v11")
e(f"v_lshl_add_u32 v9, {V_G}, 4, v9")
e("v_lshl_add_u32 v9, v10, 6, v9")
e("s_lshl_b32 s58, s56, 1")
e(f"buffer_load_dwordx4 v[{XF}:{XF+3}], v9, {SRD_X}, s58 offen")
e("s_lshl_b32 s58, s4, 7")
e("v_mov_b32 v10, 0")
e(f"buffer_load_dwordx2 v[20:21], v10, {SRD_WS}, s58 offen sc1")
e("v_mov_b32 v24, -1"); e("v_mov_b32 v25, -1"); e("v_mov_b32 v26, -1"); e("v_mov_b32 v27, -1")
B0E = P["b0early"] and P["fastpro"]
if not B0E:
    lz = uid("Lz")
    e("s_cmp_lg_u32 s31, 0")
    e(f"s_cbranch_scc1 {lz}")
    e(f"v_lshl_add_u32 v13, v0, 2, {V_CF}")
    e("ds_write_b32 v13, v10")
    e("s_waitcnt lgkmcnt(0)")
    lab(lz)
e("s_and_b32 s58, s31, 1")
e("s_lshl_b32 s59, s4, 1")
e("s_add_u32 s59, s59, s58")
e("s_lshl_b32 s60, s59, 18")
e("s_lshl_b32 s59, s54, 16")
e("s_add_u32 s60, s60, s59")
e("s_lshl_b32 s59, s26, 2")
e("s_add_u32 s59, s59, s53")
e("s_lshl_b32 s59, s59, 7")
e("s_add_u32 s60, s60, s59")
e("s_lshr_b32 s59, s31, 1")
e("s_lshl_b32 s59, s59, 6")
e("s_add_u32 s60, s60, s59")
e(f"s_add_u32 s60, s60, {WS_RP}")
e(f"v_lshlrev_b32 v12, 12, {V_C}")
e(f"v_lshl_add_u32 v12, {V_G}, 4, v12")
if P["noclr"]: e("s_mov_b64 exec, 1")
e(f"buffer_store_dwordx4 v[24:27], v12, {SRD_WS}, s60 offen sc1")
e("s_lshl_b32 s58, s2, 10")
e("s_lshl_b32 s59, s31, 8")
e("s_add_u32 s58, s58, s59")
e(f"s_add_u32 s58, s58, {WS_OP}")
e("s_mov_b64 exec, 0xffff" if not P["noclr"] else "s_mov_b64 exec, 1")
e(f"buffer_store_dwordx4 v[24:27], {V_L16}, {SRD_WS}, s58 offen sc1")
e("s_mov_b64 exec, -1")
if P["warm"]:
    e("s_lshl_b32 s58, s26, 19")
    e("s_lshl_b32 s59, s31, 17")
    e("s_add_u32 s58, s58, s59")
    if P["wowarm"]:
        e("v_lshlrev_b32 v240, 12, v0")
        e(f"s_mov_b64 exec, {(1 << P['wowarm']) - 1}")
        e(f"buffer_load_dword v240, v240, {SRD_B}, s58 offen nt")
        e("s_mov_b64 exec, -1")
    else:
        e(f"buffer_load_dword v240, v10, {SRD_B}, s58 offen")
    e("s_mov_b32 s80, s20"); e("s_mov_b32 s81, s21"); e("s_mov_b32 s82, 16384"); e("s_mov_b32 s83, 0x20000")
    e("buffer_load_dword v241, v10, s[80:83], 0 offen")
    if P["avwarm"]:
        e("s_mov_b32 s84, s10"); e("s_mov_b32 s85, s11"); e("s_mov_b32 s86, 0x4000000"); e("s_mov_b32 s87, 0x20000")
        e("s_lshl_b32 s58, s27, 23")
        e("s_lshl_b32 s59, s26, 20")
        e("s_add_u32 s58, s58, s59")
        e("s_lshl_b32 s59, s28, 17")
        e("s_add_u32 s58, s58, s59")
        e("s_lshl_b32 s59, s31, 15")
        e("s_add_u32 s58, s58, s59")
        e(f"s_add_u32 s58, s58, {3072*256}")
        e("v_lshlrev_b32 v238, 12, v0")
        e(f"s_mov_b64 exec, {(1 << P['avwarm']) - 1}")
        e("buffer_load_dword v238, v238, s[84:87], s58 offen nt")
        e("s_mov_b64 exec, -1")
if not B0E: e("s_barrier")
if NST:
    l = uid("Lst")
    e("s_cmp_lg_u32 s31, 0")
    e(f"s_cbranch_scc1 {l}")
    e("v_mov_b32 v250, s70"); e("v_mov_b32 v251, s71"); e("v_mov_b32 v252, 0")
    e("s_mov_b64 exec, 1")
    e("buffer_store_dwordx2 v[250:251], v252, s[72:75], s68 offen")
    e("s_mov_b64 exec, -1")
    e(f"s_waitcnt vmcnt({3+NW_})")
    lab(l)
e(f"s_waitcnt vmcnt({2+NW_})" if not NST else f"s_waitcnt vmcnt({3+NW_})")
if NST:
    l = uid("Lst")
    e("s_cmp_eq_u32 s31, 0")
    e(f"s_cbranch_scc1 {l}")
    e(f"s_waitcnt vmcnt({2+NW_})")
    lab(l)
stamp_if_role(0, 1)
if P["dbg"] == 1: e("s_branch L_end")
for _ in range(P["padp"]): e("s_nop 0")
perms_block(WQ, FQ)
e("v_readfirstlane_b32 s50, v20")
e("v_readfirstlane_b32 s51, v21")
for j in range(8):
    e(f"v_mfma_f32_16x16x32_bf16 v[{DQ+4*j}:{DQ+4*j+3}], v[{XF}:{XF+3}], v[{FQ+4*j}:{FQ+4*j+3}], 0")
e("s_add_u32 s50, s50, 1")
e("s_addc_u32 s51, s51, 0")
e("s_lshl_b32 s55, s31, 12")
e(f"s_add_u32 s55, s55, {L_QR}")
e(f"v_lshlrev_b32 v7, 7, {V_G}")
e("v_lshl_add_u32 v7, v11, 4, v7")
e("v_add_u32 v7, s55, v7")
e("s_mov_b32 exec_lo, 0x00ff00ff")
e("s_mov_b32 exec_hi, 0xff00ff00")
e("s_nop 1")
for j in range(8):
    e(f"ds_write_b128 v7, v[{DQ+4*j}:{DQ+4*j+3}] offset:{j*512}")
e("s_mov_b64 exec, -1")
e("s_waitcnt lgkmcnt(0)")
lds_set("v6", CF_QR)
e("s_lshl_b32 s55, s31, 10")
e(f"s_add_u32 s55, s55, {L_QR}")
e("v_lshlrev_b32 v7, 2, v0")
e("v_add_u32 v7, s55, v7")
e("v_and_b32 v8, 3, v0")
e("v_lshlrev_b32 v8, 13, v8")
e("v_lshrrev_b32 v9, 5, v0")
e("v_lshl_add_u32 v8, v9, 15, v8")
e("v_bfe_u32 v9, v0, 2, 3")
e("v_lshl_add_u32 v8, v9, 4, v8")
e("s_lshl_b32 s59, s30, 16")
e("s_lshl_b32 s61, s28, 12")
e("s_add_u32 s59, s59, s61")
e("s_lshl_b32 s61, s27, 9")
e("s_add_u32 s59, s59, s61")
e("s_lshl_b32 s61, s31, 7")
e("s_add_u32 s59, s59, s61")
e(f"s_add_u32 s59, s59, {WS_QP}")
e("v_mov_b32 v66, s50")
e("v_mov_b32 v67, s51")
lds_wait4(CF_QR)
for k in range(8):
    a_, s_ = k >> 1, k & 1
    e(f"ds_read2st64_b32 v[{68+2*k}:{69+2*k}], v7 offset0:{16*a_+s_} offset1:{16*a_+s_+2}")
e("s_waitcnt lgkmcnt(0)")
for k in range(4):
    e(f"v_add_f32 v{68+4*k}, v{68+4*k}, v{70+4*k}")
    e(f"v_add_f32 v{69+4*k}, v{69+4*k}, v{71+4*k}")
e("v_add_f32 v68, v68, v72"); e("v_add_f32 v69, v69, v73")
e("v_add_f32 v76, v76, v80"); e("v_add_f32 v77, v77, v81")
e("v_add_f32 v64, v68, v76"); e("v_add_f32 v65, v69, v77")
e(f"buffer_store_dwordx4 v[64:67], v8, {SRD_WS}, s59 offen sc1")
stamp_if_role(0, 2)
if P["dbg"] == 2: e("s_branch L_end")
e("s_lshl_b32 s58, s30, 16")
e("s_lshl_b32 s59, s27, 13")
e("s_add_u32 s58, s58, s59")
e("s_lshl_b32 s59, s31, 10")
e("s_add_u32 s58, s58, s59")
e(f"s_add_u32 s58, s58, {WS_QP}")
e("s_add_u32 s59, s58, 4096")
e("v_lshrrev_b32 v8, 5, v0")
e("v_lshlrev_b32 v8, 7, v8")
e("v_lshl_add_u32 v8, v11, 4, v8")
e("v_bfe_u32 v9, v0, 3, 2")
e("v_lshl_add_u32 v8, v9, 2, v8")
e("s_lshl_b32 s55, s31, 8")
e(f"s_add_u32 s55, s55, {L_QL}")
e("v_add_u32 v8, s55, v8")
if P["qdelay"]: e(f"s_sleep {P['qdelay']}")
if P["qprobe"]:
    e("v_and_b32 v9, 1, v0")
    e("v_lshlrev_b32 v9, 9, v9")
    e("v_lshrrev_b32 v10, 1, v0")
    e("v_lshl_add_u32 v9, v10, 12, v9")
    e("s_mov_b64 exec, 0xf")
    lp, ld = uid("Lp"), uid("Ld")
    lab(lp)
    e(f"buffer_load_dwordx4 v[68:71], v9, {SRD_WS}, s58 offen offset:496 sc1")
    e("s_waitcnt vmcnt(0)")
    e("v_cmp_ne_u64 vcc, v[70:71], v[66:67]")
    e("s_mov_b64 exec, vcc")
    e(f"s_cbranch_execz {ld}")
    budget_check()
    e(f"s_sleep {P['qsleep']}")
    e(f"s_branch {lp}")
    lab(ld)
    e("s_mov_b64 exec, -1")
lp, ld = uid("Lp"), uid("Ld")
lab(lp)
if P["qtop"]: e(f"s_sleep {P['qsleep']}")
e(f"buffer_load_dwordx4 v[68:71], {V_L16}, {SRD_WS}, s58 offen sc1")
e(f"buffer_load_dwordx4 v[72:75], {V_L16}, {SRD_WS}, s59 offen sc1")
e("s_waitcnt vmcnt(0)")
e("v_cmp_ne_u64 vcc, v[70:71], v[66:67]")
e("v_cmp_ne_u64 s[56:57], v[74:75], v[66:67]")
e("s_or_b64 exec, vcc, s[56:57]")
e(f"s_cbranch_execz {ld}")
budget_check()
if not P["qtop"]: e(f"s_sleep {P['qsleep']}")
e(f"s_branch {lp}")
lab(ld)
e("s_mov_b64 exec, -1")
e("v_add_f32 v68, v68, v72"); e("v_add_f32 v69, v69, v73")
e("v_cvt_pk_bf16_f32 v68, v68, v69")
e("ds_write_b32 v8, v68")
lds_set("v6", CF_QST)
e("s_waitcnt lgkmcnt(0)")
lds_set("v6", CF_QL)
stamp_if_role(0, 3)
if P["dbg"] == 3: e("s_branch L_end")
lgo = uid("Lgo")
e("s_cmp_lg_u32 s31, 0")
e(f"s_cbranch_scc1 {lgo}")
lds_wait4(CF_QST)
e("s_lshl_b32 s58, s30, 7")
e(f"s_add_u32 s58, s58, {WS_FL}")
e("s_lshl_b32 s59, s29, 3")
e("v_mov_b32 v22, s59")
e("s_mov_b64 exec, 1")
e(f"buffer_store_dwordx2 v[66:67], v22, {SRD_WS}, s58 offen sc1")
e("s_mov_b64 exec, -1")
lab(lgo)
for _ in range(P["padq"]): e("s_nop 0")
e(f"v_and_b32 v8, 3, {V_C}")
e("v_lshlrev_b32 v8, 2, v8")
e(f"v_lshrrev_b32 v9, 2, {V_C}")
e("v_add_u32 v8, v8, v9")
e("v_lshlrev_b32 v8, 8, v8")
e("s_lshl_b32 s55, s31, 15")
e("v_add_u32 v8, s55, v8")
for s in range(4):
    e(f"v_add_u32 v9, {4*s}, {V_G}")
    e(f"v_xor_b32 v9, v9, {V_C}")
    e(f"v_lshl_add_u32 v{28+s}, v9, 4, v8")
e(f"v_and_b32 v9, 3, {V_C}")
e("v_lshlrev_b32 v9, 8, v9")
e(f"v_lshl_add_u32 v9, {V_G}, 4, v9")
e(f"v_add_u32 v9, {L_QL}, v9")
lds_wait4(CF_QL)
stamp_if_role(0, 4)
QF = 32
for s in range(4):
    e(f"ds_read_b128 v[{QF+4*s}:{QF+4*s+3}], v9 offset:{s*64}")
lds_wait1("v6", CF_KL)
stamp_if_role(0, 5)
KF = 64
SC = 128
def kread(t):
    b = KF + 16 * (t & 3)
    for s in range(4):
        e(f"ds_read_b128 v[{b+4*s}:{b+4*s+3}], v{28+s} offset:{t*4096}")
kread(0); kread(1)
for t in range(8):
    if t + 2 < 8:
        kread(t + 2)
        e("s_waitcnt lgkmcnt(8)")
    else:
        e(f"s_waitcnt lgkmcnt({4*(7-t)})")
    b = KF + 16 * (t & 3)
    for s in range(4):
        c = "0" if s == 0 else f"v[{SC+4*t}:{SC+4*t+3}]"
        e(f"v_mfma_f32_16x16x32_bf16 v[{SC+4*t}:{SC+4*t+3}], v[{b+4*s}:{b+4*s+3}], v[{QF+4*s}:{QF+4*s+3}], {c}")
import math
CSC = (128 ** -0.5) * math.log2(math.e)
import struct
f2u = lambda x: struct.unpack('<I', struct.pack('<f', x))[0]
if P["mimic"]:
    e(f"s_mov_b32 s58, 0x{f2u(math.log2(math.e)):08x}")
    e(f"s_mov_b32 s59, 0x{f2u(128 ** -0.5):08x}")
    e("s_mov_b32 s57, 0xffff0000")
    e("s_nop 6")
    for k in range(16):
        e(f"v_cvt_pk_bf16_f32 v{64+k}, v{SC+2*k}, v{SC+2*k+1}")
    for k in range(16):
        e(f"v_lshlrev_b32 v{SC+2*k}, 16, v{64+k}")
        e(f"v_and_b32 v{SC+2*k+1}, s57, v{64+k}")
    for k in range(32):
        e(f"v_mul_f32 v{SC+k}, s59, v{SC+k}")
    for k in range(16):
        e(f"v_cvt_pk_bf16_f32 v{64+k}, v{SC+2*k}, v{SC+2*k+1}")
    for k in range(16):
        e(f"v_lshlrev_b32 v{SC+2*k}, 16, v{64+k}")
        e(f"v_and_b32 v{SC+2*k+1}, s57, v{64+k}")
else:
    e(f"s_mov_b32 s58, 0x{f2u(CSC):08x}")
    e("s_nop 7")
e(f"v_max3_f32 v10, v{SC}, v{SC+1}, v{SC+2}")
e(f"v_max3_f32 v11, v{SC+3}, v{SC+4}, v{SC+5}")
for k in range(6, 30, 4):
    e(f"v_max3_f32 v10, v10, v{SC+k}, v{SC+k+1}")
    e(f"v_max3_f32 v11, v11, v{SC+k+2}, v{SC+k+3}")
e(f"v_max3_f32 v10, v10, v{SC+30}, v{SC+31}")
e("v_max_f32 v10, v10, v11")
def xlane(op, v, t):
    e(f"v_mov_b32 {t}, {v}")
    e("s_nop 1")
    e(f"v_permlane32_swap_b32 {v}, {t}")
    e("s_nop 1")
    e(f"{op} {v}, {v}, {t}")
    e(f"v_mov_b32 {t}, {v}")
    e("s_nop 1")
    e(f"v_permlane16_swap_b32 {v}, {t}")
    e("s_nop 1")
    e(f"{op} {v}, {v}, {t}")
xlane("v_max_f32", "v10", "v11")
e("v_mul_f32 v10, s58, v10")
e("v_sub_f32 v13, 0, v10")
for k in range(32):
    e(f"v_fma_f32 v{SC+k}, v{SC+k}, s58, v13")
for k in range(32):
    e(f"v_exp_f32 v{SC+k}, v{SC+k}")
e("s_nop 0")
e(f"v_add_f32 v11, v{SC}, v{SC+1}")
e(f"v_add_f32 v14, v{SC+2}, v{SC+3}")
for k in range(4, 32, 2):
    e(f"v_add_f32 v11, v11, v{SC+k}")
    e(f"v_add_f32 v14, v14, v{SC+k+1}")
e("v_add_f32 v11, v11, v14")
for k in range(16):
    e(f"v_cvt_pk_bf16_f32 v{64+k}, v{SC+2*k}, v{SC+2*k+1}")
e("s_lshl_b32 s55, s31, 12")
e(f"v_add_u32 v7, s55, {V_L16}")
e(f"v_add_u32 v7, {L_PL}, v7")
for T in range(4):
    e(f"ds_write_b128 v7, v[{64+4*T}:{67+4*T}] offset:{T*1024}")
xlane("v_add_f32", "v11", "v14")
e("s_lshl_b32 s55, s31, 5")
e(f"s_add_u32 s55, s55, {L_SL}")
e("v_lshlrev_b32 v8, 3, v0")
e("v_add_u32 v8, s55, v8")
e("s_mov_b64 exec, 0xf")
e("ds_write_b64 v8, v[10:11]")
e("s_mov_b64 exec, -1")
e("s_waitcnt lgkmcnt(0)")
lds_set("v6", CF_P)
lds_set("v6", CF_SL)
stamp_if_role(0, 6)
if P["dbg"] == 4: e("s_branch L_end")
ls3, ls0, lsd = uid("Ls"), uid("Ls"), uid("Ls")
e("s_cmp_eq_u32 s31, 0")
e(f"s_cbranch_scc1 {ls0}")
e("s_cmp_lg_u32 s31, 3")
e(f"s_cbranch_scc1 {lsd}")
lds_wait4(CF_SL)
e("s_mov_b64 exec, 0xffff")
e("v_lshlrev_b32 v8, 3, v0")
e(f"v_add_u32 v8, {L_SL}, v8")
e("ds_read_b64 v[10:11], v8")
e("s_waitcnt lgkmcnt(0)")
e("v_max_f32_dpp v13, v10, v10 row_ror:4 row_mask:0xf bank_mask:0xf")
e("s_nop 1")
e("v_max_f32_dpp v13, v13, v13 row_ror:8 row_mask:0xf bank_mask:0xf")
e("v_sub_f32 v14, v10, v13")
e("v_exp_f32 v14, v14")
e("s_nop 0")
e("v_mul_f32 v14, v14, v11")
e("s_nop 1")
e("v_add_f32_dpp v15, v14, v14 row_ror:4 row_mask:0xf bank_mask:0xf")
e("s_nop 1")
e("v_add_f32_dpp v15, v15, v15 row_ror:8 row_mask:0xf bank_mask:0xf")
e("v_mov_b32 v20, v13")
e("v_mov_b32 v21, v15")
e("v_mov_b32 v22, s50")
e("v_mov_b32 v23, s51")
e("v_and_b32 v9, 3, v0")
e("v_lshlrev_b32 v9, 4, v9")
e("s_lshl_b32 s58, s2, 7")
e(f"s_add_u32 s58, s58, {WS_ST}")
e("s_xor_b32 s59, s58, 128")
e("s_mov_b64 exec, 0xf")
e(f"buffer_store_dwordx4 v[20:23], v9, {SRD_WS}, s58 offen sc1")
e("s_mov_b64 exec, 0xffff")
lp, ld = uid("Lp"), uid("Ld")
lab(lp)
e(f"buffer_load_dwordx4 v[24:27], v9, {SRD_WS}, s59 offen sc1")
e("s_waitcnt vmcnt(0)")
e("v_cmp_ne_u64 vcc, v[26:27], v[22:23]")
e(f"s_cbranch_vccz {ld}")
budget_check()
e("s_sleep 2")
e(f"s_branch {lp}")
lab(ld)
e("v_max_f32 v26, v13, v24")
e("v_sub_f32 v27, v13, v26")
e("v_sub_f32 v20, v24, v26")
e("v_sub_f32 v21, v10, v26")
e("v_exp_f32 v27, v27")
e("v_exp_f32 v20, v20")
e("v_exp_f32 v21, v21")
e("s_nop 0")
e("v_mul_f32 v27, v27, v15")
e("v_fmac_f32 v27, v20, v25")
e("v_rcp_f32 v27, v27")
e("s_nop 0")
e("v_mul_f32 v21, v21, v27")
e("v_lshlrev_b32 v8, 2, v0")
e(f"v_add_u32 v8, {L_FW}, v8")
e("ds_write_b32 v8, v21")
e("s_mov_b64 exec, -1")
e("s_waitcnt lgkmcnt(0)")
stamp(7)
e(f"s_branch {lsd}")
lab(ls0)
e("s_lshl_b32 s58, s4, 10")
e(f"s_add_u32 s58, s58, {WS_FL}")
e("v_mov_b32 v20, s50")
e("v_mov_b32 v21, s51")
lp, ld = uid("Lp"), uid("Ld")
lab(lp)
e(f"buffer_load_dwordx4 v[24:27], {V_L16}, {SRD_WS}, s58 offen sc1")
e("s_waitcnt vmcnt(0)")
e("v_cmp_ne_u64 vcc, v[24:25], v[20:21]")
e("v_cmp_ne_u64 s[56:57], v[26:27], v[20:21]")
e("s_or_b64 vcc, vcc, s[56:57]")
e(f"s_cbranch_vccz {ld}")
budget_check()
e("s_sleep 2")
e(f"s_branch {lp}")
lab(ld)
lab(lsd)
if P["s2bulk"]:
    e("s_barrier")
    e("s_cmp_lg_u32 s31, 0")
    e("s_cbranch_scc1 L_end")
    e("s_barrier")
else:
    if P["wolate"] in (1, 3):
        lds_wait1("v6", CF_VI)
    WO = 64; FO = 96; DO = 128
    e("s_lshl_b32 s56, s26, 9")
    e("s_and_b32 s57, s31, 1")
    e("s_lshl_b32 s57, s57, 6")
    e("s_add_u32 s56, s56, s57")
    e("s_lshl_b32 s57, s53, 1")
    e("s_add_u32 s56, s56, s57")
    e("s_lshr_b32 s57, s31, 1")
    e("s_add_u32 s56, s56, s57")
    e("s_lshl_b32 s56, s56, 10")
    e("s_lshl_b32 s57, s54, 8")
    e("s_add_u32 s56, s56, s57")
    e(f"v_lshlrev_b32 v8, 14, {V_G}")
    e(f"v_lshl_add_u32 v8, {V_C}, 4, v8")
    def wo_loads():
        if P["woprio"] != 3: e(f"s_setprio {P['woprio']}")
        for i in range(8):
            dd, h = i >> 2, i & 3
            e(f"s_add_u32 s57, s56, {(h*128 + 8*dd)*1024}")
            if P["wopace"] and i >= P["wopace"]: e(f"s_waitcnt vmcnt({P['wopace']-1})")
            e(f"buffer_load_dwordx4 v[{WO+4*i}:{WO+4*i+3}], v8, {SRD_B}, s57 offen{wpol}")
        if P["woprio"] != 3: e("s_setprio 3")
    if P["wolate"] != 2: wo_loads()
    e("v_and_b32 v9, 7, v0")
    e("v_lshlrev_b32 v9, 11, v9")
    e(f"v_lshrrev_b32 v10, 3, {V_C}")
    e("v_lshl_add_u32 v9, v10, 10, v9")
    e(f"v_lshl_add_u32 v9, {V_G}, 4, v9")
    e("s_lshl_b32 s58, s30, 14")
    e("s_lshl_b32 s59, s53, 8")
    e("s_add_u32 s58, s58, s59")
    e("s_lshl_b32 s59, s31, 6")
    e("s_add_u32 s58, s58, s59")
    e(f"s_add_u32 s58, s58, {WS_OP}")
    if P["dbg"] == 5:
        e("s_waitcnt vmcnt(0)")
        stamp_if_role(0, 13)
        e("s_branch L_end")
    e("s_barrier")
    if P["wolate"] == 2: wo_loads()
    stamp_if_role(0, 13)
    def wo_perms():
        e("s_waitcnt vmcnt(1)")
        perms_block(WO, FO)
        stamp_if_role(0, 14)
    if P["pipe"]:
        pipe_poll(1, lambda b: e(f"buffer_load_dwordx4 v[{b}:{b+3}], v9, {SRD_WS}, s58 offen sc1"),
                  16, [32 + 4*k for k in range(P["pipe"])], P["othr"], P["osleep"], pre=wo_perms)
    else:
        e("s_waitcnt vmcnt(0)")
        perms_block(WO, FO)
        lp, ld = uid("Lp"), uid("Ld")
        lab(lp)
        e(f"buffer_load_dwordx4 v[16:19], v9, {SRD_WS}, s58 offen sc1")
        e("s_waitcnt vmcnt(0)")
        e("v_max3_u32 v24, v16, v17, v18")
        e("v_max_u32 v24, v24, v19")
        e("v_cmp_eq_u32 vcc, -1, v24")
        e("s_mov_b64 exec, vcc")
        e(f"s_cbranch_execz {ld}")
        budget_check()
        if P["osleep"]: e(f"s_sleep {P['osleep']}")
        e(f"s_branch {lp}")
        lab(ld)
        e("s_mov_b64 exec, -1")
    stamp_if_role(0, 15)
    e("s_nop 3")
    for j in range(8):
        e(f"v_mfma_f32_16x16x32_bf16 v[{DO+4*j}:{DO+4*j+3}], v[16:19], v[{FO+4*j}:{FO+4*j+3}], 0")
    e("s_lshl_b32 s55, s31, 13")
    e(f"v_add_u32 v7, s55, {V_L16}")
    e("s_lshr_b32 s55, s31, 1")
    e("s_lshl_b32 s55, s55, 12")
    e("s_and_b32 s56, s31, 1")
    e("s_lshl_b32 s56, s56, 8")
    e("s_add_u32 s55, s55, s56")
    e(f"v_lshlrev_b32 v8, 10, {V_G}")
    e(f"v_lshl_add_u32 v8, {V_C}, 4, v8")
    e("v_add_u32 v8, s55, v8")
    for j in range(8):
        e(f"ds_write_b128 v7, v[{DO+4*j}:{DO+4*j+3}] offset:{j*1024}")
    e("s_waitcnt lgkmcnt(0)")
    e("s_barrier")
    for k in range(8):
        a, sp = k >> 1, k & 1
        e(f"ds_read_b128 v[{64+4*k}:{67+4*k}], v8 offset:{a*8192 + sp*512}")
    e("s_waitcnt lgkmcnt(6)")
    for r in range(4): e(f"v_add_f32 v{64+r}, v{64+r}, v{68+r}")
    e("s_waitcnt lgkmcnt(4)")
    for r in range(4): e(f"v_add_f32 v{72+r}, v{72+r}, v{76+r}")
    e("s_waitcnt lgkmcnt(2)")
    for r in range(4): e(f"v_add_f32 v{80+r}, v{80+r}, v{84+r}")
    for r in range(4): e(f"v_add_f32 v{64+r}, v{64+r}, v{72+r}")
    e("s_waitcnt lgkmcnt(0)")
    for r in range(4): e(f"v_add_f32 v{88+r}, v{88+r}, v{92+r}")
    for r in range(4): e(f"v_add_f32 v{80+r}, v{80+r}, v{88+r}")
    for r in range(4): e(f"v_add_f32 v{64+r}, v{64+r}, v{80+r}")
    for r in range(4): e(f"v_min_u32 v{64+r}, -2, v{64+r}")
    e(f"buffer_store_dwordx4 v[64:67], v12, {SRD_WS}, s60 offen sc1")
e("s_cmp_lg_u32 s31, 0")
e("s_cbranch_scc1 L_end")
if not P["s2bulk"]: stamp(16)
for _ in range(P["padtail"]): e("s_nop 0")
e("s_and_b32 s55, s2, 1")
e("s_lshl_b32 s56, s4, 1")
e("s_add_u32 s56, s56, s55")
e("s_lshl_b32 s56, s56, 18")
e("s_bfe_u32 s57, s2, 0x60001")
e("s_lshl_b32 s58, s57, 12")
e("s_add_u32 s56, s56, s58")
e(f"s_add_u32 s56, s56, {WS_RP}")
e("s_mov_b32 s44, s20"); e("s_mov_b32 s45, s21"); e("s_mov_b32 s46, 16384"); e("s_mov_b32 s47, 0x20000")
e("s_lshl_b32 s58, s55, 13")
e("s_lshl_b32 s59, s4, 10")
e("s_add_u32 s58, s58, s59")
e("s_lshl_b32 s59, s57, 4")
e("s_add_u32 s58, s58, s59")
e("v_lshlrev_b32 v8, 1, v0")
if P["pipe"]:
    def iss(b):
        for t in range(4):
            e(f"buffer_load_dwordx4 v[{b+4*t}:{b+4*t+3}], {V_L16}, {SRD_WS}, s56 offen offset:{t*1024} sc1")
    pipe_poll(4, iss, 16, [160 + 16*k for k in range(P["pipe"])], P["rthr"], P["osleep"])
else:
    lp, ld = uid("Lp"), uid("Ld")
    lab(lp)
    for t in range(4):
        e(f"buffer_load_dwordx4 v[{16+4*t}:{19+4*t}], {V_L16}, {SRD_WS}, s56 offen offset:{t*1024} sc1")
    e("s_waitcnt vmcnt(0)")
    e("v_max3_u32 v32, v16, v17, v18")
    e("v_max3_u32 v33, v19, v20, v21")
    e("v_max3_u32 v32, v32, v22, v23")
    e("v_max3_u32 v33, v33, v24, v25")
    e("v_max3_u32 v32, v32, v26, v27")
    e("v_max3_u32 v33, v33, v28, v29")
    e("v_max3_u32 v32, v32, v30, v31")
    e("v_max_u32 v32, v32, v33")
    e("v_cmp_eq_u32 vcc, -1, v32")
    e("s_mov_b64 exec, vcc")
    e(f"s_cbranch_execz {ld}")
    budget_check()
    if P["osleep"]: e(f"s_sleep {P['osleep']}")
    e(f"s_branch {lp}")
    lab(ld)
    e("s_mov_b64 exec, -1")
stamp(17)
for r in range(4): e(f"v_add_f32 v{16+r}, v{16+r}, v{20+r}")
for r in range(4): e(f"v_add_f32 v{24+r}, v{24+r}, v{28+r}")
for r in range(4): e(f"v_add_f32 v{16+r}, v{16+r}, v{24+r}")
e("s_nop 1")
for r in range(4): e(f"v_add_f32_dpp v{20+r}, v{16+r}, v{16+r} row_ror:8 row_mask:0xf bank_mask:0xf")
for r in range(4): e(f"v_mov_b32 v{24+r}, v{20+r}")
e("s_nop 1")
for r in range(4): e(f"v_permlane32_swap_b32 v{20+r}, v{24+r}")
e("s_nop 1")
for r in range(4): e(f"v_add_f32 v{20+r}, v{20+r}, v{24+r}")
for r in range(4): e(f"v_mov_b32 v{24+r}, v{20+r}")
e("s_nop 1")
for r in range(4): e(f"v_permlane16_swap_b32 v{20+r}, v{24+r}")
e("s_nop 1")
for r in range(4): e(f"v_add_f32 v{20+r}, v{20+r}, v{24+r}")
for r in range(4): e(f"v_cvt_pk_bf16_f32 v{20+r}, v{20+r}, v{20+r}")
e("s_mov_b64 exec, 0xff")
e("s_add_u32 s59, s58, 4096")
for r in range(4):
    e(f"buffer_store_short v{20+r}, v8, {SRD_X}, {'s58' if r < 2 else 's59'} offen offset:{(r&1)*2048}")
e("s_and_b32 s55, s2, 127")
e("s_cmp_lg_u32 s55, 0")
lfin = uid("Lf")
e(f"s_cbranch_scc1 {lfin}")
e("s_mov_b64 exec, 1")
e("v_mov_b32 v24, s50")
e("v_mov_b32 v25, s51")
e("v_mov_b32 v26, 0")
e("s_lshl_b32 s58, s4, 7")
e(f"buffer_store_dwordx2 v[24:25], v26, {SRD_WS}, s58 offen sc1")
lab(lfin)
if P["dclk"]:
    ldc = uid("Ldc")
    e("s_cmp_lg_u32 s2, 5")
    e(f"s_cbranch_scc1 {ldc}")
    e("s_memrealtime s[64:65]")
    e("s_memtime s[88:89]")
    e("s_mov_b32 s44, s22"); e("s_mov_b32 s45, s23"); e("s_mov_b32 s46, 256"); e("s_mov_b32 s47, 0x20000")
    e("s_waitcnt lgkmcnt(0)")
    e("s_sub_u32 s64, s64, s70")
    e("s_sub_u32 s88, s88, s86")
    e("s_mov_b64 exec, 1")
    e("v_mov_b32 v24, s64")
    e("v_mov_b32 v25, s88")
    e("v_mov_b32 v26, 0")
    e("buffer_store_dwordx2 v[24:25], v26, s[44:47], 0 offen")
    lab(ldc)
if P["dspan"]:
    e("s_waitcnt vmcnt(0)")
    e("s_memrealtime s[64:65]")
    e("s_mov_b32 s44, s22"); e("s_mov_b32 s45, s23"); e("s_mov_b32 s46, 256"); e("s_mov_b32 s47, 0x20000")
    e("s_waitcnt lgkmcnt(0)")
    e("s_mov_b64 exec, 1")
    e("s_not_b32 s66, s70")
    e("v_mov_b32 v24, s64")
    e("v_mov_b32 v25, s66")
    e("v_mov_b32 v26, 0")
    e("buffer_atomic_umax v24, v26, s[44:47], 0 offen")
    e("buffer_atomic_umax v25, v26, s[44:47], 0 offen offset:4")
    e("v_mov_b32 v24, s70")
    e("buffer_atomic_umax v24, v26, s[44:47], 0 offen offset:8")
    e("s_not_b32 s66, s64")
    e("v_mov_b32 v25, s66")
    e("buffer_atomic_umax v25, v26, s[44:47], 0 offen offset:12")
if NST:
    e("s_mov_b64 exec, -1")
    e("s_waitcnt vmcnt(0)")
    stamp(18)
lab("L_end")
e("s_endpgm")
lab("L_code_end")

ftr = f""".section .rodata,"a"
.p2align 6
.amdhsa_kernel {NAME}_kernel
  .amdhsa_next_free_vgpr 256
  .amdhsa_next_free_sgpr 102
  .amdhsa_accum_offset 256
  .amdhsa_group_segment_fixed_size 0
  .amdhsa_kernarg_size 104
  .amdhsa_user_sgpr_count 2
  .amdhsa_user_sgpr_kernarg_segment_ptr 1
  .amdhsa_system_sgpr_workgroup_id_x 1
.end_amdhsa_kernel
"""
open(out, "w").write(hdr + "\n" + "\n".join(L) + "\n" + ftr)
```
